```python
import torch

def _softmax(x, axis=-1):
    return torch.softmax(x, dim=axis)
def _gelu(x):
    return torch.nn.functional.gelu(x, approximate="tanh")
def _silu(x):
    return torch.nn.functional.silu(x)
def _sigmoid(x):
    return torch.sigmoid(x)
def _layernorm(x, axis=-1, eps=1e-5):
    m = x.mean(dim=axis, keepdim=True)
    v = x.var(dim=axis, keepdim=True, unbiased=False)
    return (x - m) / torch.sqrt(v + eps)
def _scatter_add(tgt, idx, src, axis=0):
    return tgt.clone().index_add_(axis, idx, src)
def _segment_sum(src, seg, n):
    out = torch.zeros((n,) + src.shape[1:], dtype=src.dtype)
    return out.index_add_(0, seg, src)
def _pad(x, pw):
    flat = tuple(v for pair in reversed(pw) for v in pair)
    return torch.nn.functional.pad(x, flat)

kernel_name = 'interleave_layers__sliding_block_cached__sliding_block_cached__decode'

def setup_inputs():

    _w = (lambda a: (lambda t: t.to(torch.bfloat16) if t.is_floating_point() else t)(torch.as_tensor(a)))
    def _A_setup():
        B, Sq, D = 1, 1, 1024
        Hq, Hkv, Sk, Dh = 32, 4, 65536, 128
        assert Hq % Hkv == 0, (Hq, Hkv)
        return {
            "x": _w((lambda *s: torch.randn(*s, dtype=torch.bfloat16) * 0.05)(B, Sq, D)),
            "k_cache": _w((lambda *s: torch.randn(*s, dtype=torch.bfloat16) * 0.8)(B, Hkv, Sk, Dh)),
            "v_cache": _w((lambda *s: torch.randn(*s, dtype=torch.bfloat16) * 3.2)(B, Hkv, Sk, Dh)),
            "wq": _w((lambda *s: torch.randn(*s, dtype=torch.bfloat16) * 0.8)(D, Hq * Dh) * (D ** -0.5)),
            "wo": _w((lambda *s: torch.randn(*s, dtype=torch.bfloat16) * 3.2)(Hq * Dh, D) * ((Hq * Dh) ** -0.5)),
        }
    _A_in = _A_setup()

    def _B_setup():
        B, Sq, D = 1, 1, 1024
        Hq, Hkv, Sk, Dh = 32, 4, 65536, 128
        assert Hq % Hkv == 0, (Hq, Hkv)
        return {
            "x": _w((lambda *s: torch.randn(*s, dtype=torch.bfloat16) * 0.05)(B, Sq, D)),
            "k_cache": _w((lambda *s: torch.randn(*s, dtype=torch.bfloat16) * 1.6)(B, Hkv, Sk, Dh)),
            "v_cache": _w((lambda *s: torch.randn(*s, dtype=torch.bfloat16) * 1.6)(B, Hkv, Sk, Dh)),
            "wq": _w((lambda *s: torch.randn(*s, dtype=torch.bfloat16) * 1.6)(D, Hq * Dh) * (D ** -0.5)),
            "wo": _w((lambda *s: torch.randn(*s, dtype=torch.bfloat16) * 1.6)(Hq * Dh, D) * ((Hq * Dh) ** -0.5)),
        }
    _B_in = _B_setup()

    return {
        "A_x": _A_in["x"],
        "A_k_cache": _A_in["k_cache"],
        "A_v_cache": _A_in["v_cache"],
        "A_wq": _A_in["wq"],
        "A_wo": _A_in["wo"],
        "B_x": _B_in["x"],
        "B_k_cache": _B_in["k_cache"],
        "B_v_cache": _B_in["v_cache"],
        "B_wq": _B_in["wq"],
        "B_wo": _B_in["wo"],
    }

def reference(A_x, A_k_cache, A_v_cache, A_wq, A_wo, B_x, B_k_cache, B_v_cache, B_wq, B_wo):
    def _A_ref(x, k_cache, v_cache, wq, wo):
        B, Sq, D = x.shape
        Hq, Dh = 32, 128
        Hkv, Sk = k_cache.shape[1], k_cache.shape[2]
        W = min(4096, max(256, Sk // 4))
        rep = Hq // Hkv
        q = (lambda x, *d: x.permute(*d))((x @ wq).reshape(B, Sq, Hq, Dh), 0, 2, 1, 3)
        k = (lambda x, n, axis: torch.repeat_interleave(x, n, dim=axis))(k_cache[:, :, Sk - W:, :], rep, axis=1)
        v = (lambda x, n, axis: torch.repeat_interleave(x, n, dim=axis))(v_cache[:, :, Sk - W:, :], rep, axis=1)
        scores = torch.einsum("bhqd,bhkd->bhqk", q, k) * (Dh ** -0.5)
        p = _softmax(scores, axis=-1)
        o = torch.einsum("bhqk,bhkd->bhqd", p, v)
        return (lambda x, *d: x.permute(*d))(o, 0, 2, 1, 3).reshape(B, Sq, Hq * Dh) @ wo

    def _B_ref(x, k_cache, v_cache, wq, wo):
        B, Sq, D = x.shape
        Hq, Dh = 32, 128
        Hkv, Sk = k_cache.shape[1], k_cache.shape[2]
        W = min(4096, max(256, Sk // 4))
        rep = Hq // Hkv
        q = (lambda x, *d: x.permute(*d))((x @ wq).reshape(B, Sq, Hq, Dh), 0, 2, 1, 3)
        k = (lambda x, n, axis: torch.repeat_interleave(x, n, dim=axis))(k_cache[:, :, Sk - W:, :], rep, axis=1)
        v = (lambda x, n, axis: torch.repeat_interleave(x, n, dim=axis))(v_cache[:, :, Sk - W:, :], rep, axis=1)
        scores = torch.einsum("bhqd,bhkd->bhqk", q, k) * (Dh ** -0.5)
        p = _softmax(scores, axis=-1)
        o = torch.einsum("bhqk,bhkd->bhqd", p, v)
        return (lambda x, *d: x.permute(*d))(o, 0, 2, 1, 3).reshape(B, Sq, Hq * Dh) @ wo

    x = A_x
    x = x + _A_ref(_layernorm(x, axis=-1), A_k_cache, A_v_cache, A_wq, A_wo)
    x = x + _B_ref(_layernorm(x, axis=-1), B_k_cache, B_v_cache, B_wq, B_wo)
    x = x + _A_ref(_layernorm(x, axis=-1), A_k_cache, A_v_cache, A_wq, A_wo)
    x = x + _B_ref(_layernorm(x, axis=-1), B_k_cache, B_v_cache, B_wq, B_wo)
    return x
```

```python
import re
TRANS=("v_exp_f32","v_log_f32","v_rcp_f32","v_rsq_f32","v_sqrt_f32","v_sin_f32","v_cos_f32")
def regs(tok):
    tok=tok.strip()
    m=re.fullmatch(r"-?\|?([vas])\[(\d+):(\d+)\]\|?",tok)
    if m: return {(m.group(1),i) for i in range(int(m.group(2)),int(m.group(3))+1)}
    m=re.fullmatch(r"-?\|?([vas])(\d+)\|?",tok)
    if m: return {(m.group(1),int(m.group(2)))}
    if tok=="vcc": return {("s","vcc")}
    if tok=="m0": return {("s","m0")}
    if tok in("exec","exec_lo","exec_hi"): return {("s","exec")}
    return set()
class I:
    def __init__(s,text):
        s.text=text; t=text.split(";")[0].strip(); s.label=None; s.op=None
        s.w=set(); s.r=set(); s.cls=None; s.srcC=set(); s.srcAB=set(); s.data=set(); s.target=None; s.ws=1
        if not t or t.startswith("."): s.cls="none"; s.ws=0; return
        if t.endswith(":"): s.label=t[:-1]; s.cls="label"; s.ws=0; return
        p=t.split(None,1); s.op=p[0]; rest=p[1] if len(p)>1 else ""
        ops=[o.strip() for o in re.split(r",(?![^\[]*\])",rest)] if rest else []
        if ops:
            last=ops[-1].split(None,1); ops[-1]=last[0]; s.mods=last[1] if len(last)>1 else ""
        else: s.mods=""
        op=s.op; R=[regs(o) for o in ops]
        s.dpp = op.endswith("_dpp")
        if op.startswith("v_mfma"):
            s.cls="mfma"; s.w=R[0]; s.srcAB=R[1]|R[2]; s.srcC=R[3]; s.r=s.srcAB|s.srcC
        elif op.startswith("v_smfmac"):
            s.cls="mfma"; s.w=R[0]; s.srcAB=R[1]|R[2]|R[3]; s.srcC=R[0]; s.r=s.srcAB|s.srcC
        elif op.startswith("v_"):
            s.cls="valu"; base=op.replace("_dpp","").replace("_e32","").replace("_e64","")
            s.trans = base in TRANS
            s.w=set(R[0]); s.r=set().union(*R[1:]) if len(R)>1 else set()
            if base.startswith("v_cndmask") and len(ops)==3: s.r|={("s","vcc")}
            if base.startswith(("v_fmac","v_writelane","v_permlane")) or s.dpp: s.r|=R[0]
            if base.startswith("v_permlane"): s.w|=R[1]
            if base.startswith(("v_add_co","v_sub_co","v_addc_co","v_subb_co")): s.w|=R[1]; s.r=set().union(*R[2:])
            s.rl = base.startswith(("v_readlane","v_readfirstlane"))
            s.perm = base.startswith("v_permlane")
            s.lanesel = R[2] if base.startswith(("v_readlane","v_writelane")) else set()
        elif op.startswith(("global_","buffer_")):
            s.cls="vmem"
            if "load_lds" in op: s.r=set().union(*R)|{("s","m0")}; s.dma=True
            elif "load" in op: s.w=R[0]; s.r=set().union(*R[1:])
            else:
                s.r=set().union(*R)
                if op.endswith(("x3","x4")): s.data=R[1]
        elif op.startswith("ds_"):
            s.cls="ds"
            if "read" in op or "permute" in op or "swizzle" in op: s.w=R[0]; s.r=set().union(*R[1:])
            else: s.r=set().union(*R)
        else:
            s.cls="salu"
            if op=="s_nop": s.ws=int(ops[0],0)+1
            elif op.startswith(("s_branch","s_cbranch")): s.target=ops[0]
            elif op.startswith(("s_cmp","s_waitcnt","s_barrier","s_sleep","s_endpgm","s_setprio","s_bitcmp")): s.r=set().union(*R) if R else set()
            else:
                s.w=set(R[0]) if R else set(); s.r=set().union(*R[1:]) if len(R)>1 else set()
                if "saveexec" in op: s.w|={("s","exec")}
def need(p,c):
    n=0
    V=lambda S:{x for x in S if x[0] in "va"}
    Sg=lambda S:{x for x in S if x[0]=="s"}
    if p.cls=="valu":
        if c.cls=="valu":
            if c.dpp and V(p.w)&c.r: n=max(n,2)
            if c.perm and V(p.w)&c.r: n=max(n,2)
            if c.rl and V(p.w)&c.r: n=max(n,1)
            if p.trans and not c.trans and V(p.w)&c.r: n=max(n,1)
            if Sg(p.w)&c.r: n=max(n,2)
            if Sg(p.w)&c.lanesel: n=max(n,4)
        if c.cls=="mfma" and V(p.w)&c.r: n=max(n,2)
        if c.cls=="vmem" and Sg(p.w)&c.r: n=max(n,5)
        if c.cls=="salu" and c.op.startswith("s_load") and Sg(p.w)&c.r: n=max(n,5)
    if p.cls=="mfma":
        if c.cls=="mfma":
            if p.w&c.srcAB: n=max(n,8)
            if p.w&c.srcC and p.w!=c.srcC: n=max(n,6)
            if p.w&c.w and p.w!=c.srcC: n=max(n,6)
        elif c.cls in("valu","vmem","ds"):
            if p.w&(c.r|c.w): n=max(n,8)
        if c.cls=="valu" and p.srcC&c.w: n=max(n,3)
    if p.cls=="vmem" and p.data:
        if c.cls=="valu" and p.data&c.w: n=max(n,2)
        elif p.data&c.w: n=max(n,1)
    if p.cls=="salu" and ("s","m0") in p.w and c.cls=="vmem" and getattr(c,"dma",False): n=max(n,1)
    return n
def fix(lines,verbose=False):
    ins=[I(l) for l in lines]
    changed=True; total=0
    while changed:
        changed=False
        lab={x.label:i for i,x in enumerate(ins) if x.label}
        preds={i:[] for i in range(len(ins))}
        for i,x in enumerate(ins):
            if x.target is not None and x.target in lab: preds[lab[x.target]].append(i)
            if i+1<len(ins) and x.op not in("s_branch","s_endpgm"): preds[i+1].append(i)
        for i,c in enumerate(ins):
            if c.cls in("none","label"): continue
            worst=0; stack=[(j,0) for j in preds[i]]; seen={}
            while stack:
                j,d=stack.pop()
                if d>=8 or seen.get(j,99)<=d: continue
                seen[j]=d; p=ins[j]
                if p.cls not in("none","label"):
                    k=need(p,c)-d
                    if k>worst: worst=k; who=p
                for jj in preds[j]: stack.append((jj,d+p.ws))
            if worst>0:
                if verbose: print("nop",worst,"between",who.text.strip(),"->",c.text.strip())
                ins.insert(i,I(f"s_nop {worst-1}")); changed=True; total+=worst; break
    return [x.text for x in ins], total
```

```python
import sys, math, struct
from hz import fix
NAME="interleave_layers__sliding_block_cached__sliding_block_cached__decode"
HDR=open("cdna_kernels/%s.s.ref"%NAME).read().split("; Override launch")[0]
def f2u(x): return struct.unpack("<I",struct.pack("<f",x))[0]
RS=272
XQ=0; ONES=4*RS; ZERO=5*RS; XA=6*RS; XC={"A":10*RS,"B":14*RS}; XO=18*RS; XP=22*RS; PS=80
XM=XP+16*PS; XR=XM+64; XF=XR+32; FS=528
BUFQ=0x2800; BUFK=BUFQ+0x8000; BUFV=BUFK+0x8000; BUFO=BUFV+0x8000; LDSSZ=BUFO+0x8000
assert XF+4*FS<=BUFQ and XF%16==0
LAY=512*1024; CS=2<<20; FLG=5<<20; NONCE=FLG+0x10000; DIAG=6<<20
class Regs:
    def __init__(s,n0): s.n=n0; s.d={}
    def __call__(s,name,k=1,al=1):
        s.n=(s.n+al-1)//al*al; s.d[name]=s.n; s.n+=k; return s.d[name]
def gen(diag=0, bWo=4, t3=5, bWq=4, t1=5, bK=4, slp=4, TMO=30000, name=NAME):
    L=[];
    def A(t):
        for x in t.split("\n"): L.append(x)
    V=Regs(1)
    v=lambda i:f"v{i}"
    vr=lambda i,k:f"v[{i}:{i+k-1}]"
    ar=lambda i,k:f"a[{i}:{i+k-1}]"
    for n in "Sel Msk One X4 G0 G1 S C0 C1 D T0 T1 Tg Ag A0 A1 A2 A3 P W4 F0 F1 F2 F3 Neg Tag".split(): V(n,4,4)
    for n in "c01 st ab tA tB".split(): V(n,2,2)
    for n in ("aG1 aG2 aS2 aC2 aG3 aS3 aP2 aPS2 aP3 aPS3 aP1 aR aF aFl dQ dK dV dO dT xW xFw xFr rQ rG rAA rAB rP0 rP1 rP2 rP3 rPl pW mW mR rO lW "
              "tT tK n g t0 t1 t2 t3 t4 t5 chk stamp").split(): V(n)
    r=V.d
    R=lambda n,k=4:vr(r[n],k)
    x=lambda n,o=0:v(r[n]+o)
    AQ={"A":0,"B":128}
    PTR={"A":dict(k=6,v=8,q=10,o=12),"B":dict(k=16,v=18,q=20,o=22)}
    sW,sL,sM,sR,sI,sI2,sCB,sG=30,31,32,33,34,35,36,37
    sCur,sPrev,sIt,sTo,sTag=38,40,42,43,44
    mP2,mP1,mP3,mS3=46,48,50,52
    sPerm,sH=54,55
    Q=[]
    def vm(tag): Q.append(tag)
    def waitfor(tag):
        idx=max(i for i,t in enumerate(Q) if t==tag); n=len(Q)-1-idx; assert n<64
        A(f"s_waitcnt vmcnt({n})")
    nst=[0]
    def stamp(k):
        if not diag: return
        A(f"s_memrealtime s[60:61]\ns_mul_i32 s62, s{sIt}, 20\ns_add_u32 m0, s62, {k}\ns_waitcnt lgkmcnt(0)\nv_writelane_b32 {x('stamp')}, s60, m0")
    def dma(kind,X,q):
        p=PTR[X][kind]; buf={"q":BUFQ,"k":BUFK,"v":BUFV,"o":BUFO}[kind]
        if kind in "qo":
            step=32768 if kind=="q" else 8192
            A(f"s_add_u32 m0, s56, {buf+q*1024}")
            src=x("dQ" if kind=="q" else "dO")
            if q: A(f"v_add_u32 {x('dT')}, {q*step}, {src}"); src=x("dT")
            A(f"global_load_lds_dwordx4 {src}, s[{p}:{p+1}] nt")
        else:
            hi=q//4
            if q%4==0 or True: A(f"s_add_u32 m0, s56, {buf+hi*4096}")
            src=x("dK" if kind=="k" else "dV")
            if kind=="k" and q: A(f"v_xor_b32 {x('dT')}, {q*32}, {src}"); src=x("dT")
            if hi: A(f"v_add_u32 {x('dT')}, 4096, {src}"); src=x("dT")
            A(f"global_load_lds_dwordx4 {src}, s[{p}:{p+1}] offset:{(q%4)*1024} nt")
        vm(f"{kind}{X}{q}")
    def trreads(buf,abase):
        A(f"v_add_u32 {x('dT')}, {buf}, {x('tT')}")
        for s in range(4):
            for t in range(2):
                for u in range(2):
                    A(f"ds_read_b64_tr_b16 {ar(abase+(t*4+s)*4+2*u,2)}, {x('dT')} offset:{s*8192+u*1024+8*t}")
    def kreads(abase):
        for s in range(4):
            A(f"v_xor_b32 {x('dT')}, {64*s}, {x('tK')}")
            for t in range(2): A(f"ds_read_b128 {ar(abase+(t*4+s)*4,4)}, {x('dT')} offset:{256*t}")
    def mf(d,a,b,c): A(f"v_mfma_f32_16x16x32_bf16 {d}, {a}, {b}, {c}")
    def chk(rs,first=True):
        rs=list(rs); c=x("chk")
        if first:
            A(f"v_max3_u32 {c}, v{rs[0]}, v{rs[1]}, v{rs[2]}"); rs=rs[3:]
        while len(rs)>=2: A(f"v_max3_u32 {c}, {c}, v{rs[0]}, v{rs[1]}"); rs=rs[2:]
        if rs: A(f"v_max_u32 {c}, {c}, v{rs[0]}")
    q4=lambda n:range(r[n],r[n]+4)
    def retry(lab,back):
        A(f"{lab}:\ns_sleep {slp}\ns_add_u32 s{sTo}, s{sTo}, 1\ns_cmp_lt_u32 s{sTo}, {TMO}\ns_cbranch_scc1 {back}\ns_branch L_fail")
    DP="row_mask:0xf bank_mask:0xf"
    def pack_store(mask,addr,base):
        A(f"v_cvt_pk_bf16_f32 {x('P')}, {x('tA')}, {x('tB')}")
        for k in (1,2,3): A(f"v_mov_b32_dpp {x('P',k)}, {x('P')} quad_perm:[{k},{k},{k},{k}] {DP}")
        A(f"s_mov_b64 exec, s[{mask}:{mask+1}]\nglobal_store_dwordx4 {x(addr)}, {R('P')}, s[{base}:{base+1}] sc1\ns_mov_b64 exec, -1")
    A(HDR.rstrip("\n"))
    A(f"; @launch grid=(256,1,1) block=(256,1,1) lds={LDSSZ}")
    A(f'.amdgcn_target "amdgcn-amd-amdhsa--gfx950"\n.text\n.globl {name}_kernel\n.p2align 8\n.type {name}_kernel,@function\n{name}_kernel:')
    A("s_cmp_ge_u32 s2, 256\ns_cbranch_scc1 L_end")
    A("s_load_dwordx16 s[4:19], s[0:1], 0\ns_load_dwordx8 s[20:27], s[0:1], 64\ns_load_dwordx2 s[28:29], s[0:1], 96")
    if diag: A("s_memrealtime s[70:71]")
    A(f"v_lshrrev_b32 {x('t0')}, 6, v0\nv_and_b32 v0, 63, v0\nv_readfirstlane_b32 s{sW}, {x('t0')}")
    A(f"s_bfe_u32 s{sG}, s2, 0x20001\ns_bfe_u32 s57, s2, 0x10003\ns_lshl_b32 s{sL}, s{sG}, 1\ns_or_b32 s{sL}, s{sL}, s57")
    A(f"s_and_b32 s57, s2, 1\ns_lshl_b32 s57, s57, 4\ns_lshr_b32 s{sM}, s2, 4\ns_or_b32 s{sM}, s{sM}, s57")
    A(f"s_lshr_b32 s{sR}, s{sM}, 2\ns_and_b32 s{sI}, s{sM}, 3\ns_lshr_b32 s{sI2}, s{sM}, 3\ns_and_b32 s{sCB}, s{sM}, 7")
    A(f"v_and_b32 {x('n')}, 15, v0\nv_lshrrev_b32 {x('g')}, 4, v0")
    A(f"v_lshlrev_b32 {x('t0')}, 2, {x('g')}\nv_xor_b32 {x('t0')}, {x('n')}, {x('t0')}\nv_lshlrev_b32 {x('t1')}, 4, {x('t0')}")
    A(f"s_lshl_b32 s57, s{sR}, 20\ns_lshl_b32 s58, s{sW}, 18\ns_add_u32 s57, s57, s58\ns_lshl_b32 s58, s{sL}, 10\ns_add_u32 s57, s57, s58\ns_lshl_b32 s58, s{sI}, 8\ns_add_u32 s57, s57, s58")
    A(f"v_lshl_add_u32 {x('dQ')}, {x('g')}, 13, {x('t1')}\nv_add_u32 {x('dQ')}, s57, {x('dQ')}")
    A(f"s_lshl_b32 s56, s{sW}, 13")
    A(f"v_and_b32 {x('t2')}, 1, {x('g')}\nv_lshlrev_b32 {x('t2')}, 3, {x('t2')}\nv_lshl_add_u32 {x('t2')}, {x('n')}, 4, {x('t2')}")
    A(f"s_lshl_b32 s57, s{sR}, 8\nv_add_u32 {x('t3')}, s57, {x('t2')}")
    A("s_waitcnt lgkmcnt(0)")
    for q in range(8): dma("q","A",q)
    A(f"global_load_dwordx2 {R('c01',2)}, {x('t3')}, s[4:5]"); vm("x")
    A(f"s_add_u32 s58, s28, {NONCE}\ns_addc_u32 s59, s29, 0\ns_load_dword s{sTag}, s[58:59], 0")
    A(f"s_lshr_b32 s{sH}, s{sL}, 2\ns_lshl_b32 s{sH}, s{sH}, 13")
    A(f"s_and_b32 s57, s{sL}, 3\ns_lshl_b32 s62, s57, 16\ns_add_u32 s62, s62, s{sH}")
    A(f"s_lshl_b32 s57, s57, 14\ns_add_u32 s57, s57, s{sH}\ns_add_u32 s64, s57, {16*16384}\ns_add_u32 s66, s57, {28*16384}")
    A(f"s_lshl_b32 s65, s{sL}, 13\ns_add_u32 s65, s65, {CS}")
    A(f"s_lshl_b32 s68, s{sI}, 3\ns_add_u32 s68, s68, s{sR}")
    A(f"s_lshl_b32 s63, s{sL}, 2\ns_add_u32 s63, s63, s{sI2}\ns_lshl_b32 s63, s63, 8\ns_lshl_b32 s57, s{sCB}, 14\ns_add_u32 s63, s63, s57\ns_add_u32 s63, s63, {20*16384}")
    A(f"v_lshrrev_b32 {x('t4')}, 2, v0\nv_and_b32 {x('t3')}, 3, v0\nv_lshlrev_b32 {x('t3')}, 4, {x('t3')}\ns_lshl_b32 s57, s{sW}, 6\nv_add_u32 {x('t3')}, s57, {x('t3')}")
    A(f"s_lshl_b32 s57, s{sM}, 8\ns_add_u32 s57, s57, s62\nv_lshl_add_u32 {x('aR')}, {x('t4')}, 14, {x('t3')}\nv_add_u32 {x('aR')}, s57, {x('aR')}")
    A(f"v_and_b32 {x('t4')}, 1, {x('t4')}\nv_lshl_add_u32 {x('t5')}, {x('t4')}, 13, {x('t3')}\nv_add_u32 {x('t5')}, s63, {x('t5')}")
    A(f"v_cmp_le_u32 vcc, 16, v0\nv_cndmask_b32 {x('aR')}, {x('aR')}, {x('t5')}, vcc")
    A(f"s_lshl_b32 s57, s68, 8\ns_sub_u32 s58, s65, s64\nv_mul_lo_u32 {x('t5')}, {x('t4')}, s58\ns_add_u32 s57, s57, s64\nv_add3_u32 {x('t5')}, {x('t5')}, s57, {x('t3')}")
    A(f"v_cmp_le_u32 vcc, 24, v0\nv_cndmask_b32 {x('aR')}, {x('aR')}, {x('t5')}, vcc")
    A(f"s_lshl_b32 s57, s68, 7\ns_add_u32 s69, s66, s57")
    A(f"s_lshl_b32 s57, s{sM}, 7\ns_add_u32 s67, s66, s57\ns_add_u32 s67, s67, 4096")
    A(f"s_sub_u32 s58, s67, s69\nv_bfe_u32 {x('t4')}, v0, 1, 1\nv_mul_lo_u32 {x('t5')}, {x('t4')}, s58\nv_and_b32 {x('t4')}, 1, v0\nv_lshl_add_u32 {x('t5')}, {x('t4')}, 4, {x('t5')}")
    A(f"s_lshl_b32 s57, s{sW}, 5\ns_add_u32 s57, s57, s69\nv_add_u32 {x('t5')}, s57, {x('t5')}")
    A(f"v_cmp_le_u32 vcc, 32, v0\nv_cndmask_b32 {x('aR')}, {x('aR')}, {x('t5')}, vcc")
    for k in range(4): A(f"v_mov_b32 {x('Neg',k)}, -1")
    A(f"s_mov_b32 exec_hi, 15\nglobal_store_dwordx4 {x('aR')}, {R('Neg')}, s[28:29] sc1\ns_mov_b32 exec_hi, -1"); vm("R1")
    A(f"s_lshl_b32 s57, s{sG}, 24\ns_lshl_b32 s58, s{sM}, 15\ns_add_u32 s57, s57, s58\ns_add_u32 s57, s57, s56\ns_add_u32 s57, s57, {61440*256}")
    A(f"v_lshrrev_b32 {x('t0')}, 5, v0\nv_xor_b32 {x('t0')}, {x('n')}, {x('t0')}\nv_lshlrev_b32 {x('t0')}, 4, {x('t0')}\nv_lshl_add_u32 {x('dK')}, {x('g')}, 8, {x('t0')}\nv_add_u32 {x('dK')}, s57, {x('dK')}")
    for q in range(8): dma("k","A",q)
    A(f"v_lshl_add_u32 {x('dV')}, {x('g')}, 8, {x('t1')}\nv_add_u32 {x('dV')}, s57, {x('dV')}")
    A(f"s_lshl_b32 s57, s{sL}, 20\ns_lshl_b32 s58, s{sI2}, 18\ns_add_u32 s57, s57, s58\ns_lshl_b32 s58, s{sW}, 16\ns_add_u32 s57, s57, s58\ns_lshl_b32 s58, s{sCB}, 8\ns_add_u32 s57, s57, s58")
    A(f"v_lshl_add_u32 {x('dO')}, {x('g')}, 11, {x('t1')}\nv_add_u32 {x('dO')}, s57, {x('dO')}")
    A(f"v_lshlrev_b32 {x('t0')}, 4, v0\ns_lshl_b32 s57, s{sW}, 11\nv_add_u32 {x('t0')}, s57, {x('t0')}")
    A(f"s_lshl_b32 s57, s{sR}, 14\ns_add_u32 s57, s57, s{sH}\ns_add_u32 s57, s57, {20*16384}\nv_add_u32 {x('aG1')}, s57, {x('t0')}")
    A(f"v_add_u32 {x('aG2')}, s64, {x('t0')}\nv_add_u32 {x('aC2')}, s65, {x('t0')}")
    A(f"s_lshl_b32 s57, s{sI2}, 14\ns_add_u32 s57, s57, s62\nv_add_u32 {x('aG3')}, s57, {x('t0')}")
    A(f"v_bfe_u32 {x('t0')}, v0, 1, 3\nv_and_b32 {x('t4')}, 1, v0\nv_lshlrev_b32 {x('t5')}, 4, {x('t4')}\nv_lshl_add_u32 {x('t0')}, {x('t0')}, 7, {x('t5')}")
    A(f"s_lshl_b32 s57, s{sW}, 10\ns_add_u32 s57, s57, s66\nv_add_u32 {x('aS2')}, s57, {x('t0')}")
    A(f"v_lshl_add_u32 {x('t4')}, {x('t4')}, 2, {x('g')}\nv_and_b32 {x('t0')}, 7, v0\nv_and_b32 {x('t5')}, 8, v0\nv_cmp_ne_u32 vcc, 0, {x('t5')}\nv_cndmask_b32 {x('t4')}, {x('t0')}, {x('t4')}, vcc")
    A(f"s_lshl_b32 s58, s{sI2}, 3\ns_add_u32 s57, s57, s58\ns_add_u32 s57, s57, 4096\nv_lshl_add_u32 {x('aS3')}, {x('t4')}, 7, s57")
    A(f"s_lshl_b32 s57, s{sL}, 5\ns_add_u32 s57, s57, s{sW}\nv_lshl_add_u32 {x('t4')}, {x('t0')}, 2, s57")
    A(f"v_lshlrev_b32 {x('t5')}, 3, {x('t0')}\ns_lshl_b32 s57, s{sW}, 6\ns_add_u32 s57, s57, s{sR}\nv_add_u32 {x('t5')}, s57, {x('t5')}")
    A(f"v_cndmask_b32 {x('t4')}, {x('t4')}, {x('t5')}, vcc\nv_lshlrev_b32 {x('t4')}, 7, {x('t4')}\nv_add_u32 {x('aF')}, {FLG}, {x('t4')}")
    A(f"s_lshl_b32 s57, s{sL}, 5\ns_add_u32 s57, s57, s{sM}\ns_lshl_b32 s57, s57, 7\ns_lshl_b32 s58, s{sW}, 4\ns_add_u32 s57, s57, s58\ns_add_u32 s57, s57, {FLG}\nv_mov_b32 {x('aFl')}, s57")
    A(f"v_bfe_u32 {x('t3')}, v0, 2, 2\nv_lshlrev_b32 {x('t3')}, 4, {x('t3')}\ns_lshl_b32 s57, s{sW}, 6\nv_add_u32 {x('t3')}, s57, {x('t3')}")
    A(f"v_and_b32 {x('t4')}, 1, {x('g')}")
    A(f"s_lshl_b32 s57, s68, 8\ns_sub_u32 s58, s65, s64\nv_mul_lo_u32 {x('t5')}, {x('t4')}, s58\ns_add_u32 s57, s57, s64\nv_add3_u32 {x('aP2')}, {x('t5')}, s57, {x('t3')}")
    A(f"v_lshl_add_u32 {x('t5')}, {x('t4')}, 13, {x('t3')}\nv_add_u32 {x('aP1')}, s63, {x('t5')}")
    A(f"s_lshl_b32 s57, s{sM}, 8\ns_add_u32 s57, s57, s62\nv_lshl_add_u32 {x('t5')}, {x('g')}, 14, {x('t3')}\nv_add_u32 {x('aP3')}, s57, {x('t5')}")
    A(f"s_lshl_b32 s57, s{sW}, 3\ns_add_u32 s58, s57, s69\nv_mov_b32 {x('aPS2')}, s58\ns_add_u32 s58, s57, s67\nv_mov_b32 {x('aPS3')}, s58")
    A(f"s_mov_b32 s{mP2}, 0x11111111\ns_mov_b32 s{mP2+1}, 0\ns_mov_b32 s{mP1}, 0x11111111\ns_mov_b32 s{mP1+1}, 0\ns_mov_b32 s{mP3}, 0x11111111\ns_mov_b32 s{mP3+1}, 0x11111111")
    A(f"s_lshl_b32 s57, s{sW}, 4\ns_lshl_b64 s[{mS3}:{mS3+1}], 1, s57")
    A(f"s_mov_b32 s{sPerm}, 0x03020302")
    A(f"s_mov_b64 s[{sCur}:{sCur+1}], s[28:29]\ns_mov_b64 s[{sPrev}:{sPrev+1}], s[28:29]\ns_mov_b32 s{sIt}, 0\ns_mov_b32 s{sTo}, 0")
    A(f"s_mul_i32 s57, s{sW}, {RS}\nv_add_u32 {x('xW')}, s57, {x('t2')}")
    A(f"v_lshlrev_b32 {x('xFr')}, 1, {x('t2')}\nv_add_u32 {x('xFr')}, {XF}, {x('xFr')}\ns_mul_i32 s57, s{sW}, {FS}\nv_add_u32 {x('xFw')}, s57, {x('xFr')}")
    A(f"v_lshlrev_b32 {x('t0')}, 4, {x('g')}")
    A(f"v_min_u32 {x('t4')}, 5, {x('n')}\nv_mul_u32_u24 {x('t4')}, {RS}, {x('t4')}\nv_add_u32 {x('rQ')}, {x('t4')}, {x('t0')}\ns_lshl_b32 s57, s{sW}, 6\nv_add_u32 {x('rG')}, s57, {x('rQ')}")
    A(f"v_and_b32 {x('t4')}, 3, {x('n')}\nv_lshrrev_b32 {x('t5')}, 2, {x('n')}")
    A(f"v_mul_u32_u24 {x('rO')}, {RS}, {x('t4')}\nv_add_u32 {x('rO')}, {x('rO')}, {x('t0')}\nv_add_u32 {x('rO')}, {XO}, {x('rO')}")
    A(f"v_mul_u32_u24 {x('t3')}, {RS}, {x('t5')}\nv_add_u32 {x('t3')}, {x('t3')}, {x('t0')}\nv_add_u32 {x('t1')}, {ZERO}, {x('t0')}")
    for X in "AB":
        A(f"v_add_u32 {x('rA'+X)}, {XC[X]}, {x('t3')}\nv_cmp_eq_u32 vcc, 1, {x('t4')}\nv_cndmask_b32 {x('rA'+X)}, {x('t1')}, {x('rA'+X)}, vcc")
        A(f"v_add_u32 {x('dT')}, {XA}, {x('t3')}\nv_cmp_eq_u32 vcc, 0, {x('t4')}\nv_cndmask_b32 {x('rA'+X)}, {x('rA'+X)}, {x('dT')}, vcc")
    A(f"v_lshl_add_u32 {x('t3')}, {x('t4')}, 2, {x('t5')}\nv_mul_u32_u24 {x('t3')}, {PS}, {x('t3')}\nv_add_u32 {x('t3')}, {x('t3')}, {x('t0')}\nv_add_u32 {x('rPl')}, {XP}, {x('t3')}")
    for s in range(4): A(f"v_cmp_eq_u32 vcc, {s}, {x('t4')}\nv_cndmask_b32 {x('rP%d'%s)}, {x('t1')}, {x('rPl')}, vcc")
    A(f"s_lshl_b32 s57, s{sW}, 2\nv_add_u32 {x('t3')}, s57, {x('g')}\nv_mul_u32_u24 {x('t3')}, {PS}, {x('t3')}\nv_lshl_add_u32 {x('t3')}, {x('n')}, 2, {x('t3')}\nv_add_u32 {x('pW')}, {XP}, {x('t3')}")
    A(f"v_add_u32 {x('mR')}, {XM}, {x('t0')}\nv_add_u32 {x('mW')}, s57, {x('mR')}")
    A(f"s_lshl_b32 s57, s{sW}, 3\ns_add_u32 s57, s57, {XR}\nv_mov_b32 {x('lW')}, s57")
    A(f"s_lshl_b32 s57, s{sW}, 2\nv_add_u32 {x('t3')}, s57, {x('t4')}\nv_lshlrev_b32 {x('t1')}, 2, {x('t5')}\nv_xor_b32 {x('t3')}, {x('t3')}, {x('t1')}\nv_lshlrev_b32 {x('t3')}, 4, {x('t3')}")
    A(f"v_lshl_add_u32 {x('t1')}, {x('g')}, 3, {x('t5')}\nv_lshl_add_u32 {x('tT')}, {x('t1')}, 8, {x('t3')}")
    A(f"v_xor_b32 {x('t3')}, {x('g')}, {x('n')}\nv_lshlrev_b32 {x('t3')}, 4, {x('t3')}\nv_lshl_add_u32 {x('t3')}, {x('n')}, 9, {x('t3')}\ns_add_u32 s57, s56, {BUFK}\nv_add_u32 {x('tK')}, s57, {x('t3')}")
    A(f"v_and_b32 {x('t3')}, 1, {x('t5')}\nv_lshlrev_b32 {x('t3')}, 4, {x('t3')}\nv_mov_b32 {x('t1')}, 0xffff\nv_lshlrev_b32 {x('t1')}, {x('t3')}, {x('t1')}")
    for e in range(4):
        A(f"v_cmp_eq_u32 vcc, {e}, {x('t4')}\nv_cndmask_b32 {x('Msk',e)}, 0, {x('t1')}, vcc\nv_mov_b32 {x('One',e)}, 0x3f803f80\nv_and_b32 {x('Sel',e)}, 0x3f803f80, {x('Msk',e)}")
    A(f"v_lshlrev_b32 {x('t3')}, 2, v0\nv_mov_b32 {x('t1')}, 0\nds_write_b32 {x('t3')}, {x('One')} offset:{ONES}\nds_write_b32 {x('t3')}, {x('t1')} offset:{ZERO}")
    if diag: A(f"v_mov_b32 {x('stamp')}, 0")
    A("s_waitcnt lgkmcnt(0)")
    A(f"s_mul_i32 s{sTag}, s{sTag}, 0x9e3779b1\ns_add_u32 s{sTag}, s{sTag}, 0x7f4a7c15")
    for k in range(4): A(f"v_mov_b32 {x('Tag',k)}, s{sTag}")
    if diag: A(f"v_writelane_b32 {x('stamp')}, s70, 0")
    stamp(1)
    waitfor("R1")
    A(f"v_lshlrev_b32 {x('D')}, 16, {x('c01')}\nv_and_b32 {x('D',1)}, 0xffff0000, {x('c01')}\nv_lshlrev_b32 {x('D',2)}, 16, {x('c01',1)}\nv_and_b32 {x('D',3)}, 0xffff0000, {x('c01',1)}")
    for k in range(4): A(f"v_mul_f32 {x('D',k)}, 0.25, {x('D',k)}".replace("0.25",hex(f2u(0.25))))
    A("s_barrier")
    A(f"s_mov_b64 exec, 1\nglobal_store_dwordx4 {x('aFl')}, {R('Tag')}, s[28:29] sc1\ns_mov_b64 exec, -1"); vm("flag")
    trreads(BUFQ,AQ["A"])
    stamp(2)
    A("s_branch L_qgo_A")
    for X in "AB":
        Y="B" if X=="A" else None
        a0=AQ[X]
        def gE1():
            A(f"global_load_dwordx4 {R('G0')}, {x('aG1')}, s[{sPrev}:{sPrev+1}] sc1\nglobal_load_dwordx4 {R('G1')}, {x('aG1')}, s[{sPrev}:{sPrev+1}] offset:1024 sc1")
        A(f"L_q_{X}:")
        if X=="B":
            A(f"s_cmp_eq_u32 s{sIt}, 0\ns_cbranch_scc0 L_qn_{X}")
            waitfor(f"qB{t1-1}"); gE1(); vm("G"); vm("G")
            for q in range(bK): dma("k","B",q)
            waitfor("qB7"); A("s_barrier"); trreads(BUFQ,a0); waitfor("G"); A(f"s_branch L_qc_{X}")
        A(f"L_qn_{X}:\ns_waitcnt vmcnt(0)\nL_qp_{X}:"); gE1(); A("s_waitcnt vmcnt(0)")
        A(f"L_qc_{X}:")
        mf(R('D'),R('Sel'),R('G0'),R('X4')); chk(q4('G0')); mf(R('D'),R('Sel'),R('G1'),R('D')); chk(q4('G1'),False)
        A(f"v_cmp_eq_u32 vcc, -1, {x('chk')}\ns_cbranch_vccnz L_qr_{X}")
        A(f"s_add_u32 s{sPrev}, s{sPrev}, {LAY}\ns_addc_u32 s{sPrev+1}, s{sPrev+1}, 0")
        if X=="B" and bK<8:
            A(f"s_cmp_eq_u32 s{sIt}, 0\ns_cbranch_scc0 L_qgo_{X}")
            for q in range(bK,8): dma("k","B",q)
        A(f"L_qgo_{X}:")
        stamp(3 if X=="A" else 10)
        A(f"v_cvt_pk_bf16_f32 {x('c01')}, {x('D')}, {x('D',1)}\nv_cvt_pk_bf16_f32 {x('c01',1)}, {x('D',2)}, {x('D',3)}")
        A(f"ds_write_b64 {x('xW')}, {R('c01',2)} offset:{XQ}\nds_write_b128 {x('xFw')}, {R('D')}")
        if X=="A": A(f"s_cmp_eq_u32 s{sIt}, 2")
        A("s_waitcnt lgkmcnt(0)\ns_barrier")
        if X=="A": A("s_cbranch_scc1 L_final")
        A(f"ds_read_b128 {R('Ag')}, {x('rG')}")
        for s in range(4): A(f"ds_read_b128 {R('A%d'%s)}, {x('rQ')} offset:{64*s}")
        A("s_waitcnt lgkmcnt(4)"); mf(R('Tg'),R('Ag'),R('Ag'),"0")
        for s in range(4):
            A(f"s_waitcnt lgkmcnt({3-s})")
            for t in range(2): mf(R('T%d'%t),R('A%d'%s),ar(a0+(t*4+s)*4,4),R('T%d'%t) if s else "0")
            if s==2:
                A(f"v_pk_add_f32 {R('st',2)}, {R('Tg',2)}, {vr(r['Tg']+2,2)}\nv_add_f32 {x('st')}, {x('st')}, {x('st',1)}")
        A(f"v_add_f32_dpp {x('st')}, {x('st')}, {x('st')} quad_perm:[1,0,3,2] {DP}")
        A(f"v_add_f32_dpp {x('st')}, {x('st')}, {x('st')} quad_perm:[2,3,0,1] {DP}")
        A(f"v_mov_b32_dpp {x('st',1)}, {x('st')} row_shl:4 {DP}")
        A(f"s_mov_b64 exec, 1\nglobal_store_dwordx2 {x('aPS2')}, {R('st',2)}, s[{sCur}:{sCur+1}] sc1\ns_mov_b64 exec, -1"); vm("P")
        A(f"v_pk_add_f32 {R('tA',2)}, {R('T0',2)}, {vr(r['T0']+2,2)}\nv_pk_add_f32 {R('tB',2)}, {R('T1',2)}, {vr(r['T1']+2,2)}")
        A(f"v_add_f32 {x('tA')}, {x('tA')}, {x('tA',1)}\nv_add_f32 {x('tB')}, {x('tB')}, {x('tB',1)}")
        pack_store(mP2,"aP2",sCur); vm("P")
        stamp(4 if X=="A" else 11)
        for k in range(4): A(f"ds_read_b128 {R('F%d'%k)}, {x('xFr')} offset:{k*FS}")
        A("s_waitcnt lgkmcnt(0)")
        for h in (0,2):
            A(f"v_pk_add_f32 {vr(r['F0']+h,2)}, {vr(r['F0']+h,2)}, {vr(r['F1']+h,2)}\nv_pk_add_f32 {vr(r['F2']+h,2)}, {vr(r['F2']+h,2)}, {vr(r['F3']+h,2)}\nv_pk_add_f32 {vr(r['F0']+h,2)}, {vr(r['F0']+h,2)}, {vr(r['F2']+h,2)}")
        A(f"v_cvt_pk_bf16_f32 {x('c01')}, {x('F0')}, {x('F0',1)}\nv_cvt_pk_bf16_f32 {x('c01',1)}, {x('F0',2)}, {x('F0',3)}")
        A(f"v_lshlrev_b32 {x('X4')}, 16, {x('c01')}\nv_and_b32 {x('X4',1)}, 0xffff0000, {x('c01')}\nv_lshlrev_b32 {x('X4',2)}, 16, {x('c01',1)}\nv_and_b32 {x('X4',3)}, 0xffff0000, {x('c01',1)}")
        for k in range(4): A(f"v_mul_f32 {x('X4',k)}, {hex(f2u(0.25))}, {x('X4',k)}")
        def gE2():
            A(f"global_load_dwordx4 {R('G0')}, {x('aG2')}, s[{sCur}:{sCur+1}] sc1\nglobal_load_dwordx4 {R('G1')}, {x('aG2')}, s[{sCur}:{sCur+1}] offset:1024 sc1")
            A(f"global_load_dwordx4 {R('S')}, {x('aS2')}, s[{sCur}:{sCur+1}] sc1")
        def gC():
            A(f"global_load_dwordx4 {R('C0')}, {x('aC2')}, s[{sCur}:{sCur+1}] sc1\nglobal_load_dwordx4 {R('C1')}, {x('aC2')}, s[{sCur}:{sCur+1}] offset:1024 sc1")
        A(f"s_cmp_eq_u32 s{sIt}, 0\ns_cbranch_scc0 L_an_{X}")
        if X=="A":
            A("s_mov_b32 exec_hi, 15")
            for k in (1,2,3):
                A(f"v_add_u32 {x('dT')}, {k*LAY}, {x('aR')}\nglobal_store_dwordx4 {x('dT')}, {R('Neg')}, s[28:29] sc1"); vm("R2")
            A("s_mov_b32 exec_hi, -1")
            A(f"global_load_dword {x('t0')}, {x('aF')}, s[28:29] sc1"); vm("F")
        for q in range(8): dma("v",X,q)
        if X=="A":
            waitfor("F")
            A(f"L_fc:\nv_cmp_ne_u32 vcc, s{sTag}, {x('t0')}\ns_cbranch_vccz L_fok")
            A(f"s_sleep {slp}\ns_add_u32 s{sTo}, s{sTo}, 1\ns_cmp_lt_u32 s{sTo}, {TMO}\ns_cbranch_scc0 L_fail")
            A(f"global_load_dword {x('t0')}, {x('aF')}, s[28:29] sc1\ns_waitcnt vmcnt(0)\ns_branch L_fc\nL_fok:")
        else: waitfor("kB7")
        gE2(); gC()
        for k in range(5): vm("G")
        for q in range(bWo): dma("o",X,q)
        kreads(a0+32)
        waitfor("G"); A(f"s_branch L_ac0_{X}")
        A(f"L_ap0_{X}:"); gE2(); gC(); A("s_waitcnt vmcnt(0)")
        A(f"L_ac0_{X}:")
        mf(R('D'),R('Sel'),R('C0'),"0"); chk(q4('C0')); mf(R('D'),R('Sel'),R('C1'),R('D')); chk(list(q4('C1'))+list(q4('G0'))+list(q4('G1'))+list(q4('S')),False)
        A(f"v_cmp_eq_u32 vcc, -1, {x('chk')}\ns_cbranch_vccnz L_ar0_{X}")
        for q in range(bWo,8): dma("o",X,q)
        A(f"v_cvt_pk_bf16_f32 {x('c01')}, {x('D')}, {x('D',1)}\nv_cvt_pk_bf16_f32 {x('c01',1)}, {x('D',2)}, {x('D',3)}")
        A(f"ds_write_b64 {x('xW')}, {R('c01',2)} offset:{XC[X]}\ns_branch L_ac_{X}")
        retry(f"L_ar0_{X}",f"L_ap0_{X}")
        A(f"L_an_{X}:\ns_waitcnt vmcnt(0)\nL_ap_{X}:"); gE2(); A("s_waitcnt vmcnt(0)")
        A(f"L_ac_{X}:")
        mf(R('D'),R('Sel'),R('G0'),"0"); chk(q4('G0')); mf(R('D'),R('Sel'),R('G1'),R('D')); chk(list(q4('G1'))+list(q4('S')),False)
        A(f"v_cmp_eq_u32 vcc, -1, {x('chk')}\ns_cbranch_vccnz L_ar_{X}")
        stamp(5 if X=="A" else 12)
        A(f"v_pk_add_f32 {R('st',2)}, {R('S',2)}, {vr(r['S']+2,2)}")
        A(f"v_cvt_pk_bf16_f32 {x('c01')}, {x('D')}, {x('D',1)}\nv_cvt_pk_bf16_f32 {x('c01',1)}, {x('D',2)}, {x('D',3)}")
        A(f"ds_write_b64 {x('xW')}, {R('c01',2)} offset:{XA}")
        A(f"s_cmp_eq_u32 s{sIt}, 0\ns_waitcnt lgkmcnt(0)\ns_barrier")
        for s in range(4): A(f"ds_read_b128 {R('A%d'%s)}, {x('rA'+X)} offset:{64*s}")
        A(f"s_cbranch_scc0 L_av_{X}"); trreads(BUFV,a0+64); A(f"s_waitcnt lgkmcnt(0)\nL_av_{X}:")
        for k in (1,2,4,8):
            A(f"v_add_f32_dpp {x('st',1)}, {x('st',1)}, {x('st',1)} row_ror:{k} {DP}\nv_add_f32_dpp {x('st')}, {x('st')}, {x('st')} row_ror:{k} {DP}")
        ex=[f"v_mul_f32 {x('ab',1)}, {hex(f2u(-1/1024))}, {x('st',1)}",
            f"v_mul_f32 {x('t0')}, {x('ab',1)}, {x('ab',1)}",
            f"v_mul_f32 {x('t1')}, {hex(f2u(1/1024))}, {x('st')}",
            f"v_sub_f32 {x('t1')}, {x('t1')}, {x('t0')}",
            f"v_max_f32 {x('t1')}, 0, {x('t1')}",
            f"v_add_f32 {x('t1')}, {hex(f2u(1e-5))}, {x('t1')}",
            f"v_rsq_f32 {x('t1')}, {x('t1')}",
            f"v_mul_f32 {x('ab')}, {hex(f2u(128**-0.5*1.4426950408889634))}, {x('t1')}"]
        for s in range(4):
            A(f"s_waitcnt lgkmcnt({3-s})")
            for t in range(2):
                mf(R('T%d'%t),R('A%d'%s),ar(a0+32+(t*4+s)*4,4),R('T%d'%t) if s else "0"); A(ex[2*s+t])
        A(f"v_fma_f32 {x('tA')}, {x('T0',1)}, {x('ab',1)}, {x('T0')}\nv_fma_f32 {x('tB')}, {x('T1',1)}, {x('ab',1)}, {x('T1')}")
        A(f"v_max_f32 {x('t0')}, {x('tA')}, {x('tB')}")
        for k in (1,2,4,8): A(f"v_max_f32_dpp {x('t0')}, {x('t0')}, {x('t0')} row_ror:{k} {DP}")
        A(f"v_mul_f32 {x('t0')}, {x('t0')}, {x('ab')}\nv_ceil_f32 {x('t0')}, {x('t0')}")
        A(f"v_fma_f32 {x('tA')}, {x('tA')}, {x('ab')}, -{x('t0')}\nv_fma_f32 {x('tB')}, {x('tB')}, {x('ab')}, -{x('t0')}")
        A(f"v_exp_f32 {x('tA')}, {x('tA')}\nv_exp_f32 {x('tB')}, {x('tB')}\nds_write_b32 {x('mW')}, {x('t0')}")
        A(f"v_cvt_pk_bf16_f32 {x('t1')}, {x('tA')}, {x('tB')}\nds_write_b32 {x('pW')}, {x('t1')}")
        A("s_waitcnt lgkmcnt(0)\ns_barrier")
        A(f"ds_read_b128 {R('W4')}, {x('mR')}\nds_read_b128 {R('Ag')}, {x('rPl')}")
        for s in range(4): A(f"ds_read_b128 {R('A%d'%s)}, {x('rP%d'%s)}")
        A("s_waitcnt lgkmcnt(4)"); mf(R('Tg'),R('Ag'),R('One'),"0")
        A(f"v_max3_f32 {x('st')}, {x('W4')}, {x('W4',1)}, {x('W4',2)}\nv_max_f32 {x('st')}, {x('st')}, {x('W4',3)}")
        for s in range(4):
            A(f"s_waitcnt lgkmcnt({3-s})")
            mf(R('T0'),R('A%d'%s),ar(a0+64+s*4,4),R('T0') if s else "0"); A(f"v_sub_f32 {x('W4',s)}, {x('W4',s)}, {x('st')}")
            mf(R('T1'),R('A%d'%s),ar(a0+64+(4+s)*4,4),R('T1') if s else "0"); A(f"v_exp_f32 {x('W4',s)}, {x('W4',s)}")
        def comb(dst,T):
            A(f"v_pk_mul_f32 {R(dst,2)}, {R(T,2)}, {R('W4',2)}\nv_pk_fma_f32 {R(dst,2)}, {vr(r[T]+2,2)}, {vr(r['W4']+2,2)}, {R(dst,2)}")
        comb('ab','Tg'); A(f"v_add_f32 {x('st',1)}, {x('ab')}, {x('ab',1)}")
        A(f"s_mov_b64 exec, s[{mS3}:{mS3+1}]\nglobal_store_dwordx2 {x('aPS3')}, {R('st',2)}, s[{sCur}:{sCur+1}] sc1\ns_mov_b64 exec, -1"); vm("P")
        comb('tA','T0'); comb('tB','T1')
        A(f"v_add_f32 {x('tA')}, {x('tA')}, {x('tA',1)}\nv_add_f32 {x('tB')}, {x('tB')}, {x('tB',1)}")
        pack_store(mP3,"aP3",sCur); vm("P")
        stamp(6 if X=="A" else 13)
        def gE3():
            A(f"global_load_dwordx2 {R('S',2)}, {x('aS3')}, s[{sCur}:{sCur+1}] sc1")
            A(f"global_load_dwordx4 {R('G0')}, {x('aG3')}, s[{sCur}:{sCur+1}] sc1\nglobal_load_dwordx4 {R('G1')}, {x('aG3')}, s[{sCur}:{sCur+1}] offset:1024 sc1")
        A(f"s_cmp_eq_u32 s{sIt}, 0\ns_cbranch_scc0 L_on_{X}")
        waitfor(f"o{X}{t3-1}"); gE3(); vm("G"); vm("G"); vm("G")
        if Y:
            for q in range(bWq): dma("q",Y,q)
        waitfor(f"o{X}7"); A("s_barrier"); trreads(BUFO,a0+96); waitfor("G"); A(f"s_branch L_oc_{X}")
        A(f"L_on_{X}:\ns_waitcnt vmcnt(0)\nL_op_{X}:"); gE3(); A("s_waitcnt vmcnt(0)")
        A(f"L_oc_{X}:")
        A(f"v_max_f32_dpp {x('st')}, {x('S')}, {x('S')} quad_perm:[1,0,3,2] {DP}")
        chk([r['S'],r['S']+1]+list(q4('G0')))
        A(f"v_max_f32_dpp {x('st')}, {x('st')}, {x('st')} quad_perm:[2,3,0,1] {DP}")
        chk(q4('G1'),False)
        A(f"v_max_f32_dpp {x('st')}, {x('st')}, {x('st')} row_half_mirror {DP}")
        A(f"v_cmp_eq_u32 vcc, -1, {x('chk')}\ns_cbranch_vccnz L_or_{X}")
        A(f"v_subrev_f32_dpp {x('t0')}, {x('st')}, {x('S')} row_newbcast:0 {DP}")
        A(f"v_exp_f32 {x('t0')}, {x('t0')}")
        if Y and bWq<8:
            A(f"s_cmp_eq_u32 s{sIt}, 0\ns_cbranch_scc0 L_og_{X}")
            for q in range(bWq,8): dma("q",Y,q)
            A(f"L_og_{X}:")
        stamp(7 if X=="A" else 14)
        A(f"v_perm_b32 {x('t1')}, {x('t0')}, {x('t0')}, s{sPerm}\nv_mul_f32 {x('st',1)}, {x('t0')}, {x('S',1)}")
        for e in range(4): A(f"v_and_b32_dpp {x('A0',e)}, {x('t1')}, {x('Msk',e)} row_newbcast:8 {DP}")
        A(f"v_add_f32_dpp {x('st',1)}, {x('st',1)}, {x('st',1)} quad_perm:[1,0,3,2] {DP}")
        mf(R('D'),R('A0'),R('G0'),"0")
        for e in range(4): A(f"v_and_b32_dpp {x('A1',e)}, {x('t1')}, {x('Msk',e)} row_newbcast:9 {DP}")
        A(f"v_add_f32_dpp {x('st',1)}, {x('st',1)}, {x('st',1)} quad_perm:[2,3,0,1] {DP}")
        mf(R('D'),R('A1'),R('G1'),R('D'))
        A(f"v_add_f32_dpp {x('st',1)}, {x('st',1)}, {x('st',1)} row_half_mirror {DP}")
        A(f"s_mov_b64 exec, 1\nds_write_b64 {x('lW')}, {R('st',2)}\ns_mov_b64 exec, -1")
        A(f"v_cvt_pk_bf16_f32 {x('c01')}, {x('D')}, {x('D',1)}\nv_cvt_pk_bf16_f32 {x('c01',1)}, {x('D',2)}, {x('D',3)}")
        A(f"ds_write_b64 {x('xW')}, {R('c01',2)} offset:{XO}")
        A("s_waitcnt lgkmcnt(0)\ns_barrier")
        A(f"v_mov_b32 {x('t0')}, {XR}\nds_read_b128 {R('F0')}, {x('t0')}\nds_read_b128 {R('F1')}, {x('t0')} offset:16")
        for s in range(4): A(f"ds_read_b128 {R('A%d'%s)}, {x('rO')} offset:{64*s}")
        Ms=[x('F0'),x('F0',2),x('F1'),x('F1',2)]; Ls=[x('F0',1),x('F0',3),x('F1',1),x('F1',3)]
        ex=[f"v_max3_f32 {x('t0')}, {Ms[0]}, {Ms[1]}, {Ms[2]}\nv_max_f32 {x('t0')}, {x('t0')}, {Ms[3]}",
            f"v_sub_f32 {x('W4')}, {Ms[0]}, {x('t0')}\nv_sub_f32 {x('W4',1)}, {Ms[1]}, {x('t0')}\nv_exp_f32 {x('W4')}, {x('W4')}",
            f"v_sub_f32 {x('W4',2)}, {Ms[2]}, {x('t0')}\nv_exp_f32 {x('W4',1)}, {x('W4',1)}",
            f"v_sub_f32 {x('W4',3)}, {Ms[3]}, {x('t0')}\nv_exp_f32 {x('W4',2)}, {x('W4',2)}",
            f"v_mul_f32 {x('t1')}, {x('W4')}, {Ls[0]}\nv_exp_f32 {x('W4',3)}, {x('W4',3)}",
            f"v_fma_f32 {x('t1')}, {x('W4',1)}, {Ls[1]}, {x('t1')}\nv_fma_f32 {x('t1')}, {x('W4',2)}, {Ls[2]}, {x('t1')}",
            f"v_fma_f32 {x('t1')}, {x('W4',3)}, {Ls[3]}, {x('t1')}\nv_rcp_f32 {x('t1')}, {x('t1')}",
            f"v_mul_f32 {x('W4')}, {x('W4')}, {x('t1')}\nv_mul_f32 {x('W4',1)}, {x('W4',1)}, {x('t1')}\nv_mul_f32 {x('W4',2)}, {x('W4',2)}, {x('t1')}\nv_mul_f32 {x('W4',3)}, {x('W4',3)}, {x('t1')}"]
        for s in range(4):
            A(f"s_waitcnt lgkmcnt({3-s})")
            for t in range(2):
                mf(R('T%d'%t),R('A%d'%s),ar(a0+96+(t*4+s)*4,4),R('T%d'%t) if s else "0"); A(ex[2*s+t])
        comb('tA','T0'); comb('tB','T1')
        A(f"v_add_f32 {x('tA')}, {x('tA')}, {x('tA',1)}\nv_add_f32 {x('tB')}, {x('tB')}, {x('tB',1)}")
        pack_store(mP1,"aP1",sCur); vm("P")
        A(f"s_add_u32 s{sCur}, s{sCur}, {LAY}\ns_addc_u32 s{sCur+1}, s{sCur+1}, 0")
        stamp(8 if X=="A" else 15)
        if X=="A": A("s_branch L_q_B")
        else:
            A(f"s_mov_b32 s{mP2}, 0x1111\ns_add_u32 s{sIt}, s{sIt}, 1\ns_cmp_lt_u32 s{sIt}, 2\ns_cbranch_scc1 L_q_A")
            A(f"s_lshl_b32 s57, s{sL}, 2\ns_cmp_eq_u32 s57, s{sM}\ns_cbranch_scc1 L_q_A\ns_branch L_fail")
        retry(f"L_qr_{X}",f"L_qp_{X}"); retry(f"L_ar_{X}",f"L_ap_{X}"); retry(f"L_or_{X}",f"L_op_{X}")
    A("L_final:")
    for k in range(4): A(f"ds_read_b128 {R('F%d'%k)}, {x('xFr')} offset:{k*FS}")
    A(f"s_lshl_b32 s57, s{sR}, 8\nv_add_u32 {x('t3')}, s57, {x('t2')}\ns_cmp_eq_u32 s{sW}, 0\ns_cbranch_scc0 L_fail")
    A("s_waitcnt lgkmcnt(0)")
    for h in (0,2):
        A(f"v_pk_add_f32 {vr(r['F0']+h,2)}, {vr(r['F0']+h,2)}, {vr(r['F1']+h,2)}\nv_pk_add_f32 {vr(r['F2']+h,2)}, {vr(r['F2']+h,2)}, {vr(r['F3']+h,2)}\nv_pk_add_f32 {vr(r['F0']+h,2)}, {vr(r['F0']+h,2)}, {vr(r['F2']+h,2)}")
    A(f"v_cvt_pk_bf16_f32 {x('c01')}, {x('F0')}, {x('F0',1)}\nv_cvt_pk_bf16_f32 {x('c01',1)}, {x('F0',2)}, {x('F0',3)}")
    A(f"s_mov_b32 exec_hi, 0\nglobal_store_dwordx2 {x('t3')}, {R('c01',2)}, s[24:25]")
    A(f"s_cmp_eq_u32 s{sL}, 0\ns_cbranch_scc0 L_fail")
    A(f"s_mov_b64 exec, 1\nv_mov_b32 {x('t3')}, {NONCE}\nglobal_store_dword {x('t3')}, {x('Tag')}, s[28:29] sc1")
    A("L_fail:")
    if diag:
        A("s_mov_b64 exec, -1"); stamp(9)
        A(f"v_writelane_b32 {x('stamp')}, s{sTo}, 63")
        A(f"s_lshl_b32 s57, s2, 10\ns_lshl_b32 s58, s{sW}, 8\ns_add_u32 s57, s57, s58\ns_add_u32 s57, s57, {DIAG}\nv_lshl_add_u32 {x('t0')}, v0, 2, s57\nglobal_store_dword {x('t0')}, {x('stamp')}, s[28:29]")
    A("L_end:\ns_endpgm")
    assert V.n<=256
    A(f'.section .rodata,"a"\n.p2align 6\n.amdhsa_kernel {name}_kernel\n  .amdhsa_next_free_vgpr 512\n  .amdhsa_next_free_sgpr 102\n  .amdhsa_accum_offset 256\n  .amdhsa_group_segment_fixed_size 0\n  .amdhsa_kernarg_size 104\n  .amdhsa_user_sgpr_count 2\n  .amdhsa_user_sgpr_kernarg_segment_ptr 1\n  .amdhsa_system_sgpr_workgroup_id_x 1\n.end_amdhsa_kernel')
    out,n=fix(L,verbose=("-v" in sys.argv))
    return "\n".join(out)+"\n"
if __name__=="__main__":
    kw={}
    for a in sys.argv[2:]:
        if "=" in a: k,val=a.split("="); kw[k]=int(val)
    open(sys.argv[1],"w").write(gen(**kw))
```

```python
import sys, math, struct
from hz import fix
NAME="interleave_layers__sliding_block_cached__sliding_block_cached__decode"
HDR=open("cdna_kernels/%s.s.ref"%NAME).read().split("; Override launch")[0]
def f2u(x): return struct.unpack("<I",struct.pack("<f",x))[0]
RS=288
XQ=0; ONES=4*RS; ZERO=5*RS
XA=6*RS; XC={"A":10*RS+32,"B":14*RS+32+128}; XO=19*RS; XP=23*RS; PS=96
XM=XP+16*PS; XR=XM+64; XF=XR+32; FS=528
BS=0x8000+128
BUFK=0x2c00; BUFQ=BUFK+0x8000; BUFV=BUFQ+BS; BUFO=BUFV+BS; LDSSZ=BUFO+BS
assert XF+4*FS<=BUFK and BUFK%256==0 and XF%16==0 and XC["B"]+4*RS<=XO+32
LAY=1<<20; FLG=4<<20; NONCE=FLG+0x10000; DIAG=6<<20
P3,P2,P1,PS_,PC=0,32,40,48,56
class Regs:
    def __init__(s,n0): s.n=n0; s.d={}
    def __call__(s,name,k=1,al=1):
        s.n=(s.n+al-1)//al*al; s.d[name]=s.n; s.n+=k; return s.d[name]
ORDER=[(k,X,q) for X in "AB" for k in "qkvo" for q in range(8)]
DEF=dict(diag=0, TMO=30000, slp=2, pol=0, pad=1, pf=1,
         n0=16, n1=24, fpos=16,
         pre=(24,32,40,56,64), post=(32,40,56,64,64), ok=(32,40,56,64,64), gw=(-1,-1,-1,-1,-1), gs=(4,4,4,4,4),
         d1=-1, d2=-1, d3=-1, fe=0, nor2=0, rs=1, tp=0, vt=0, vtp=0)
def gen(name=NAME, **kw):
    o=dict(DEF); o.update(kw); diag=o["diag"]; TMO=o["TMO"]; slp=o["slp"]; pad=o["pad"]
    L=[]; OOL=[]; cur=[L]
    def A(t):
        for x in t.split("\n"): cur[0].append(x)
    V=Regs(1)
    v=lambda i:f"v{i}"
    vr=lambda i,k:f"v[{i}:{i+k-1}]"
    ar=lambda i,k:f"a[{i}:{i+k-1}]"
    for n in "Sel Msk One X4 G0 G1 S C0 C1 D T0 T1 Tg Ag A0 A1 A2 A3 P W4 F0 F1 F2 F3 Neg".split(): V(n,4,4)
    for n in "c01 st ab tA tB pa".split(): V(n,2,2)
    for n in ("aG1 aG2 aS2 aC2 aG3 aS3 aP2 aPS2 aP3 aPS3 aP1 aR aF aFl dQ dK dV dO dT xW xFw xFr rQ rG rAA rAB rP0 rP1 rP2 rP3 rPl pW mW mR rO lW lR "
              "tT tK tid n g t0 t1 t2 t3 t4 t5 chk fl stamp").split(): V(n)
    r=V.d
    R=lambda n,k=4:vr(r[n],k)
    x=lambda n,o=0:v(r[n]+o)
    AQ={"A":0,"B":128}
    PTR={"A":dict(k=6,v=8,q=10,o=12),"B":dict(k=16,v=18,q=20,o=22)}
    BUF={"q":BUFQ,"k":BUFK,"v":BUFV,"o":BUFO}
    sW,sL,sM,sR,sI,sI2,sCB,sG=30,31,32,33,34,35,36,37
    sCur,sGc,sIt,sTo,sTag,sRt=38,40,42,43,44,45
    mP2,mP1,mP3,mS3=46,48,50,52
    sPerm,sWk,sWo,sGp=54,55,56,70
    Q=[]
    def vm(tag): Q.append(tag)
    def waitfor(tag):
        idx=max(i for i,t in enumerate(Q) if t==tag); n=len(Q)-1-idx; assert n<64
        A(f"s_waitcnt vmcnt({n})")
    def stamp(k):
        if diag: A(f"s_memrealtime s[{76+2*k}:{77+2*k}]")
    def flush(X,ks):
        if not diag: return
        A(f"s_mul_i32 s62, s{sIt}, 28\ns_waitcnt lgkmcnt(0)")
        b=4+(14 if X=="B" else 0)
        for k in ks: A(f"s_add_u32 m0, s62, {b+k}\nv_writelane_b32 {x('stamp')}, s{76+2*k}, m0")
        A(f"s_add_u32 m0, s62, {b+13}\nv_writelane_b32 {x('stamp')}, s{sRt}, m0\ns_mov_b32 s{sRt}, 0")
    PADQ=lambda q:(8*(q>>1) if pad else 0)
    ns=[0]; freeblk={}; moved=set(); blk=[-1]
    def dma(kind,X,q):
        p=PTR[X][kind]; buf=BUF[kind]
        if X=="B": assert kind in freeblk and freeblk[kind]<=blk[0], ("buffer busy",kind,blk[0])
        if kind in "qo":
            step=32768 if kind=="q" else 8192
            A(f"s_add_u32 m0, s{sWo}, {buf+q*1024+PADQ(q)}")
            src=x("dQ" if kind=="q" else "dO")
            if q: A(f"v_add_u32 {x('dT')}, {q*step}, {src}"); src=x("dT")
            A(f"global_load_lds_dwordx4 {src}, s[{p}:{p+1}] nt")
        else:
            hi=q//4
            if kind=="v":
                if q%2==0 or not pad: A(f"s_add_u32 m0, s{sWo}, {buf+hi*4096+PADQ(q)}")
            elif q%4==0: A(f"s_add_u32 m0, s{sWk}, {buf+hi*4096}")
            src=x("dK" if kind=="k" else "dV")
            if kind=="k" and q: A(f"v_xor_b32 {x('dT')}, {q*32}, {src}"); src=x("dT")
            if hi: A(f"v_add_u32 {x('dT')}, 4096, {src}"); src=x("dT")
            A(f"global_load_lds_dwordx4 {src}, s[{p}:{p+1}] offset:{(q%4)*1024} nt")
        vm(f"{kind}{X}{q}")
    def stream(n):
        first=True
        while ns[0]<n:
            k,X,q=ORDER[ns[0]]
            if first and k in "kv" and q%4:
                A(f"s_add_u32 m0, s{sWo if k=='v' else sWk}, {BUF[k]+(q//4)*4096+(PADQ(q) if k=='v' else 0)}")
            dma(k,X,q); ns[0]+=1; first=False
    def trreads(buf,abase):
        A(f"v_add_u32 {x('dT')}, {buf}, {x('tT')}")
        ws=8192+(32 if pad else 0)
        for s in range(4):
            for t in range(2):
                for u in range(2):
                    A(f"ds_read_b64_tr_b16 {ar(abase+(t*4+s)*4+2*u,2)}, {x('dT')} offset:{s*ws+u*1024+8*t}")
    def kreads(abase):
        for s in range(4):
            A(f"v_xor_b32 {x('dT')}, {64*s}, {x('tK')}")
            for t in range(2): A(f"ds_read_b128 {ar(abase+(t*4+s)*4,4)}, {x('dT')} offset:{256*t}")
    def move(groups):
        tr=[g for g in groups if g[0]!="k"]
        for k,X in groups:
            if k=="k": waitfor(f"k{X}7"); kreads(AQ[X]+32)
        if tr:
            k,X=tr[-1]; waitfor(f"{k}{X}7"); A("s_barrier")
            for k,X in tr: trreads(BUF[k],AQ[X]+{"q":0,"v":64,"o":96}[k])
        for k,X in groups: moved.add((k,X)); freeblk[k]=blk[0]+1
    def mf(d,a,b,c): A(f"v_mfma_f32_16x16x32_bf16 {d}, {a}, {b}, {c}")
    def chk(rs,first=True):
        rs=list(rs); c=x("chk")
        if first:
            A(f"v_max3_u32 {c}, v{rs[0]}, v{rs[1]}, v{rs[2]}"); rs=rs[3:]
        while len(rs)>=2: A(f"v_max3_u32 {c}, {c}, v{rs[0]}, v{rs[1]}"); rs=rs[2:]
        if rs: A(f"v_max_u32 {c}, {c}, v{rs[0]}")
    q4=lambda n:list(range(r[n],r[n]+4))
    def retry(lab,back,e):
        A(f"{lab}:\ns_sleep {slp}\ns_add_u32 s{sTo}, s{sTo}, 1")
        if diag: A(f"s_add_u32 s{sRt}, s{sRt}, {1<<(8*e)}")
        A(f"s_cmp_lt_u32 s{sTo}, {TMO}\ns_cbranch_scc1 {back}\ns_branch L_fail")
    DP="row_mask:0xf bank_mask:0xf"
    def pack_store(mask,addr,base,four):
        if four:
            A(f"v_cvt_pk_bf16_f32 {x('t0')}, {x('tA')}, {x('tB')}")
            for k in (0,1,2,3): A(f"v_mov_b32_dpp {x('P',k)}, {x('t0')} quad_perm:[{k},{k},{k},{k}] {DP}")
        else:
            A(f"v_cvt_pk_bf16_f32 {x('P')}, {x('tA')}, {x('tB')}")
            for k in (1,2,3): A(f"v_mov_b32_dpp {x('P',k)}, {x('P')} quad_perm:[{k},{k},{k},{k}] {DP}")
        A(f"s_mov_b64 exec, s[{mask}:{mask+1}]\nglobal_store_dwordx4 {x(addr)}, {R('P')}, s[{base}:{base+1}] sc1\ns_mov_b64 exec, -1")
    def delay(d):
        if d<0: A("s_waitcnt vmcnt(0)")
        elif d>0: A(f"s_sleep {d}")
    A(HDR.rstrip("\n"))
    A(f"; @launch grid=(256,1,1) block=(256,1,1) lds={LDSSZ}")
    A(f'.amdgcn_target "amdgcn-amd-amdhsa--gfx950"\n.text\n.globl {name}_kernel\n.p2align 8\n.type {name}_kernel,@function\n{name}_kernel:')
    A("s_cmp_ge_u32 s2, 256\ns_cbranch_scc1 L_end")
    A("s_load_dwordx16 s[4:19], s[0:1], 0\ns_load_dwordx8 s[20:27], s[0:1], 64\ns_load_dwordx2 s[28:29], s[0:1], 96")
    if o["pf"]:
        A(f"s_getpc_b64 s[58:59]\nL_pc:\nv_lshlrev_b32 {x('t0')}, 6, v0\nv_min_u32 {x('t0')}, L_end-L_pc, {x('t0')}")
        A(f"v_add_co_u32 {x('pa')}, vcc, s58, {x('t0')}\nv_mov_b32 {x('t0')}, s59\nv_addc_co_u32 {x('pa',1)}, vcc, 0, {x('t0')}, vcc")
        A(f"global_load_dword {x('chk')}, {R('pa',2)}, off"); vm("pf")
    if diag: A("s_memrealtime s[72:73]\ns_memtime s[74:75]")
    A(f"v_lshrrev_b32 {x('t0')}, 6, v0\nv_mov_b32 {x('tid')}, v0\nv_and_b32 v0, 63, v0\nv_and_b32 {x('n')}, 15, v0\nv_readfirstlane_b32 s{sW}, {x('t0')}")
    A(f"s_bfe_u32 s{sG}, s2, 0x20001\ns_bfe_u32 s57, s2, 0x10003\ns_lshl_b32 s{sL}, s{sG}, 1\ns_or_b32 s{sL}, s{sL}, s57")
    A(f"s_and_b32 s57, s2, 1\ns_lshl_b32 s57, s57, 4\ns_lshr_b32 s{sM}, s2, 4\ns_or_b32 s{sM}, s{sM}, s57")
    A(f"s_lshr_b32 s{sR}, s{sM}, 2\ns_and_b32 s{sI}, s{sM}, 3\ns_lshr_b32 s{sI2}, s{sM}, 3\ns_and_b32 s{sCB}, s{sM}, 7")
    A(f"v_lshrrev_b32 {x('g')}, 4, v0")
    A(f"v_lshlrev_b32 {x('t0')}, 2, {x('g')}\nv_xor_b32 {x('t0')}, {x('n')}, {x('t0')}\nv_lshlrev_b32 {x('t1')}, 4, {x('t0')}")
    A(f"s_lshl_b32 s57, s{sR}, 20\ns_lshl_b32 s58, s{sW}, 18\ns_add_u32 s57, s57, s58\ns_lshl_b32 s58, s{sL}, 10\ns_add_u32 s57, s57, s58\ns_lshl_b32 s58, s{sI}, 8\ns_add_u32 s57, s57, s58")
    A(f"v_lshl_add_u32 {x('dQ')}, {x('g')}, 13, {x('t1')}\nv_add_u32 {x('dQ')}, s57, {x('dQ')}")
    A(f"s_mul_i32 s{sWo}, s{sW}, {8192+(32 if pad else 0)}\ns_lshl_b32 s{sWk}, s{sW}, 13")
    A(f"s_lshl_b32 s62, s{sL}, 16\ns_lshl_b32 s57, s{sM}, 8\ns_add_u32 s62, s62, s57")
    A(f"s_lshl_b32 s63, s{sL}, 2\ns_add_u32 s63, s63, s{sI2}\ns_lshl_b32 s63, s63, 8\ns_lshl_b32 s57, s{sCB}, 14\ns_add_u32 s63, s63, s57\ns_add_u32 s63, s63, {P1*16384}")
    A(f"s_lshl_b32 s57, s{sL}, 14\ns_add_u32 s64, s57, {P2*16384}\ns_add_u32 s66, s57, {PS_*16384}")
    A(f"s_lshl_b32 s68, s{sI}, 3\ns_add_u32 s68, s68, s{sR}\ns_lshl_b32 s69, s68, 7\ns_lshl_b32 s68, s68, 8\ns_add_u32 s65, s68, s64\ns_add_u32 s69, s69, s66")
    A(f"s_lshl_b32 s67, s{sM}, 7\ns_add_u32 s67, s67, s66\ns_add_u32 s67, s67, 4096")
    A(f"s_lshl_b32 s57, s{sW}, 13\ns_add_u32 s57, s57, s62\ns_add_u32 s58, s65, {(PC-P2)*16384}\ns_add_u32 s59, s63, 8192\ns_add_u32 s60, s65, 8192")
    A(f"s_cmp_eq_u32 s{sW}, 2\ns_cselect_b32 s61, s63, s58\ns_cselect_b32 s59, s59, s69\ns_cselect_b32 s71, s65, s67\ns_cselect_b32 s60, s60, s58\ns_cselect_b32 s58, 0, {8192-128}")
    A(f"v_lshlrev_b32 {x('t3')}, 4, {x('n')}\nv_lshrrev_b32 {x('t4')}, 3, {x('n')}\nv_mul_lo_u32 {x('t4')}, {x('t4')}, s58\nv_add_u32 {x('t4')}, {x('t4')}, {x('t3')}")
    A(f"v_add_u32 {x('aR')}, s61, {x('t3')}\nv_add_u32 {x('t0')}, s59, {x('t4')}\nv_cmp_le_u32 vcc, 16, v0\nv_cndmask_b32 {x('aR')}, {x('aR')}, {x('t0')}, vcc")
    A(f"v_add_u32 {x('t0')}, s71, {x('t4')}\nv_cmp_le_u32 vcc, 32, v0\nv_cndmask_b32 {x('aR')}, {x('aR')}, {x('t0')}, vcc")
    A(f"v_add_u32 {x('t0')}, s60, {x('t3')}\nv_cmp_le_u32 vcc, 48, v0\nv_cndmask_b32 {x('aR')}, {x('aR')}, {x('t0')}, vcc")
    A(f"v_lshl_add_u32 {x('t0')}, {x('g')}, 14, {x('t3')}\nv_add_u32 {x('t0')}, s57, {x('t0')}\nv_cmp_gt_u32 vcc, 128, {x('tid')}\nv_cndmask_b32 {x('aR')}, {x('aR')}, {x('t0')}, vcc")
    for k in range(4): A(f"v_mov_b32 {x('Neg',k)}, -1")
    A(f"v_and_b32 {x('t2')}, 1, {x('g')}\nv_lshlrev_b32 {x('t2')}, 3, {x('t2')}\nv_lshl_add_u32 {x('t2')}, {x('n')}, 4, {x('t2')}")
    A(f"s_lshl_b32 s57, s{sR}, 8\nv_add_u32 {x('t3')}, s57, {x('t2')}")
    A(f"s_lshl_b32 s57, s{sG}, 24\ns_lshl_b32 s58, s{sM}, 15\ns_add_u32 s57, s57, s58\ns_add_u32 s57, s57, s{sWk}\ns_add_u32 s57, s57, {61440*256}")
    A(f"v_lshrrev_b32 {x('t0')}, 5, v0\nv_xor_b32 {x('t0')}, {x('n')}, {x('t0')}\nv_lshlrev_b32 {x('t0')}, 4, {x('t0')}\nv_lshl_add_u32 {x('dK')}, {x('g')}, 8, {x('t0')}\nv_add_u32 {x('dK')}, s57, {x('dK')}")
    A(f"v_lshl_add_u32 {x('dV')}, {x('g')}, 8, {x('t1')}\nv_add_u32 {x('dV')}, s57, {x('dV')}")
    if o["vt"]:
        A(f"s_and_b32 s57, s{sW}, 1\ns_lshl_b32 s58, s2, 1\ns_add_u32 s57, s57, s58\ns_lshr_b32 s58, s57, 6\ns_lshl_b32 s58, s58, 14\ns_and_b32 s57, s57, 63\ns_lshl_b32 s57, s57, 7\ns_add_u32 s57, s57, s58")
        A(f"s_lshr_b32 s58, s{sW}, 1\ns_lshl_b32 s58, s58, 21\ns_add_u32 s57, s57, s58\ns_add_u32 s81, s57, {o['vt']}\ns_and_b32 s57, s{sW}, 1\ns_lshl_b32 s57, s57, 13\ns_add_u32 s81, s81, s57\ns_xor_b32 s79, s81, 0x2000")
        A(f"s_mov_b32 s84, 0x5bd1e995\ns_not_b32 s85, s84\ns_mov_b64 s[86:87], s[84:85]\ns_mov_b64 s[88:89], s[84:85]\ns_getreg_b32 s80, hwreg(HW_REG_XCC_ID, 0, 4)")
    A("s_waitcnt lgkmcnt(0)")
    if diag and not o["vt"]: A("s_memrealtime s[76:77]")
    def probe():
        A(f"s_add_u32 s58, s28, {NONCE}\ns_addc_u32 s59, s29, 0\ns_load_dword s{sTag}, s[58:59], 0")
        if o["vt"]: A(f"s_add_u32 s82, s28, s81\ns_addc_u32 s83, s29, 0\ns_add_u32 s90, s28, s79\ns_addc_u32 s91, s29, 0\ns_load_dwordx2 s[86:87], s[82:83], 0\ns_load_dwordx2 s[88:89], s[90:91], 0")
    if o["vtp"]==0: probe()
    A(f"global_store_dwordx4 {x('aR')}, {R('Neg')}, s[28:29] sc1"); vm("R1")
    stream(8)
    A(f"global_load_dwordx2 {R('c01',2)}, {x('t3')}, s[4:5]"); vm("x")
    if o["vtp"]==1: probe()
    if o["vt"]:
        A("s_waitcnt lgkmcnt(2)\ns_cmp_lg_u64 s[88:89], s[84:85]\ns_cselect_b32 s76, 2, 0\ns_cmp_lg_u64 s[86:87], s[84:85]\ns_cselect_b32 s81, 1, 0\ns_or_b32 s76, s76, s81\ns_lshl_b32 s80, s80, 4\ns_or_b32 s76, s76, s80")
    stream(min(o["n0"],24))
    A(f"s_lshl_b32 s57, s{sL}, 20\ns_lshl_b32 s58, s{sI2}, 18\ns_add_u32 s57, s57, s58\ns_lshl_b32 s58, s{sW}, 16\ns_add_u32 s57, s57, s58\ns_lshl_b32 s58, s{sCB}, 8\ns_add_u32 s57, s57, s58")
    A(f"v_lshl_add_u32 {x('dO')}, {x('g')}, 11, {x('t1')}\nv_add_u32 {x('dO')}, s57, {x('dO')}")
    if o["tp"]:
        A(f"s_mov_b64 exec, {1 if o['tp']==1 else 15}\nv_lshl_add_u32 {x('t0')}, v0, 16, {x('dQ')}")
        A(f"global_load_dword {x('chk')}, {x('t0')}, s[20:21]"); vm("tp")
        A("s_mov_b64 exec, 1")
        for k,X in (("k","A"),("v","A"),("o","A"),("k","B"),("v","B"),("o","B")):
            if k=="k" and X=="A" and o["n0"]>8: continue
            p=PTR[X][k]; A(f"global_load_dword {x('chk')}, {x('d'+k.upper())}, s[{p}:{p+1}]"); vm("tp")
        A("s_mov_b64 exec, -1")
    stream(o["n0"])
    A(f"s_lshl_b32 s57, s{sL}, 5\ns_add_u32 s57, s57, s{sM}\ns_lshl_b32 s57, s57, 7\ns_lshl_b32 s58, s{sW}, 4\ns_add_u32 s57, s57, s58\ns_add_u32 s57, s57, {FLG}\nv_mov_b32 {x('aFl')}, s57")
    A(f"v_lshlrev_b32 {x('t0')}, 4, v0\ns_lshl_b32 s57, s{sW}, 11\nv_add_u32 {x('t0')}, s57, {x('t0')}")
    A(f"s_lshl_b32 s57, s{sR}, 14\ns_add_u32 s57, s57, {P1*16384}\nv_add_u32 {x('aG1')}, s57, {x('t0')}")
    A(f"v_add_u32 {x('aG2')}, s64, {x('t0')}\nv_add_u32 {x('aC2')}, {(PC-P2)*16384}, {x('aG2')}")
    A(f"s_lshl_b32 s57, s{sI2}, 14\ns_lshl_b32 s58, s{sL}, 16\ns_add_u32 s57, s57, s58\nv_add_u32 {x('aG3')}, s57, {x('t0')}")
    A(f"v_bfe_u32 {x('t0')}, v0, 1, 3\nv_and_b32 {x('t4')}, 1, v0\nv_lshlrev_b32 {x('t5')}, 4, {x('t4')}\nv_lshl_add_u32 {x('t0')}, {x('t0')}, 7, {x('t5')}")
    A(f"s_lshl_b32 s57, s{sW}, 10\ns_add_u32 s57, s57, s66\nv_add_u32 {x('aS2')}, s57, {x('t0')}")
    A(f"v_lshlrev_b32 {x('t5')}, 13, {x('t4')}\ns_lshl_b32 s58, s{sW}, 3\ns_add_u32 s59, s58, s69\nv_add_u32 {x('aPS2')}, s59, {x('t5')}\ns_add_u32 s59, s58, s67\nv_add_u32 {x('aPS3')}, s59, {x('t5')}")
    A(f"v_lshl_add_u32 {x('t4')}, {x('t4')}, 2, {x('g')}\nv_and_b32 {x('t0')}, 7, v0\nv_and_b32 {x('t3')}, 8, v0\nv_cmp_ne_u32 vcc, 0, {x('t3')}\nv_cndmask_b32 {x('t4')}, {x('t0')}, {x('t4')}, vcc")
    A(f"s_lshl_b32 s58, s{sI2}, 3\ns_add_u32 s57, s57, s58\ns_add_u32 s57, s57, 4096\nv_lshl_add_u32 {x('aS3')}, {x('t4')}, 7, s57")
    A(f"s_lshl_b32 s57, s{sL}, 5\ns_add_u32 s57, s57, s{sW}\nv_lshl_add_u32 {x('t4')}, {x('t0')}, 2, s57")
    A(f"v_lshlrev_b32 {x('t3')}, 3, {x('t0')}\ns_lshl_b32 s57, s{sW}, 6\ns_add_u32 s57, s57, s{sR}\nv_add_u32 {x('t3')}, s57, {x('t3')}")
    A(f"v_cndmask_b32 {x('t4')}, {x('t4')}, {x('t3')}, vcc\nv_lshlrev_b32 {x('t4')}, 7, {x('t4')}\nv_lshl_add_u32 {x('t4')}, {x('g')}, 4, {x('t4')}\nv_add_u32 {x('aF')}, {FLG}, {x('t4')}")
    waitfor("R1")
    A("s_waitcnt lgkmcnt(0)")
    if diag: A("s_memrealtime s[78:79]")
    A(f"s_mul_i32 s{sTag}, s{sTag}, 0x9e3779b1\ns_add_u32 s{sTag}, s{sTag}, 0x7f4a7c15\nv_mov_b32 {x('fl')}, s{sTag}")
    A(f"s_mov_b64 exec, 1\nglobal_store_dword {x('aFl')}, {x('fl')}, s[28:29] sc1\ns_mov_b64 exec, -1"); vm("flag")
    A(f"v_bfe_u32 {x('t3')}, v0, 2, 2\nv_lshlrev_b32 {x('t3')}, 4, {x('t3')}\ns_lshl_b32 s57, s{sW}, 6\nv_add_u32 {x('t3')}, s57, {x('t3')}")
    A(f"v_and_b32 {x('t4')}, 1, {x('g')}")
    A(f"v_lshl_add_u32 {x('t0')}, {x('t4')}, 13, {x('t3')}\nv_add_u32 {x('aP1')}, s63, {x('t0')}")
    A(f"v_add_u32 {x('t3')}, {x('t3')}, {x('t5')}\nv_mul_u32_u24 {x('t0')}, {(PC-P2)*16384}, {x('t4')}\nv_add3_u32 {x('aP2')}, {x('t0')}, s65, {x('t3')}")
    A(f"v_lshl_add_u32 {x('t0')}, {x('g')}, 14, {x('t3')}\nv_add_u32 {x('aP3')}, s62, {x('t0')}")
    A(f"s_mov_b32 s{mP2}, 0x11113333\ns_mov_b32 s{mP2+1}, 0\ns_mov_b32 s{mP1}, 0x11111111\ns_mov_b32 s{mP1+1}, 0\ns_mov_b32 s{mP3}, 0x33333333\ns_mov_b32 s{mP3+1}, 0x33333333")
    A(f"s_lshl_b32 s57, s{sW}, 4\ns_lshl_b64 s[{mS3}:{mS3+1}], 3, s57")
    A(f"s_mov_b32 s{sPerm}, 0x03020302")
    A(f"s_lshr_b32 s57, s{sL}, 2\ns_xor_b32 s57, s57, {o['pol']}\ns_lshl_b32 s57, s57, 13")
    A(f"s_mov_b64 s[{sCur}:{sCur+1}], s[28:29]\ns_add_u32 s{sGc}, s28, s57\ns_addc_u32 s{sGc+1}, s29, 0\ns_mov_b32 s{sIt}, 0\ns_mov_b32 s{sTo}, 0\ns_mov_b32 s{sRt}, 0")
    A(f"s_mul_i32 s57, s{sW}, {RS}\nv_add_u32 {x('xW')}, s57, {x('t2')}")
    A(f"v_lshlrev_b32 {x('xFr')}, 1, {x('t2')}\nv_add_u32 {x('xFr')}, {XF}, {x('xFr')}\ns_mul_i32 s57, s{sW}, {FS}\nv_add_u32 {x('xFw')}, s57, {x('xFr')}")
    A(f"v_lshlrev_b32 {x('t0')}, 4, {x('g')}")
    A(f"v_min_u32 {x('t4')}, 5, {x('n')}\nv_mul_u32_u24 {x('t4')}, {RS}, {x('t4')}\nv_add_u32 {x('rQ')}, {x('t4')}, {x('t0')}\ns_lshl_b32 s57, s{sW}, 6\nv_add_u32 {x('rG')}, s57, {x('rQ')}")
    A(f"v_and_b32 {x('t4')}, 3, {x('n')}\nv_lshrrev_b32 {x('t5')}, 2, {x('n')}")
    A(f"v_mul_u32_u24 {x('rO')}, {RS}, {x('t4')}\nv_add_u32 {x('rO')}, {x('rO')}, {x('t0')}\nv_add_u32 {x('rO')}, {XO}, {x('rO')}")
    A(f"v_mul_u32_u24 {x('t3')}, {RS}, {x('t5')}\nv_add_u32 {x('t3')}, {x('t3')}, {x('t0')}\nv_add_u32 {x('t1')}, {ZERO}, {x('t0')}")
    for X in "AB":
        A(f"v_add_u32 {x('rA'+X)}, {XC[X]}, {x('t3')}\nv_cmp_eq_u32 vcc, 1, {x('t4')}\nv_cndmask_b32 {x('rA'+X)}, {x('t1')}, {x('rA'+X)}, vcc")
        A(f"v_add_u32 {x('dT')}, {XA}, {x('t3')}\nv_cmp_eq_u32 vcc, 0, {x('t4')}\nv_cndmask_b32 {x('rA'+X)}, {x('rA'+X)}, {x('dT')}, vcc")
    A(f"v_lshl_add_u32 {x('t3')}, {x('t4')}, 2, {x('t5')}\nv_mul_u32_u24 {x('t3')}, {PS}, {x('t3')}\nv_add_u32 {x('t3')}, {x('t3')}, {x('t0')}\nv_add_u32 {x('rPl')}, {XP}, {x('t3')}")
    for s in range(4): A(f"v_add_u32 {x('dT')}, {o.get('zp',(0,0,0,0))[s]}, {x('t1')}\nv_cmp_eq_u32 vcc, {s}, {x('t4')}\nv_cndmask_b32 {x('rP%d'%s)}, {x('dT')}, {x('rPl')}, vcc")
    A(f"s_lshl_b32 s57, s{sW}, 2\nv_add_u32 {x('t3')}, s57, {x('g')}\nv_mul_u32_u24 {x('t3')}, {PS}, {x('t3')}\nv_lshl_add_u32 {x('t3')}, {x('n')}, 2, {x('t3')}\nv_add_u32 {x('pW')}, {XP}, {x('t3')}")
    A(f"v_add_u32 {x('mR')}, {XM}, {x('t0')}\nv_add_u32 {x('mW')}, s57, {x('mR')}")
    A(f"s_lshl_b32 s57, s{sW}, 3\ns_add_u32 s57, s57, {XR}\nv_mov_b32 {x('lW')}, s57\nv_mov_b32 {x('lR')}, {XR}")
    A(f"s_lshl_b32 s57, s{sW}, 2\nv_add_u32 {x('t3')}, s57, {x('t4')}\nv_lshlrev_b32 {x('t1')}, 2, {x('t5')}\nv_xor_b32 {x('t3')}, {x('t3')}, {x('t1')}\nv_lshlrev_b32 {x('t3')}, 4, {x('t3')}")
    A(f"v_lshl_add_u32 {x('t1')}, {x('g')}, 3, {x('t5')}\nv_lshl_add_u32 {x('tT')}, {x('t1')}, 8, {x('t3')}")
    if pad: A(f"v_lshl_add_u32 {x('tT')}, {x('g')}, 3, {x('tT')}")
    A(f"v_xor_b32 {x('t3')}, {x('g')}, {x('n')}\nv_lshlrev_b32 {x('t3')}, 4, {x('t3')}\nv_lshl_add_u32 {x('t3')}, {x('n')}, 9, {x('t3')}\ns_add_u32 s57, s{sWk}, {BUFK}\nv_add_u32 {x('tK')}, s57, {x('t3')}")
    A(f"v_and_b32 {x('t3')}, 1, {x('t5')}\nv_lshlrev_b32 {x('t3')}, 4, {x('t3')}\nv_mov_b32 {x('t1')}, 0xffff\nv_lshlrev_b32 {x('t1')}, {x('t3')}, {x('t1')}")
    for e in range(4):
        A(f"v_cmp_eq_u32 vcc, {e}, {x('t4')}\nv_cndmask_b32 {x('Msk',e)}, 0, {x('t1')}, vcc\nv_mov_b32 {x('One',e)}, 0x3f803f80\nv_and_b32 {x('Sel',e)}, 0x3f803f80, {x('Msk',e)}")
    A(f"v_lshlrev_b32 {x('t3')}, 2, v0\nv_mov_b32 {x('t1')}, 0\nds_write_b32 {x('t3')}, {x('One')} offset:{ONES}\nds_write_b32 {x('t3')}, {x('t1')} offset:{ZERO}\nds_write_b32 {x('t3')}, {x('t1')} offset:{ZERO+32}")
    if diag: A(f"v_mov_b32 {x('stamp')}, 0\ns_waitcnt lgkmcnt(0)\nv_writelane_b32 {x('stamp')}, s72, 0\nv_writelane_b32 {x('stamp')}, s76, 1\nv_writelane_b32 {x('stamp')}, s78, 2")
    waitfor("x")
    if diag: A("s_memrealtime s[76:77]")
    def loadF(): A(f"global_load_dword {x('fl')}, {x('aF')}, s[28:29] sc1"); vm("F")
    A(f"v_lshlrev_b32 {x('D')}, 16, {x('c01')}\nv_and_b32 {x('D',1)}, 0xffff0000, {x('c01')}\nv_lshlrev_b32 {x('D',2)}, 16, {x('c01',1)}\nv_and_b32 {x('D',3)}, 0xffff0000, {x('c01',1)}")
    A("s_barrier")
    trreads(BUFQ,AQ["A"]); moved.add(("q","A")); freeblk["q"]=0
    for k in range(4): A(f"v_mul_f32 {x('D',k)}, {hex(f2u(0.25))}, {x('D',k)}")
    fdone=False
    if o["fpos"]<=o["n1"]: stream(o["fpos"]); loadF(); fdone=True
    stream(o["n1"])
    if diag: A(f"s_waitcnt lgkmcnt(0)\nv_writelane_b32 {x('stamp')}, s76, 3\ns_mov_b32 s76, 0\ns_mov_b32 s78, 0")
    A("s_branch L_qgo_A")
    NEED={0:[("k","A"),("v","A")],1:[("o","A")],2:[("q","B")],3:[("k","B"),("v","B")],4:[("o","B")]}
    def block(e,lab,gather,tagn,check,back,retry_e,extra_ok=None,pre_extra=None):
        nonlocal fdone
        cur[0]=OOL; blk[0]=e
        A(f"{lab}:")
        if pre_extra and not (e==0 and o["fe"]==2): pre_extra()
        if e==0 and not fdone: stream(o["fpos"]); loadF(); fdone=True
        if not (e==0 and o["fe"]): stream(o["pre"][e])
        if e==0:
            waitfor("F")
            A(f"L_fc:\nv_cmp_ne_u32 vcc, s{sTag}, {x('fl')}\ns_cbranch_vccz L_fok")
            A(f"s_sleep {slp}\ns_add_u32 s{sTo}, s{sTo}, 1")
            if diag: A(f"s_add_u32 s{sRt}, s{sRt}, {1<<24}")
            A(f"s_cmp_lt_u32 s{sTo}, {TMO}\ns_cbranch_scc0 L_fail")
            A(f"global_load_dword {x('fl')}, {x('aF')}, s[28:29] sc1\ns_waitcnt vmcnt(0)\ns_branch L_fc\nL_fok:")
            if o["fe"]:
                if pre_extra and o["fe"]==2: pre_extra()
                stream(o["pre"][e])
        gw=o["gw"][e]
        if gw>=0:
            k,X,q=ORDER[gw]; waitfor(f"{k}{X}{q}")
        elif gw==-2: waitfor("P")
        if o["gs"][e]: A(f"s_sleep {o['gs'][e]}")
        stamp({0:3,1:8,2:0,3:3,4:8}[e])
        for g_ in NEED[e]: assert ORDER.index((g_[0],g_[1],7))<ns[0], ("weights not issued",e,g_)
        nbefore=ns[0]
        gather()
        for k in range(tagn): vm("G")
        stream(o["post"][e])
        move([(k,X) for (k,X,q) in ORDER[:nbefore] if q==7 and (k,X) not in moved])
        waitfor("G"); A(f"s_branch {lab}_c")
        A(f"{lab}_p:"); gather(); A("s_waitcnt vmcnt(0)")
        A(f"{lab}_c:")
        check(f"{lab}_r")
        if extra_ok: extra_ok()
        stream(o["ok"][e])
        A(f"s_branch {back}")
        retry(f"{lab}_r",f"{lab}_p",retry_e)
        cur[0]=L
    def rowsum():
        A(f"v_pk_add_f32 {R('tA',2)}, {R('T0',2)}, {vr(r['T0']+2,2)}\nv_add_f32 {x('tA')}, {x('tA')}, {x('tA',1)}")
        A(f"v_pk_add_f32 {R('tB',2)}, {R('T1',2)}, {vr(r['T1']+2,2)}\nv_add_f32 {x('tB')}, {x('tB')}, {x('tB',1)}")
    def sumF():
        for h in (0,2):
            A(f"v_pk_add_f32 {vr(r['F0']+h,2)}, {vr(r['F0']+h,2)}, {vr(r['F1']+h,2)}\nv_pk_add_f32 {vr(r['F2']+h,2)}, {vr(r['F2']+h,2)}, {vr(r['F3']+h,2)}\nv_pk_add_f32 {vr(r['F0']+h,2)}, {vr(r['F0']+h,2)}, {vr(r['F2']+h,2)}")
        A(f"v_cvt_pk_bf16_f32 {x('c01')}, {x('F0')}, {x('F0',1)}\nv_cvt_pk_bf16_f32 {x('c01',1)}, {x('F0',2)}, {x('F0',3)}")
    def cvtD(): A(f"v_cvt_pk_bf16_f32 {x('c01')}, {x('D')}, {x('D',1)}\nv_cvt_pk_bf16_f32 {x('c01',1)}, {x('D',2)}, {x('D',3)}")
    def gE1():
        A(f"global_load_dwordx4 {R('G0')}, {x('aG1')}, s[{sGp}:{sGp+1}] sc1\nglobal_load_dwordx4 {R('G1')}, {x('aG1')}, s[{sGp}:{sGp+1}] offset:1024 sc1")
    def cE1(fail):
        mf(R('D'),R('Sel'),R('G0'),R('X4')); chk(q4('G0')); mf(R('D'),R('Sel'),R('G1'),R('D')); chk(q4('G1'),False)
        A(f"v_cmp_eq_u32 vcc, -1, {x('chk')}\ns_cbranch_vccnz {fail}")
    for X in "AB":
        a0=AQ[X]
        A(f"L_q_{X}:")
        if X=="B": block(2,"L_0q",gE1,2,cE1,"L_qgo_B",0)
        delay(o["d1"])
        stamp(0)
        A(f"L_qp_{X}:"); gE1(); A("s_waitcnt vmcnt(0)")
        cE1(f"L_qr_{X}")
        A(f"L_qgo_{X}:")
        stamp(1)
        cvtD()
        A(f"ds_write_b64 {x('xW')}, {R('c01',2)} offset:{XQ}")
        A("s_waitcnt lgkmcnt(0)\ns_barrier")
        A(f"ds_read_b128 {R('Ag')}, {x('rG')}")
        for s in range(4): A(f"ds_read_b128 {R('A%d'%s)}, {x('rQ')} offset:{64*s}")
        A("s_waitcnt lgkmcnt(4)"); mf(R('Tg'),R('Ag'),R('Ag'),"0")
        ex=["","","",
            f"v_add_f32 {x('st')}, {x('Tg')}, {x('Tg',1)}\nv_add_f32 {x('st',1)}, {x('Tg',2)}, {x('Tg',3)}",
            f"v_add_f32 {x('st')}, {x('st')}, {x('st',1)}",
            f"v_add_f32_dpp {x('st')}, {x('st')}, {x('st')} quad_perm:[1,0,3,2] {DP}",
            f"v_add_f32_dpp {x('st')}, {x('st')}, {x('st')} quad_perm:[2,3,0,1] {DP}",
            f"v_mov_b32_dpp {x('st',1)}, {x('st')} row_shl:4 {DP}"]
        for s in range(4):
            A(f"s_waitcnt lgkmcnt({3-s})")
            for t in range(2):
                mf(R('T%d'%t),R('A%d'%s),ar(a0+(t*4+s)*4,4),R('T%d'%t) if s else "0")
                if ex[2*s+t]: A(ex[2*s+t])
        A(f"s_mov_b64 exec, 3\nglobal_store_dwordx2 {x('aPS2')}, {R('st',2)}, s[{sCur}:{sCur+1}] sc1\ns_mov_b64 exec, -1"); vm("P")
        A(f"s_cmp_eq_u32 s{sIt}, 0")
        rowsum()
        pack_store(mP2,"aP2",sCur,True); vm("P")
        stamp(2)
        A(f"ds_write_b128 {x('xFw')}, {R('D')}")
        def gE2():
            A(f"global_load_dwordx4 {R('G0')}, {x('aG2')}, s[{sGc}:{sGc+1}] sc1\nglobal_load_dwordx4 {R('G1')}, {x('aG2')}, s[{sGc}:{sGc+1}] offset:1024 sc1")
            A(f"global_load_dwordx4 {R('S')}, {x('aS2')}, s[{sGc}:{sGc+1}] sc1")
        def gE2c():
            gE2()
            A(f"global_load_dwordx4 {R('C0')}, {x('aC2')}, s[{sCur}:{sCur+1}] sc1\nglobal_load_dwordx4 {R('C1')}, {x('aC2')}, s[{sCur}:{sCur+1}] offset:1024 sc1")
        def cE2(fail):
            mf(R('D'),R('Sel'),R('G0'),"0"); chk(q4('G0')+q4('S')[:1]); mf(R('D'),R('Sel'),R('G1'),R('D')); chk(q4('G1')+q4('S')[1:],False)
            A(f"v_cmp_eq_u32 vcc, -1, {x('chk')}\ns_cbranch_vccnz {fail}")
        def cE2c(fail):
            mf(R('T0'),R('Sel'),R('C0'),"0"); chk(q4('C0')+q4('C1')[:1]); mf(R('T0'),R('Sel'),R('C1'),R('T0')); chk(q4('C1')[1:]+q4('S')[:1],False)
            mf(R('D'),R('Sel'),R('G0'),"0"); chk(q4('G0'),False); mf(R('D'),R('Sel'),R('G1'),R('D')); chk(q4('G1')+q4('S')[1:],False)
            A(f"v_cmp_eq_u32 vcc, -1, {x('chk')}\ns_cbranch_vccnz {fail}")
        def okE2c(X=X):
            A(f"v_cvt_pk_bf16_f32 {x('c01')}, {x('T0')}, {x('T0',1)}\nv_cvt_pk_bf16_f32 {x('c01',1)}, {x('T0',2)}, {x('T0',3)}")
            A(f"ds_write_b64 {x('xW')}, {R('c01',2)} offset:{XC[X]}")
        def reset(ks,sim=True):
            for k in ks:
                A(f"v_add_u32 {x('dT')}, {k*LAY}, {x('aR')}\nglobal_store_dwordx4 {x('dT')}, {R('Neg')}, s[28:29] sc1")
                if sim: vm("R2")
        rs=o["rs"]
        def preR2(X=X):
            if o["nor2"]: return
            reset({0:{"A":(1,2,3),"B":()},1:{"A":(1,),"B":(2,)},2:{"A":(1,),"B":(2,3)}}[rs][X])
        A(f"s_cbranch_scc1 L_0a{X}")
        block(0 if X=="A" else 3,f"L_0a{X}",gE2c,5,cE2c,f"L_ago_{X}",1,okE2c,preR2)
        if rs==1 and X=="A" and not o["nor2"]: reset((3,),False)
        delay(o["d2"])
        stamp(3)
        A(f"L_ap_{X}:"); gE2(); A("s_waitcnt vmcnt(0)")
        cE2(f"L_ar_{X}")
        A(f"L_ago_{X}:")
        stamp(4)
        A(f"v_add_f32 {x('st',1)}, {x('S',1)}, {x('S',3)}\nv_add_f32 {x('st')}, {x('S')}, {x('S',2)}")
        cvtD()
        A(f"ds_write_b64 {x('xW')}, {R('c01',2)} offset:{XA}")
        for k in (1,2): A(f"v_add_f32_dpp {x('st',1)}, {x('st',1)}, {x('st',1)} row_ror:{k} {DP}\nv_add_f32_dpp {x('st')}, {x('st')}, {x('st')} row_ror:{k} {DP}")
        A(f"s_waitcnt lgkmcnt(0)\ns_barrier")
        for s in range(4): A(f"ds_read_b128 {R('A%d'%s)}, {x('rA'+X)} offset:{64*s}")
        stamp(5)
        for k in (4,8): A(f"v_add_f32_dpp {x('st',1)}, {x('st',1)}, {x('st',1)} row_ror:{k} {DP}\nv_add_f32_dpp {x('st')}, {x('st')}, {x('st')} row_ror:{k} {DP}")
        ex=[f"v_mul_f32 {x('ab',1)}, {hex(f2u(-1/1024))}, {x('st',1)}",
            f"v_mul_f32 {x('t0')}, {x('ab',1)}, {x('ab',1)}",
            f"v_mul_f32 {x('t1')}, {hex(f2u(1/1024))}, {x('st')}",
            f"v_sub_f32 {x('t1')}, {x('t1')}, {x('t0')}",
            f"v_max_f32 {x('t1')}, 0, {x('t1')}",
            f"v_add_f32 {x('t1')}, {hex(f2u(1e-5))}, {x('t1')}",
            f"v_rsq_f32 {x('t1')}, {x('t1')}",
            f"v_mul_f32 {x('ab')}, {hex(f2u(128**-0.5*1.4426950408889634))}, {x('t1')}"]
        for s in range(4):
            A(f"s_waitcnt lgkmcnt({3-s})")
            for t in range(2):
                mf(R('T%d'%t),R('A%d'%s),ar(a0+32+(t*4+s)*4,4),R('T%d'%t) if s else "0"); A(ex[2*s+t])
        A(f"v_fma_f32 {x('tA')}, {x('T0',1)}, {x('ab',1)}, {x('T0')}\nv_fma_f32 {x('tB')}, {x('T1',1)}, {x('ab',1)}, {x('T1')}")
        A(f"v_max_f32 {x('t0')}, {x('tA')}, {x('tB')}")
        for k in (1,2,4,8): A(f"v_max_f32_dpp {x('t0')}, {x('t0')}, {x('t0')} row_ror:{k} {DP}")
        A(f"v_mul_f32 {x('t0')}, {x('t0')}, {x('ab')}\nv_ceil_f32 {x('t0')}, {x('t0')}")
        A(f"v_fma_f32 {x('tA')}, {x('tA')}, {x('ab')}, -{x('t0')}\nv_fma_f32 {x('tB')}, {x('tB')}, {x('ab')}, -{x('t0')}")
        A(f"v_exp_f32 {x('tA')}, {x('tA')}\nv_exp_f32 {x('tB')}, {x('tB')}\nds_write_b32 {x('mW')}, {x('t0')}")
        A(f"v_cvt_pk_bf16_f32 {x('t1')}, {x('tA')}, {x('tB')}\nds_write_b32 {x('pW')}, {x('t1')}")
        A("s_waitcnt lgkmcnt(0)\ns_barrier")
        A(f"ds_read_b128 {R('A0')}, {x('rP0')}\nds_read_b128 {R('W4')}, {x('mR')}")
        for s in range(1,4): A(f"ds_read_b128 {R('A%d'%s)}, {x('rP%d'%s)}")
        A(f"ds_read_b128 {R('Ag')}, {x('rPl')}")
        stamp(6); dg=0
        A(f"s_waitcnt lgkmcnt({5+dg})")
        mf(R('T0'),R('A0'),ar(a0+64,4),"0"); A(f"s_waitcnt lgkmcnt({4+dg})\nv_max3_f32 {x('st')}, {x('W4')}, {x('W4',1)}, {x('W4',2)}")
        mf(R('T1'),R('A0'),ar(a0+64+16,4),"0"); A(f"v_max_f32 {x('st')}, {x('st')}, {x('W4',3)}\ns_waitcnt lgkmcnt({3+dg})")
        mf(R('T0'),R('A1'),ar(a0+64+4,4),R('T0')); A(f"v_sub_f32 {x('W4')}, {x('W4')}, {x('st')}\nv_sub_f32 {x('W4',1)}, {x('W4',1)}, {x('st')}")
        mf(R('T1'),R('A1'),ar(a0+64+20,4),R('T1')); A(f"v_exp_f32 {x('W4')}, {x('W4')}\ns_waitcnt lgkmcnt(0)")
        mf(R('Tg'),R('Ag'),R('One'),"0"); A(f"v_exp_f32 {x('W4',1)}, {x('W4',1)}")
        mf(R('T0'),R('A2'),ar(a0+64+8,4),R('T0')); A(f"v_sub_f32 {x('W4',2)}, {x('W4',2)}, {x('st')}\nv_sub_f32 {x('W4',3)}, {x('W4',3)}, {x('st')}")
        mf(R('T1'),R('A2'),ar(a0+64+24,4),R('T1')); A(f"v_exp_f32 {x('W4',2)}, {x('W4',2)}")
        mf(R('T0'),R('A3'),ar(a0+64+12,4),R('T0')); A(f"v_exp_f32 {x('W4',3)}, {x('W4',3)}")
        mf(R('T1'),R('A3'),ar(a0+64+28,4),R('T1'))
        def comb(dst,T):
            A(f"v_pk_mul_f32 {R(dst,2)}, {R(T,2)}, {R('W4',2)}\nv_pk_fma_f32 {R(dst,2)}, {vr(r[T]+2,2)}, {vr(r['W4']+2,2)}, {R(dst,2)}\nv_add_f32 {x(dst)}, {x(dst)}, {x(dst,1)}")
        A(f"v_pk_mul_f32 {R('ab',2)}, {R('Tg',2)}, {R('W4',2)}\nv_pk_fma_f32 {R('ab',2)}, {vr(r['Tg']+2,2)}, {vr(r['W4']+2,2)}, {R('ab',2)}\nv_add_f32 {x('st',1)}, {x('ab')}, {x('ab',1)}")
        A(f"s_mov_b64 exec, s[{mS3}:{mS3+1}]\nglobal_store_dwordx2 {x('aPS3')}, {R('st',2)}, s[{sCur}:{sCur+1}] sc1\ns_mov_b64 exec, -1"); vm("P")
        A(f"s_cmp_eq_u32 s{sIt}, 0")
        comb('tA','T0'); comb('tB','T1')
        pack_store(mP3,"aP3",sCur,True); vm("P")
        stamp(7)
        for k in range(4): A(f"ds_read_b128 {R('F%d'%k)}, {x('xFr')} offset:{k*FS}")
        A("s_waitcnt lgkmcnt(0)")
        sumF()
        A(f"v_lshlrev_b32 {x('X4')}, 16, {x('c01')}\nv_and_b32 {x('X4',1)}, 0xffff0000, {x('c01')}\nv_lshlrev_b32 {x('X4',2)}, 16, {x('c01',1)}\nv_and_b32 {x('X4',3)}, 0xffff0000, {x('c01',1)}")
        for k in range(4): A(f"v_mul_f32 {x('X4',k)}, {hex(f2u(0.25))}, {x('X4',k)}")
        def gE3():
            A(f"global_load_dwordx2 {R('S',2)}, {x('aS3')}, s[{sGc}:{sGc+1}] sc1")
            A(f"global_load_dwordx4 {R('G0')}, {x('aG3')}, s[{sGc}:{sGc+1}] sc1\nglobal_load_dwordx4 {R('G1')}, {x('aG3')}, s[{sGc}:{sGc+1}] offset:1024 sc1")
        def cE3(fail):
            A(f"v_max_f32_dpp {x('st')}, {x('S')}, {x('S')} quad_perm:[1,0,3,2] {DP}")
            chk([r['S'],r['S']+1]+q4('G0')[:3])
            A(f"v_max_f32_dpp {x('st')}, {x('st')}, {x('st')} quad_perm:[2,3,0,1] {DP}")
            chk(q4('G0')[3:]+q4('G1')[:3],False)
            A(f"v_max_f32_dpp {x('st')}, {x('st')}, {x('st')} row_half_mirror {DP}")
            chk(q4('G1')[3:],False)
            A(f"v_cmp_eq_u32 vcc, -1, {x('chk')}")
            A(f"v_subrev_f32_dpp {x('t0')}, {x('st')}, {x('S')} row_newbcast:0 {DP}")
            A(f"s_cbranch_vccnz {fail}")
        A(f"s_cbranch_scc1 L_0o{X}")
        block(1 if X=="A" else 4,f"L_0o{X}",gE3,3,cE3,f"L_ogo_{X}",2)
        delay(o["d3"])
        stamp(8)
        A(f"L_op_{X}:"); gE3(); A("s_waitcnt vmcnt(0)")
        cE3(f"L_or_{X}")
        A(f"L_ogo_{X}:")
        A(f"v_exp_f32 {x('t0')}, {x('t0')}")
        stamp(9)
        A(f"v_perm_b32 {x('t1')}, {x('t0')}, {x('t0')}, s{sPerm}\nv_mul_f32 {x('st',1)}, {x('t0')}, {x('S',1)}")
        for e in range(4): A(f"v_and_b32_dpp {x('A0',e)}, {x('t1')}, {x('Msk',e)} row_newbcast:8 {DP}")
        for e in range(2): A(f"v_and_b32_dpp {x('A1',e)}, {x('t1')}, {x('Msk',e)} row_newbcast:9 {DP}")
        mf(R('D'),R('A0'),R('G0'),"0")
        for e in range(2,4): A(f"v_and_b32_dpp {x('A1',e)}, {x('t1')}, {x('Msk',e)} row_newbcast:9 {DP}")
        A(f"v_add_f32_dpp {x('st',1)}, {x('st',1)}, {x('st',1)} quad_perm:[1,0,3,2] {DP}\ns_nop 0")
        mf(R('D'),R('A1'),R('G1'),R('D'))
        A(f"v_add_f32_dpp {x('st',1)}, {x('st',1)}, {x('st',1)} quad_perm:[2,3,0,1] {DP}")
        A(f"v_add_f32_dpp {x('st',1)}, {x('st',1)}, {x('st',1)} row_half_mirror {DP}")
        A(f"s_mov_b64 exec, 1\nds_write_b64 {x('lW')}, {R('st',2)}\ns_mov_b64 exec, -1")
        cvtD()
        A(f"ds_write_b64 {x('xW')}, {R('c01',2)} offset:{XO}")
        A("s_waitcnt lgkmcnt(0)\ns_barrier")
        A(f"ds_read_b128 {R('A0')}, {x('rO')}\nds_read_b128 {R('F0')}, {x('lR')}\nds_read_b128 {R('F1')}, {x('lR')} offset:16")
        for s in range(1,4): A(f"ds_read_b128 {R('A%d'%s)}, {x('rO')} offset:{64*s}")
        stamp(10)
        Ms=[x('F0'),x('F0',2),x('F1'),x('F1',2)]; Ls=[x('F0',1),x('F0',3),x('F1',1),x('F1',3)]
        ex=[f"s_waitcnt lgkmcnt({3+dg})\nv_max3_f32 {x('t0')}, {Ms[0]}, {Ms[1]}, {Ms[2]}",
            f"v_max_f32 {x('t0')}, {x('t0')}, {Ms[3]}\nv_sub_f32 {x('W4')}, {Ms[0]}, {x('t0')}",
            f"v_sub_f32 {x('W4',1)}, {Ms[1]}, {x('t0')}\nv_exp_f32 {x('W4')}, {x('W4')}",
            f"v_sub_f32 {x('W4',2)}, {Ms[2]}, {x('t0')}\nv_exp_f32 {x('W4',1)}, {x('W4',1)}",
            f"v_sub_f32 {x('W4',3)}, {Ms[3]}, {x('t0')}\nv_exp_f32 {x('W4',2)}, {x('W4',2)}",
            f"v_mul_f32 {x('t1')}, {x('W4')}, {Ls[0]}\nv_exp_f32 {x('W4',3)}, {x('W4',3)}",
            f"v_fma_f32 {x('t1')}, {x('W4',1)}, {Ls[1]}, {x('t1')}\nv_fma_f32 {x('t1')}, {x('W4',2)}, {Ls[2]}, {x('t1')}",
            f"v_fma_f32 {x('t1')}, {x('W4',3)}, {Ls[3]}, {x('t1')}\nv_rcp_f32 {x('t1')}, {x('t1')}"]
        for s in range(4):
            A(f"s_waitcnt lgkmcnt({[5,2,1,0][s]+(dg if s<3 else 0)})")
            for t in range(2):
                mf(R('T%d'%t),R('A%d'%s),ar(a0+96+(t*4+s)*4,4),R('T%d'%t) if s else "0"); A(ex[2*s+t])
        A(f"s_mov_b64 s[{sGp}:{sGp+1}], s[{sGc}:{sGc+1}]\ns_cmp_eq_u32 s{sIt}, 0")
        A(f"v_pk_mul_f32 {R('tA',2)}, {R('T0',2)}, {R('W4',2)}\nv_pk_fma_f32 {R('tA',2)}, {vr(r['T0']+2,2)}, {vr(r['W4']+2,2)}, {R('tA',2)}\nv_add_f32 {x('tA')}, {x('tA')}, {x('tA',1)}")
        A(f"v_pk_mul_f32 {R('tB',2)}, {R('T1',2)}, {R('W4',2)}\nv_pk_fma_f32 {R('tB',2)}, {vr(r['T1']+2,2)}, {vr(r['W4']+2,2)}, {R('tB',2)}\nv_mul_f32 {x('tA')}, {x('tA')}, {x('t1')}\nv_add_f32 {x('tB')}, {x('tB')}, {x('tB',1)}\nv_mul_f32 {x('tB')}, {x('tB')}, {x('t1')}")
        pack_store(mP1,"aP1",sCur,False); vm("P")
        stamp(11)
        A(f"s_cselect_b32 s57, 1, 0")
        A(f"s_add_u32 s{sCur}, s{sCur}, {LAY}\ns_addc_u32 s{sCur+1}, s{sCur+1}, 0\ns_add_u32 s{sGc}, s{sGc}, {LAY}\ns_addc_u32 s{sGc+1}, s{sGc+1}, 0")
        flush(X,range(12))
        if X=="A": A("s_cmp_eq_u32 s57, 1\ns_cbranch_scc1 L_0q")
        else:
            A(f"s_mov_b32 s{mP2}, 0x3333\ns_add_u32 s{sIt}, s{sIt}, 1\ns_cmp_eq_u32 s57, 1\ns_cbranch_scc1 L_q_A")
    A(f"s_lshl_b32 s57, s{sL}, 2\ns_cmp_eq_u32 s57, s{sM}\ns_cbranch_scc0 L_fail")
    A(f"s_lshl_b32 s57, s{sR}, 8\nv_add_u32 {x('t3')}, s57, {x('t2')}\nv_mov_b32 {x('t4')}, {NONCE}\nv_mov_b32 {x('fl')}, s{sTag}")
    delay(o["d1"])
    A("L_fp:"); gE1(); A("s_waitcnt vmcnt(0)")
    cE1("L_fr")
    if diag: A("s_memrealtime s[76:77]")
    A(f"ds_write_b128 {x('xFw')}, {R('D')}\ns_waitcnt lgkmcnt(0)\ns_barrier")
    if diag: A(f"v_writelane_b32 {x('stamp')}, s76, 60")
    for k in range(4): A(f"ds_read_b128 {R('F%d'%k)}, {x('xFr')} offset:{k*FS}")
    A(f"s_cmp_eq_u32 s{sW}, 0\ns_cbranch_scc0 L_fail")
    A("s_waitcnt lgkmcnt(0)")
    sumF()
    A(f"s_mov_b32 exec_hi, 0\nglobal_store_dwordx2 {x('t3')}, {R('c01',2)}, s[24:25]")
    A(f"s_cmp_eq_u32 s{sL}, 0\ns_cbranch_scc0 L_fail")
    A(f"s_mov_b64 exec, 1\nglobal_store_dword {x('t4')}, {x('fl')}, s[28:29] sc1")
    A("L_fail:")
    if diag:
        A("s_mov_b64 exec, -1\ns_memrealtime s[76:77]\ns_memtime s[78:79]\ns_waitcnt lgkmcnt(0)\ns_sub_u32 s78, s78, s74")
        A(f"v_writelane_b32 {x('stamp')}, s76, 61\nv_writelane_b32 {x('stamp')}, s78, 62\nv_writelane_b32 {x('stamp')}, s{sTo}, 63")
        A(f"s_lshl_b32 s57, s2, 10\ns_lshl_b32 s58, s{sW}, 8\ns_add_u32 s57, s57, s58\ns_add_u32 s57, s57, {DIAG}\nv_lshl_add_u32 {x('t0')}, v0, 2, s57\nglobal_store_dword {x('t0')}, {x('stamp')}, s[28:29]")
    A("s_endpgm")
    L.extend(OOL)
    for X in "AB":
        retry(f"L_qr_{X}",f"L_qp_{X}",0); retry(f"L_ar_{X}",f"L_ap_{X}",1); retry(f"L_or_{X}",f"L_op_{X}",2)
    retry("L_fr","L_fp",0)
    A("L_end:\ns_endpgm")
    assert V.n<=256 and ns[0]==64
    A(f'.section .rodata,"a"\n.p2align 6\n.amdhsa_kernel {name}_kernel\n  .amdhsa_next_free_vgpr 512\n  .amdhsa_next_free_sgpr 102\n  .amdhsa_accum_offset 256\n  .amdhsa_group_segment_fixed_size 0\n  .amdhsa_kernarg_size 104\n  .amdhsa_user_sgpr_count 2\n  .amdhsa_user_sgpr_kernarg_segment_ptr 1\n  .amdhsa_system_sgpr_workgroup_id_x 1\n.end_amdhsa_kernel')
    out,n=fix(L,verbose=("-v" in sys.argv))
    return "\n".join(out)+"\n"
def parse(args):
    kw={}
    for a in args:
        if "=" in a:
            k,val=a.split("="); kw[k]=tuple(int(z) for z in val.split(",")) if "," in val else int(val)
    return kw
if __name__=="__main__":
    open(sys.argv[1],"w").write(gen(**parse(sys.argv[2:])))
```

```python
import sys, math, struct
from hz import fix
NAME="interleave_layers__sliding_block_cached__sliding_block_cached__decode"
HDR=open("cdna_kernels/%s.s.ref"%NAME).read().split("; Override launch")[0]
def f2u(x): return struct.unpack("<I",struct.pack("<f",x))[0]
RS=288
XQ=0; ONES=4*RS; ZERO=5*RS
XA=6*RS; XC={"A":10*RS+32,"B":14*RS+32+128}; XO=19*RS; XP=23*RS; PS=96
XM=XP+16*PS; XR=XM+64; XF=XR+32; FS=528; XV=XF+4*FS
BS=0x8000+128
BUFK=0x2c00; BUFQ=BUFK+0x8000; BUFV=BUFQ+BS; BUFO=BUFV+BS; LDSSZ=BUFO+BS
assert XV+16<=BUFK and BUFK%256==0 and XF%16==0 and XC["B"]+4*RS<=XO+32
LAY=1<<20; FLG=4<<20; NONCE=FLG+0x10000; DIAG=6<<20
P3,P2,P1,PS_,PC=0,32,40,48,56
class Regs:
    def __init__(s,n0): s.n=n0; s.d={}
    def __call__(s,name,k=1,al=1):
        s.n=(s.n+al-1)//al*al; s.d[name]=s.n; s.n+=k; return s.d[name]
ORDER=[(k,X,q) for X in "AB" for k in "qkvo" for q in range(8)]
DEF=dict(diag=0, TMO=30000, slp=2, pol=-1, fe=0, p0=0, loc=0, wfl=0, kfl=0, pad=1, pf=1,
         n0=8, n1=12, fpos=8,
         e0="P24.8_W21_G_L27", e1="L32_W29_G_L35", e2="L40_W37_G_L46", e3="L56_W53_G_L59", e4="L64_W61_G",
         spr=(27,35,46,59,64), spq=12, sk=1,
         d=(-1,-1,-1,-1,-1,-1,-1))
FL=['nt','','sc1','sc0 sc1','sc1 nt','sc0']
def gen(name=NAME, **kw):
    o=dict(DEF); o.update(kw); diag=o["diag"]; TMO=o["TMO"]; slp=o["slp"]; pad=o["pad"]
    L=[]; OOL=[]; cur=[L]
    def A(t):
        for x in t.split("\n"): cur[0].append(x)
    V=Regs(1)
    v=lambda i:f"v{i}"
    vr=lambda i,k:f"v[{i}:{i+k-1}]"
    ar=lambda i,k:f"a[{i}:{i+k-1}]"
    sp=lambda i:f"s[{i}:{i+1}]"
    for n in "Sel Msk One X4 G0 G1 S C0 C1 D T0 T1 Tg Ag A0 A1 A2 A3 P W4 F0 F1 F2 F3 Neg".split(): V(n,4,4)
    for n in "c01 st ab tA tB pa fl".split(): V(n,2,2)
    for n in ("aG1 aG2 aS2 aC2 aG3 aS3 aP2 aPS2 aP3 aPS3 aP1 aR aF aFl dQ dK dV dO dT xW xFw xFr rQ rG rAA rAB rP0 rP1 rP2 rP3 rPl pW mW mR rO lW lR "
              "tT tK tid n g t0 t1 t2 t3 t4 t5 chk fF stamp").split(): V(n)
    r=V.d
    R=lambda n,k=4:vr(r[n],k)
    x=lambda n,o=0:v(r[n]+o)
    AQ={"A":0,"B":128}
    PTR={"A":dict(k=6,v=8,q=10,o=12),"B":dict(k=16,v=18,q=20,o=22)}
    BUF={"q":BUFQ,"k":BUFK,"v":BUFV,"o":BUFO}
    sW,sL,sM,sR,sI,sI2,sCB,sG=30,31,32,33,34,35,36,37
    sPub=[28,38,40,42]; sGat=[44,46,48,50]
    mP3,mS3,mRs=52,54,70
    sTo,sTag,sRt,sPerm,sWk,sWo,sSide=27,26,14,15,3,56,72
    Q=[]
    def vm(tag): Q.append(tag)
    def cnt(tag):
        idx=max(i for i,t in enumerate(Q) if t==tag); n=len(Q)-1-idx; assert n<64; return n
    def waitfor(tag): A(f"s_waitcnt vmcnt({cnt(tag)})")
    def stamp(k):
        if diag: A(f"s_memrealtime s[{76+2*k}:{77+2*k}]")
    def flush(l):
        if not diag: return
        A("s_waitcnt lgkmcnt(0)")
        for k in range(12):
            if l or k: A(f"v_writelane_b32 {x('stamp')}, s{76+2*k}, {4+14*l+k}")
        A(f"v_writelane_b32 {x('stamp')}, s{sRt}, {4+14*l+13}\ns_mov_b32 s{sRt}, 0")
    PADQ=lambda q:(8*(q>>1) if pad else 0)
    ns=[0]; freeAt={}; moved=set(); nbar=[0]; m0v=[None]
    def bar():
        A("s_waitcnt lgkmcnt(0)\ns_barrier"); nbar[0]+=1
    def setm0(sreg,val):
        if m0v[0]!=(sreg,val): A(f"s_add_u32 m0, s{sreg}, {val}"); m0v[0]=(sreg,val)
    def dma(kind,X,q):
        p=PTR[X][kind]; buf=BUF[kind]
        if X=="B": assert kind in freeAt and freeAt[kind]<=nbar[0], ("buffer busy",kind,nbar[0])
        if kind in "qo":
            step=32768 if kind=="q" else 8192
            setm0(sWo,buf+q*1024+PADQ(q))
            src=x("dQ" if kind=="q" else "dO")
            if q: A(f"v_add_u32 {x('dT')}, {q*step}, {src}"); src=x("dT")
            A(f"global_load_lds_dwordx4 {src}, {sp(p)} {FL[o['wfl']]}")
        else:
            hi=q//4
            if kind=="v": setm0(sWo,buf+hi*4096+PADQ(q))
            else: setm0(sWk,buf+hi*4096)
            src=x("dK" if kind=="k" else "dV")
            if kind=="k" and q: A(f"v_xor_b32 {x('dT')}, {q*32}, {src}"); src=x("dT")
            if hi: A(f"v_add_u32 {x('dT')}, 4096, {src}"); src=x("dT")
            A(f"global_load_lds_dwordx4 {src}, {sp(p)} offset:{(q%4)*1024} {FL[o['kfl']]}")
        vm(f"{kind}{X}{q}")
    def stream(n):
        while ns[0]<n:
            k,X,q=ORDER[ns[0]]; dma(k,X,q); ns[0]+=1
    tgt=[0]; SK=o['sk'] if isinstance(o['sk'],tuple) else (o['sk'],)*6; skc=[SK[0]]
    def slot(k=None):
        n=min(tgt[0],ns[0]+(k or skc[0]))
        while ns[0]<n:
            kk,X,q=ORDER[ns[0]]
            if X=="B" and freeAt.get(kk,99)>nbar[0]: break
            dma(kk,X,q); ns[0]+=1
    def trreads(buf,abase):
        A(f"v_add_u32 {x('dT')}, {buf}, {x('tT')}")
        ws=8192+(32 if pad else 0)
        for s in range(4):
            for t in range(2):
                for u in range(2):
                    A(f"ds_read_b64_tr_b16 {ar(abase+(t*4+s)*4+2*u,2)}, {x('dT')} offset:{s*ws+u*1024+8*t}")
    def kreads(abase):
        for s in range(4):
            A(f"v_xor_b32 {x('dT')}, {64*s}, {x('tK')}")
            for t in range(2): A(f"ds_read_b128 {ar(abase+(t*4+s)*4,4)}, {x('dT')} offset:{256*t}")
    def move(groups):
        tr=[g for g in groups if g[0]!="k"]
        for k,X in groups:
            if k=="k": waitfor(f"k{X}7"); kreads(AQ[X]+32)
        if tr:
            k,X=tr[-1]; waitfor(f"{k}{X}7"); A("s_barrier")
            for k,X in tr: trreads(BUF[k],AQ[X]+{"q":0,"v":64,"o":96}[k])
        for k,X in groups: moved.add((k,X)); freeAt[k]=nbar[0]+1
    def mf(d,a,b,c): A(f"v_mfma_f32_16x16x32_bf16 {d}, {a}, {b}, {c}")
    def chk(rs,first=True):
        rs=list(rs); c=x("chk")
        if first:
            A(f"v_max3_u32 {c}, v{rs[0]}, v{rs[1]}, v{rs[2]}"); rs=rs[3:]
        while len(rs)>=2: A(f"v_max3_u32 {c}, {c}, v{rs[0]}, v{rs[1]}"); rs=rs[2:]
        if rs: A(f"v_max_u32 {c}, {c}, v{rs[0]}")
    q4=lambda n:list(range(r[n],r[n]+4))
    DP="row_mask:0xf bank_mask:0xf"
    def pack_store(mask,addr,base,four):
        if four:
            A(f"v_cvt_pk_bf16_f32 {x('t0')}, {x('tA')}, {x('tB')}")
            for k in (0,1,2,3): A(f"v_mov_b32_dpp {x('P',k)}, {x('t0')} quad_perm:[{k},{k},{k},{k}] {DP}")
        else:
            A(f"v_cvt_pk_bf16_f32 {x('P')}, {x('tA')}, {x('tB')}")
            for k in (1,2,3): A(f"v_mov_b32_dpp {x('P',k)}, {x('P')} quad_perm:[{k},{k},{k},{k}] {DP}")
        A(f"s_mov_b64 exec, {mask}\nglobal_store_dwordx4 {x(addr)}, {R('P')}, {sp(base)} sc1\ns_mov_b64 exec, -1"); vm("P")
    A(HDR.rstrip("\n"))
    A(f"; @launch grid=(256,1,1) block=(256,1,1) lds={LDSSZ}")
    A(f'.amdgcn_target "amdgcn-amd-amdhsa--gfx950"\n.text\n.globl {name}_kernel\n.p2align 8\n.type {name}_kernel,@function\n{name}_kernel:')
    A("s_cmp_ge_u32 s2, 256\ns_cbranch_scc1 L_end")
    A("s_load_dwordx16 s[4:19], s[0:1], 0\ns_load_dwordx8 s[20:27], s[0:1], 64\ns_load_dwordx2 s[28:29], s[0:1], 96")
    if o["pf"]:
        A(f"s_getpc_b64 s[58:59]\nL_pc:\nv_lshlrev_b32 {x('t0')}, 6, v0\nv_min_u32 {x('t0')}, L_end-L_pc, {x('t0')}")
        A(f"v_add_co_u32 {x('pa')}, vcc, s58, {x('t0')}\nv_mov_b32 {x('t0')}, s59\nv_addc_co_u32 {x('pa',1)}, vcc, 0, {x('t0')}, vcc")
        A(f"global_load_dword {x('chk')}, {R('pa',2)}, off"); vm("pf")
    if diag: A("s_memrealtime s[98:99]\ns_memtime s[74:75]")
    A(f"v_lshrrev_b32 {x('t0')}, 6, v0\nv_mov_b32 {x('tid')}, v0\nv_and_b32 v0, 63, v0\nv_and_b32 {x('n')}, 15, v0\nv_readfirstlane_b32 s{sW}, {x('t0')}")
    if o["loc"]:
        A(f"s_and_b32 s{sL}, s2, 7\ns_lshr_b32 s{sG}, s{sL}, 1\ns_lshr_b32 s{sM}, s2, 3")
    else:
        A(f"s_bfe_u32 s{sG}, s2, 0x20001\ns_bfe_u32 s57, s2, 0x10003\ns_lshl_b32 s{sL}, s{sG}, 1\ns_or_b32 s{sL}, s{sL}, s57")
        A(f"s_and_b32 s57, s2, 1\ns_lshl_b32 s57, s57, 4\ns_lshr_b32 s{sM}, s2, 4\ns_or_b32 s{sM}, s{sM}, s57")
    A(f"s_lshr_b32 s{sR}, s{sM}, 2\ns_and_b32 s{sI}, s{sM}, 3\ns_lshr_b32 s{sI2}, s{sM}, 3\ns_and_b32 s{sCB}, s{sM}, 7")
    A(f"v_lshrrev_b32 {x('g')}, 4, v0")
    A(f"v_lshlrev_b32 {x('t0')}, 2, {x('g')}\nv_xor_b32 {x('t0')}, {x('n')}, {x('t0')}\nv_lshlrev_b32 {x('t1')}, 4, {x('t0')}")
    A(f"s_lshl_b32 s57, s{sR}, 20\ns_lshl_b32 s58, s{sW}, 18\ns_add_u32 s57, s57, s58\ns_lshl_b32 s58, s{sL}, 10\ns_add_u32 s57, s57, s58\ns_lshl_b32 s58, s{sI}, 8\ns_add_u32 s57, s57, s58")
    A(f"v_lshl_add_u32 {x('dQ')}, {x('g')}, 13, {x('t1')}\nv_add_u32 {x('dQ')}, s57, {x('dQ')}")
    A(f"s_mul_i32 s{sWo}, s{sW}, {8192+(32 if pad else 0)}\ns_lshl_b32 s{sWk}, s{sW}, 13")
    A(f"s_lshl_b32 s62, s{sL}, 16\ns_lshl_b32 s57, s{sM}, 8\ns_add_u32 s62, s62, s57")
    A(f"s_lshl_b32 s63, s{sL}, 2\ns_add_u32 s63, s63, s{sI2}\ns_lshl_b32 s63, s63, 8\ns_lshl_b32 s57, s{sCB}, 14\ns_add_u32 s63, s63, s57\ns_add_u32 s63, s63, {P1*16384}")
    A(f"s_lshl_b32 s57, s{sL}, 14\ns_add_u32 s64, s57, {P2*16384}\ns_add_u32 s66, s57, {PS_*16384}")
    A(f"s_lshl_b32 s68, s{sI}, 3\ns_add_u32 s68, s68, s{sR}\ns_lshl_b32 s69, s68, 7\ns_lshl_b32 s68, s68, 8\ns_add_u32 s65, s68, s64\ns_add_u32 s69, s69, s66")
    A(f"s_lshl_b32 s67, s{sM}, 7\ns_add_u32 s67, s67, s66\ns_add_u32 s67, s67, 4096")
    A(f"s_add_u32 s57, s{sWk}, s62\ns_add_u32 s58, s65, {LAY+(PC-P2)*16384}\ns_add_u32 s59, s63, 8192")
    A(f"s_cmp_eq_u32 s{sW}, 2\ns_cselect_b32 s61, s63, s58\ns_cselect_b32 s59, s59, s69\ns_cselect_b32 s68, s65, s67\ns_cselect_b32 s60, s65, s58\ns_cselect_b32 s58, 0, {8192-128}\ns_add_u32 s60, s60, 8192")
    A(f"v_lshlrev_b32 {x('t3')}, 4, {x('n')}\nv_lshrrev_b32 {x('t4')}, 3, {x('n')}\nv_mul_lo_u32 {x('t4')}, {x('t4')}, s58\nv_add_u32 {x('t4')}, {x('t4')}, {x('t3')}")
    A(f"v_add_u32 {x('aR')}, s61, {x('t3')}\nv_add_u32 {x('t0')}, s59, {x('t4')}\nv_cmp_le_u32 vcc, 16, v0\nv_cndmask_b32 {x('aR')}, {x('aR')}, {x('t0')}, vcc")
    A(f"v_add_u32 {x('t0')}, s68, {x('t4')}\nv_cmp_le_u32 vcc, 32, v0\nv_cndmask_b32 {x('aR')}, {x('aR')}, {x('t0')}, vcc")
    A(f"v_add_u32 {x('t0')}, s60, {x('t3')}\nv_cmp_le_u32 vcc, 48, v0\nv_cndmask_b32 {x('aR')}, {x('aR')}, {x('t0')}, vcc")
    A(f"v_lshl_add_u32 {x('t0')}, {x('g')}, 14, {x('t3')}\nv_add_u32 {x('t0')}, s57, {x('t0')}\nv_cmp_gt_u32 vcc, 128, {x('tid')}\nv_cndmask_b32 {x('aR')}, {x('aR')}, {x('t0')}, vcc")
    for k in range(4): A(f"v_mov_b32 {x('Neg',k)}, -1")
    A(f"v_and_b32 {x('t2')}, 1, {x('g')}\nv_lshlrev_b32 {x('t2')}, 3, {x('t2')}\nv_lshl_add_u32 {x('t2')}, {x('n')}, 4, {x('t2')}")
    A(f"s_lshl_b32 s57, s{sR}, 8\nv_add_u32 {x('t3')}, s57, {x('t2')}")
    A(f"s_lshl_b32 s57, s{sG}, 24\ns_lshl_b32 s58, s{sM}, 15\ns_add_u32 s57, s57, s58\ns_add_u32 s57, s57, s{sWk}\ns_add_u32 s57, s57, {61440*256}")
    A(f"v_lshrrev_b32 {x('t0')}, 5, v0\nv_xor_b32 {x('t0')}, {x('n')}, {x('t0')}\nv_lshlrev_b32 {x('t0')}, 4, {x('t0')}\nv_lshl_add_u32 {x('dK')}, {x('g')}, 8, {x('t0')}\nv_add_u32 {x('dK')}, s57, {x('dK')}")
    A(f"v_lshl_add_u32 {x('dV')}, {x('g')}, 8, {x('t1')}\nv_add_u32 {x('dV')}, s57, {x('dV')}")
    vt=o["pol"]<0
    A(f"s_getreg_b32 s{sSide}, hwreg(HW_REG_XCC_ID, 2, 1)")
    if vt:
        A(f"s_and_b32 s73, s{sW}, 1\ns_lshl_b32 s58, s2, 1\ns_add_u32 s57, s73, s58\ns_lshr_b32 s58, s57, 6\ns_lshl_b32 s58, s58, 14\ns_and_b32 s57, s57, 63\ns_lshl_b32 s57, s57, 7\ns_add_u32 s57, s57, s58")
        A(f"s_lshr_b32 s58, s{sW}, 1\ns_lshl_b32 s58, s58, 21\ns_add_u32 s57, s57, s58\ns_lshl_b32 s58, s73, 13\ns_add_u32 s57, s57, s58\ns_add_u32 s60, s57, {PC*16384}\ns_xor_b32 s61, s60, 0x2000")
        A(f"s_mov_b32 s84, 0x5bd1e995\ns_not_b32 s85, s84\ns_mov_b64 s[88:89], s[84:85]\ns_xor_b32 s73, s73, s{sSide}\ns_lshl_b32 s73, s73, 1\ns_sub_u32 s73, s73, 1")
    A("s_waitcnt lgkmcnt(0)")
    if diag: A("s_memrealtime s[76:77]")
    A("s_add_u32 s28, s28, 0x1fffff\ns_addc_u32 s29, s29, 0\ns_and_b32 s28, s28, 0xffe00000")
    A(f"s_add_u32 s58, s28, {NONCE}\ns_addc_u32 s59, s29, 0\ns_load_dword s{sTag}, s[58:59], 0")
    A(f"global_store_dwordx4 {x('aR')}, {R('Neg')}, s[28:29] sc1"); vm("R1")
    stream(8)
    A(f"global_load_dwordx2 {R('c01',2)}, {x('t3')}, s[4:5]"); vm("x")
    if vt: A(f"s_add_u32 s82, s28, s60\ns_addc_u32 s83, s29, 0\ns_add_u32 s90, s28, s61\ns_addc_u32 s91, s29, 0")
    stream(min(o["n0"],24))
    A(f"s_lshl_b32 s57, s{sL}, 5\ns_add_u32 s57, s57, s{sM}\ns_lshl_b32 s57, s57, 7\ns_lshl_b32 s58, s{sW}, 4\ns_add_u32 s57, s57, s58\ns_add_u32 s57, s57, {FLG}\nv_mov_b32 {x('aFl')}, s57")
    def flag():
        waitfor("R1")
        A("s_waitcnt lgkmcnt(0)")
        A(f"s_mul_i32 s{sTag}, s{sTag}, 0x9e3779b1\ns_add_u32 s{sTag}, s{sTag}, 0x7f4a7c15\nv_mov_b32 {x('fl')}, s{sTag}")
        A(f"s_mov_b64 exec, 1\nglobal_store_dword {x('aFl')}, {x('fl')}, s[28:29] sc1\ns_mov_b64 exec, -1"); vm("flag")
        if diag: A("s_memrealtime s[78:79]\ns_waitcnt lgkmcnt(0)")
    def probe():
        if vt:
            if o["fe"]: A("s_waitcnt lgkmcnt(0)")
            A(f"s_load_dwordx2 s[86:87], s[82:83], 0\ns_load_dwordx2 s[88:89], s[90:91], 0")
            A(f"s_waitcnt lgkmcnt(2)\ns_cmp_eq_u64 s[88:89], s[84:85]\ns_cselect_b32 s73, s73, 0\nv_mov_b32 {x('fl',1)}, s73")
            A(f"s_mov_b64 exec, 1\nglobal_store_dwordx2 {x('aFl')}, {R('fl',2)}, s[28:29] offset:8 sc1\ns_mov_b64 exec, -1"); vm("vote")
    if o["fe"]: flag()
    A(f"s_lshl_b32 s57, s{sL}, 20\ns_lshl_b32 s58, s{sI2}, 18\ns_add_u32 s57, s57, s58\ns_lshl_b32 s58, s{sW}, 16\ns_add_u32 s57, s57, s58\ns_lshl_b32 s58, s{sCB}, 8\ns_add_u32 s57, s57, s58")
    A(f"v_lshl_add_u32 {x('dO')}, {x('g')}, 11, {x('t1')}\nv_add_u32 {x('dO')}, s57, {x('dO')}")
    stream(o["n0"])
    A(f"v_lshlrev_b32 {x('t0')}, 4, v0\ns_lshl_b32 s57, s{sW}, 11\nv_add_u32 {x('t0')}, s57, {x('t0')}")
    A(f"s_lshl_b32 s57, s{sR}, 14\ns_add_u32 s57, s57, {P1*16384}\nv_add_u32 {x('aG1')}, s57, {x('t0')}")
    A(f"v_add_u32 {x('aG2')}, s64, {x('t0')}\nv_add_u32 {x('aC2')}, {LAY+(PC-P2)*16384}, {x('aG2')}")
    A(f"s_lshl_b32 s57, s{sI2}, 14\ns_lshl_b32 s58, s{sL}, 16\ns_add_u32 s57, s57, s58\nv_add_u32 {x('aG3')}, s57, {x('t0')}")
    A(f"v_bfe_u32 {x('t0')}, v0, 1, 3\nv_and_b32 {x('t4')}, 1, v0\nv_lshlrev_b32 {x('t5')}, 4, {x('t4')}\nv_lshl_add_u32 {x('t0')}, {x('t0')}, 7, {x('t5')}")
    A(f"s_lshl_b32 s57, s{sW}, 10\ns_add_u32 s57, s57, s66\nv_add_u32 {x('aS2')}, s57, {x('t0')}")
    A(f"v_lshlrev_b32 {x('t5')}, 13, {x('t4')}\ns_lshl_b32 s58, s{sW}, 3\ns_add_u32 s59, s58, s69\nv_add_u32 {x('aPS2')}, s59, {x('t5')}\ns_add_u32 s59, s58, s67\nv_add_u32 {x('aPS3')}, s59, {x('t5')}")
    A(f"v_lshl_add_u32 {x('t4')}, {x('t4')}, 2, {x('g')}\nv_and_b32 {x('t0')}, 7, v0\nv_and_b32 {x('t3')}, 8, v0\nv_cmp_ne_u32 vcc, 0, {x('t3')}\nv_cndmask_b32 {x('t4')}, {x('t0')}, {x('t4')}, vcc")
    A(f"s_lshl_b32 s58, s{sI2}, 3\ns_add_u32 s57, s57, s58\ns_add_u32 s57, s57, 4096\nv_lshl_add_u32 {x('aS3')}, {x('t4')}, 7, s57")
    A(f"s_lshl_b32 s57, s{sL}, 5\ns_add_u32 s57, s57, s{sW}\nv_lshl_add_u32 {x('t4')}, {x('t0')}, 2, s57")
    A(f"v_lshlrev_b32 {x('t3')}, 3, {x('t0')}\ns_lshl_b32 s57, s{sW}, 6\ns_add_u32 s57, s57, s{sR}\nv_add_u32 {x('t3')}, s57, {x('t3')}")
    A(f"v_cndmask_b32 {x('t4')}, {x('t4')}, {x('t3')}, vcc\nv_lshlrev_b32 {x('t4')}, 7, {x('t4')}\nv_lshl_add_u32 {x('t4')}, {x('g')}, 4, {x('t4')}\nv_add_u32 {x('aF')}, {FLG}, {x('t4')}")
    A(f"v_bfe_u32 {x('t3')}, v0, 2, 2\nv_lshlrev_b32 {x('t3')}, 4, {x('t3')}\ns_lshl_b32 s57, s{sW}, 6\nv_add_u32 {x('t3')}, s57, {x('t3')}")
    A(f"v_and_b32 {x('t4')}, 1, {x('g')}")
    A(f"v_lshl_add_u32 {x('t0')}, {x('t4')}, 13, {x('t3')}\nv_add_u32 {x('aP1')}, s63, {x('t0')}")
    A(f"v_add_u32 {x('t3')}, {x('t3')}, {x('t5')}\nv_mul_u32_u24 {x('t0')}, {LAY+(PC-P2)*16384}, {x('t4')}\nv_add3_u32 {x('aP2')}, {x('t0')}, s65, {x('t3')}")
    A(f"v_lshl_add_u32 {x('t0')}, {x('g')}, 14, {x('t3')}\nv_add_u32 {x('aP3')}, s62, {x('t0')}")
    A(f"s_mov_b32 s{mP3}, 0x33333333\ns_mov_b32 s{mP3+1}, 0x33333333")
    A(f"s_lshl_b32 s57, s{sW}, 4\ns_lshl_b64 {sp(mS3)}, 3, s57")
    A(f"s_cmp_eq_u32 s{sW}, 3\ns_cselect_b32 s{mRs}, 0xffff0000, -1\ns_cselect_b32 s{mRs+1}, 0xffff, -1")
    A(f"s_mov_b32 s{sPerm}, 0x03020302\ns_mov_b32 s{sTo}, 0\ns_mov_b32 s{sRt}, 0")
    for l in (1,2,3): A(f"s_add_u32 s{sPub[l]}, s28, {l*LAY}\ns_addc_u32 s{sPub[l]+1}, s29, 0")
    def gatbases(h0,h1):
        for l in range(4): A(f"s_add_u32 s{sGat[l]}, s{sPub[l]}, s{h1 if l>1 else h0}\ns_addc_u32 s{sGat[l]+1}, s{sPub[l]+1}, 0")
    if not vt:
        A(f"s_xor_b32 s57, s{sSide}, {o['pol']&1}\ns_lshl_b32 s57, s57, 13\ns_xor_b32 s58, s{sSide}, {o['pol']>>1}\ns_lshl_b32 s58, s58, 13"); gatbases(57,58)
    else:
        A(f"s_xor_b32 s57, s{sSide}, {o['p0']}\ns_lshl_b32 s57, s57, 13\ns_add_u32 s{sGat[0]}, s28, s57\ns_addc_u32 s{sGat[0]+1}, s29, 0")
    A(f"s_mul_i32 s57, s{sW}, {RS}\nv_add_u32 {x('xW')}, s57, {x('t2')}")
    A(f"v_lshlrev_b32 {x('xFr')}, 1, {x('t2')}\nv_add_u32 {x('xFr')}, {XF}, {x('xFr')}\ns_mul_i32 s57, s{sW}, {FS}\nv_add_u32 {x('xFw')}, s57, {x('xFr')}")
    A(f"v_lshlrev_b32 {x('t0')}, 4, {x('g')}")
    A(f"v_min_u32 {x('t4')}, 5, {x('n')}\nv_mul_u32_u24 {x('t4')}, {RS}, {x('t4')}\nv_add_u32 {x('rQ')}, {x('t4')}, {x('t0')}\ns_lshl_b32 s57, s{sW}, 6\nv_add_u32 {x('rG')}, s57, {x('rQ')}")
    A(f"v_and_b32 {x('t4')}, 3, {x('n')}\nv_lshrrev_b32 {x('t5')}, 2, {x('n')}")
    A(f"v_mul_u32_u24 {x('rO')}, {RS}, {x('t4')}\nv_add_u32 {x('rO')}, {x('rO')}, {x('t0')}\nv_add_u32 {x('rO')}, {XO}, {x('rO')}")
    A(f"v_mul_u32_u24 {x('t3')}, {RS}, {x('t5')}\nv_add_u32 {x('t3')}, {x('t3')}, {x('t0')}\nv_add_u32 {x('t1')}, {ZERO}, {x('t0')}")
    for X in "AB":
        A(f"v_add_u32 {x('rA'+X)}, {XC[X]}, {x('t3')}\nv_cmp_eq_u32 vcc, 1, {x('t4')}\nv_cndmask_b32 {x('rA'+X)}, {x('t1')}, {x('rA'+X)}, vcc")
        A(f"v_add_u32 {x('dT')}, {XA}, {x('t3')}\nv_cmp_eq_u32 vcc, 0, {x('t4')}\nv_cndmask_b32 {x('rA'+X)}, {x('rA'+X)}, {x('dT')}, vcc")
    A(f"v_lshl_add_u32 {x('t3')}, {x('t4')}, 2, {x('t5')}\nv_mul_u32_u24 {x('t3')}, {PS}, {x('t3')}\nv_add_u32 {x('t3')}, {x('t3')}, {x('t0')}\nv_add_u32 {x('rPl')}, {XP}, {x('t3')}")
    for s in range(4): A(f"v_add_u32 {x('dT')}, {o.get('zp',(0,0,0,0))[s]}, {x('t1')}\nv_cmp_eq_u32 vcc, {s}, {x('t4')}\nv_cndmask_b32 {x('rP%d'%s)}, {x('dT')}, {x('rPl')}, vcc")
    A(f"s_lshl_b32 s57, s{sW}, 2\nv_add_u32 {x('t3')}, s57, {x('g')}\nv_mul_u32_u24 {x('t3')}, {PS}, {x('t3')}\nv_lshl_add_u32 {x('t3')}, {x('n')}, 2, {x('t3')}\nv_add_u32 {x('pW')}, {XP}, {x('t3')}")
    A(f"v_add_u32 {x('mR')}, {XM}, {x('t0')}\nv_add_u32 {x('mW')}, s57, {x('mR')}")
    A(f"s_lshl_b32 s57, s{sW}, 3\ns_add_u32 s57, s57, {XR}\nv_mov_b32 {x('lW')}, s57\nv_mov_b32 {x('lR')}, {XR}")
    A(f"s_lshl_b32 s57, s{sW}, 2\nv_add_u32 {x('t3')}, s57, {x('t4')}\nv_lshlrev_b32 {x('t1')}, 2, {x('t5')}\nv_xor_b32 {x('t3')}, {x('t3')}, {x('t1')}\nv_lshlrev_b32 {x('t3')}, 4, {x('t3')}")
    A(f"v_lshl_add_u32 {x('t1')}, {x('g')}, 3, {x('t5')}\nv_lshl_add_u32 {x('tT')}, {x('t1')}, 8, {x('t3')}")
    if pad: A(f"v_lshl_add_u32 {x('tT')}, {x('g')}, 3, {x('tT')}")
    A(f"v_xor_b32 {x('t3')}, {x('g')}, {x('n')}\nv_lshlrev_b32 {x('t3')}, 4, {x('t3')}\nv_lshl_add_u32 {x('t3')}, {x('n')}, 9, {x('t3')}\ns_add_u32 s57, s{sWk}, {BUFK}\nv_add_u32 {x('tK')}, s57, {x('t3')}")
    A(f"v_and_b32 {x('t3')}, 1, {x('t5')}\nv_lshlrev_b32 {x('t3')}, 4, {x('t3')}\nv_mov_b32 {x('t1')}, 0xffff\nv_lshlrev_b32 {x('t1')}, {x('t3')}, {x('t1')}")
    for e in range(4):
        A(f"v_cmp_eq_u32 vcc, {e}, {x('t4')}\nv_cndmask_b32 {x('Msk',e)}, 0, {x('t1')}, vcc\nv_mov_b32 {x('One',e)}, 0x3f803f80\nv_and_b32 {x('Sel',e)}, 0x3f803f80, {x('Msk',e)}")
    A(f"v_lshlrev_b32 {x('t3')}, 2, v0\nv_mov_b32 {x('t1')}, 0\nds_write_b32 {x('t3')}, {x('One')} offset:{ONES}\nds_write_b32 {x('t3')}, {x('t1')} offset:{ZERO}\nds_write_b32 {x('t3')}, {x('t1')} offset:{ZERO+32}")
    A(f"v_lshrrev_b32 {x('t5')}, 5, v0\nv_lshlrev_b32 {x('t5')}, 2, {x('t5')}\nds_write_b32 {x('t5')}, {x('t1')} offset:{XV}")
    if not o["fe"]: flag()
    probe()
    if diag: A(f"v_mov_b32 {x('stamp')}, 0\ns_waitcnt lgkmcnt(0)\nv_writelane_b32 {x('stamp')}, s98, 0\nv_writelane_b32 {x('stamp')}, s76, 1\nv_writelane_b32 {x('stamp')}, s78, 2")
    waitfor("x")
    if diag: A("s_memrealtime s[76:77]")
    def loadF(): A(f"global_load_dword {x('fF')}, {x('aF')}, s[28:29] sc1"); vm("F")
    if "F" not in o["e0"]:
        assert o["n0"]<=o["fpos"]<=o["n1"]
        stream(o["fpos"]); loadF()
    A(f"v_lshlrev_b32 {x('D')}, 16, {x('c01')}\nv_and_b32 {x('D',1)}, 0xffff0000, {x('c01')}\nv_lshlrev_b32 {x('D',2)}, 16, {x('c01',1)}\nv_and_b32 {x('D',3)}, 0xffff0000, {x('c01',1)}")
    A("s_barrier")
    trreads(BUFQ,AQ["A"]); moved.add(("q","A")); freeAt["q"]=nbar[0]+1
    for k in range(4): A(f"v_mul_f32 {x('D',k)}, {hex(f2u(0.25))}, {x('D',k)}")
    stream(o["n1"])
    if diag: A(f"s_waitcnt lgkmcnt(0)\nv_writelane_b32 {x('stamp')}, s76, 3")
    NEED={0:[("k","A"),("v","A")],1:[("o","A")],2:[("q","B")],3:[("k","B"),("v","B")],4:[("o","B")]}
    fchk=[0]
    def retry(lab,back,e):
        A(f"{lab}:\ns_sleep {slp}\ns_add_u32 s{sTo}, s{sTo}, 1")
        if diag: A(f"s_add_u32 s{sRt}, s{sRt}, {1<<(8*e)}")
        A(f"s_cmp_lt_u32 s{sTo}, {TMO}\ns_cbranch_scc0 L_fail")
    def edge(e,gather,check,kind,st):
        m0v[0]=None
        def checkF():
            waitfor("F")
            A(f"L_fc:\nv_cmp_ne_u32 vcc, s{sTag}, {x('fF')}\ns_cbranch_vccnz L_fr")
            cur[0]=OOL; retry("L_fr",None,3); A(f"global_load_dword {x('fF')}, {x('aF')}, s[28:29] sc1\ns_waitcnt vmcnt(0)\ns_branch L_fc"); cur[0]=L
            fchk[0]=1
        if e<5:
            ng=None
            for tk in o["e%d"%e].split("_"):
                c,a=tk[0],tk[1:]
                if c=="L": stream(int(a))
                elif c=="P":
                    n,D=map(int,a.split("."))
                    while ns[0]<n:
                        if ns[0]>=D: k,X,q=ORDER[ns[0]-D]; waitfor(f"{k}{X}{q}")
                        stream(ns[0]+1)
                elif c=="W": k,X,q=ORDER[int(a)]; waitfor(f"{k}{X}{q}")
                elif c=="A": waitfor("P")
                elif c=="S": A(f"s_sleep {a}")
                elif c=="M": move([(k,X) for (k,X,q) in ORDER[:int(a)] if q==7 and (k,X) not in moved])
                elif c=="B": bar()
                elif c=="F": loadF()
                elif c=="C": checkF()
                elif c=="G":
                    if not fchk[0]: checkF()
                    stamp(st); gather(True); ng=ns[0]
                    if e==0 and vt: A(f"global_load_dwordx2 {R('fl',2)}, {x('aF')}, s[28:29] offset:8 sc1"); vm("V")
                else: raise Exception(tk)
            for g_ in NEED[e]: assert ORDER.index((g_[0],g_[1],7))<ns[0], ("weights not issued",e,g_)
            move([g_ for g_ in NEED[e] if g_ not in moved])
            tgt[0]=o["spr"][e]; skc[0]=SK[e+1]
        else:
            d=o["d"][e-5]
            if d<0: A("s_waitcnt vmcnt(0)")
            elif d>0: A(f"s_sleep {d}")
            stamp(st); gather(True)
        A(f"L_c{e}:")
        check(f"L_r{e}")
        cur[0]=OOL; retry(f"L_r{e}",None,kind); gather(False); A(f"s_waitcnt vmcnt(0)\ns_branch L_c{e}"); cur[0]=L
        m0v[0]=None
    def ld(sim,tag,w,dst,addr,base,off=0):
        A(f"global_load_dwordx{w} {R(dst,w)}, {x(addr)}, {sp(base)}"+(f" offset:{off}" if off else "")+" sc1")
        if sim: vm(tag)
    def fin(fail): A(f"v_cmp_eq_u32 vcc, -1, {x('chk')}\ns_cbranch_vccnz {fail}")
    def rowsum():
        A(f"v_pk_add_f32 {R('tA',2)}, {R('T0',2)}, {vr(r['T0']+2,2)}\nv_add_f32 {x('tA')}, {x('tA')}, {x('tA',1)}")
        A(f"v_pk_add_f32 {R('tB',2)}, {R('T1',2)}, {vr(r['T1']+2,2)}\nv_add_f32 {x('tB')}, {x('tB')}, {x('tB',1)}")
    def sumF():
        for h in (0,2):
            A(f"v_pk_add_f32 {vr(r['F0']+h,2)}, {vr(r['F0']+h,2)}, {vr(r['F1']+h,2)}\nv_pk_add_f32 {vr(r['F2']+h,2)}, {vr(r['F2']+h,2)}, {vr(r['F3']+h,2)}\nv_pk_add_f32 {vr(r['F0']+h,2)}, {vr(r['F0']+h,2)}, {vr(r['F2']+h,2)}")
        A(f"v_cvt_pk_bf16_f32 {x('c01')}, {x('F0')}, {x('F0',1)}\nv_cvt_pk_bf16_f32 {x('c01',1)}, {x('F0',2)}, {x('F0',3)}")
    def cvtD(T='D'): A(f"v_cvt_pk_bf16_f32 {x('c01')}, {x(T)}, {x(T,1)}\nv_cvt_pk_bf16_f32 {x('c01',1)}, {x(T,2)}, {x(T,3)}")
    def E1(e,l):
        def g(sim): ld(sim,"g0",4,'G0','aG1',sGat[l-1]); ld(sim,"g1",4,'G1','aG1',sGat[l-1],1024)
        def c(fail):
            waitfor("g0"); mf(R('D'),R('Sel'),R('G0'),R('X4')); chk(q4('G0')); waitfor("g1"); mf(R('D'),R('Sel'),R('G1'),R('D')); chk(q4('G1'),False); fin(fail)
        edge(e,g,c,0,0)
    tgt[0]=o["spq"]
    for l in range(4):
        X="AB"[l&1]; a0=AQ[X]; it=l>>1
        if l: E1(3*l-1,l)
        stamp(1)
        cvtD()
        A(f"ds_write_b64 {x('xW')}, {R('c01',2)} offset:{XQ}")
        slot(); bar()
        A(f"ds_read_b128 {R('Ag')}, {x('rG')}")
        for s in range(4): A(f"ds_read_b128 {R('A%d'%s)}, {x('rQ')} offset:{64*s}")
        slot()
        A("s_waitcnt lgkmcnt(4)"); mf(R('Tg'),R('Ag'),R('Ag'),"0")
        ex=["","","",
            f"v_add_f32 {x('st')}, {x('Tg')}, {x('Tg',1)}\nv_add_f32 {x('st',1)}, {x('Tg',2)}, {x('Tg',3)}",
            f"v_add_f32 {x('st')}, {x('st')}, {x('st',1)}",
            f"v_add_f32_dpp {x('st')}, {x('st')}, {x('st')} quad_perm:[1,0,3,2] {DP}",
            f"v_add_f32_dpp {x('st')}, {x('st')}, {x('st')} quad_perm:[2,3,0,1] {DP}",
            f"v_mov_b32_dpp {x('st',1)}, {x('st')} row_shl:4 {DP}"]
        for s in range(4):
            A(f"s_waitcnt lgkmcnt({3-s})")
            for t in range(2):
                mf(R('T%d'%t),R('A%d'%s),ar(a0+(t*4+s)*4,4),R('T%d'%t) if s else "0")
                if ex[2*s+t]: A(ex[2*s+t])
            if s<3: slot()
        A(f"s_mov_b64 exec, 3\nglobal_store_dwordx2 {x('aPS2')}, {R('st',2)}, {sp(sPub[l])} sc1\ns_mov_b64 exec, -1"); vm("P")
        rowsum()
        pack_store("0x3333" if it else "0x11113333","aP2",sPub[l],True)
        stamp(2)
        A(f"ds_write_b128 {x('xFw')}, {R('D')}")
        if l<3: A(f"s_mov_b64 exec, {sp(mRs)}\nglobal_store_dwordx4 {x('aR')}, {R('Neg')}, {sp(sPub[l+1])} sc1\ns_mov_b64 exec, -1"); vm("R")
        if l==0:
            A(f"v_and_b32 {x('t0')}, 1, {x('g')}\nv_mul_u32_u24 {x('t0')}, {LAY-8192}, {x('t0')}\nv_sub_u32 {x('aP2')}, {x('aP2')}, {x('t0')}")
        def g(sim):
            if not it: ld(sim,"c0",4,'C0','aC2',28); ld(sim,"c1",4,'C1','aC2',28,1024)
            ld(sim,"g0",4,'G0','aG2',sGat[l]); ld(sim,"g1",4,'G1','aG2',sGat[l],1024); ld(sim,"g2",4,'S','aS2',sGat[l])
        def c(fail):
            if not it:
                waitfor("c1"); mf(R('T0'),R('Sel'),R('C0'),"0"); chk(q4('C0')+q4('C1')[:1]); mf(R('T0'),R('Sel'),R('C1'),R('T0')); chk(q4('C1')[1:],False)
            waitfor("g0"); mf(R('D'),R('Sel'),R('G0'),"0"); chk(q4('G0'),bool(it)); waitfor("g1"); mf(R('D'),R('Sel'),R('G1'),R('D')); chk(q4('G1'),False)
            waitfor("g2"); chk(q4('S'),False); fin(fail)
        edge(3*l,g,c,1,3)
        stamp(4)
        if not it:
            cvtD('T0'); A(f"ds_write_b64 {x('xW')}, {R('c01',2)} offset:{XC[X]}")
        A(f"v_add_f32 {x('st',1)}, {x('S',1)}, {x('S',3)}\nv_add_f32 {x('st')}, {x('S')}, {x('S',2)}")
        cvtD()
        A(f"ds_write_b64 {x('xW')}, {R('c01',2)} offset:{XA}")
        if l==0: A(f"v_add_u32 {x('aC2')}, 8192, {x('aC2')}")
        for k in (1,2): A(f"v_add_f32_dpp {x('st',1)}, {x('st',1)}, {x('st',1)} row_ror:{k} {DP}\nv_add_f32_dpp {x('st')}, {x('st')}, {x('st')} row_ror:{k} {DP}")
        slot(); bar()
        for s in range(4): A(f"ds_read_b128 {R('A%d'%s)}, {x('rA'+X)} offset:{64*s}")
        stamp(5)
        for k in (4,8): A(f"v_add_f32_dpp {x('st',1)}, {x('st',1)}, {x('st',1)} row_ror:{k} {DP}\nv_add_f32_dpp {x('st')}, {x('st')}, {x('st')} row_ror:{k} {DP}")
        slot()
        ex=[f"v_mul_f32 {x('ab',1)}, {hex(f2u(-1/1024))}, {x('st',1)}",
            f"v_mul_f32 {x('t0')}, {x('ab',1)}, {x('ab',1)}",
            f"v_mul_f32 {x('t1')}, {hex(f2u(1/1024))}, {x('st')}",
            f"v_sub_f32 {x('t1')}, {x('t1')}, {x('t0')}",
            f"v_max_f32 {x('t1')}, 0, {x('t1')}",
            f"v_add_f32 {x('t1')}, {hex(f2u(1e-5))}, {x('t1')}",
            f"v_rsq_f32 {x('t1')}, {x('t1')}",
            f"v_mul_f32 {x('ab')}, {hex(f2u(128**-0.5*1.4426950408889634))}, {x('t1')}"]
        for s in range(4):
            A(f"s_waitcnt lgkmcnt({3-s})")
            for t in range(2):
                mf(R('T%d'%t),R('A%d'%s),ar(a0+32+(t*4+s)*4,4),R('T%d'%t) if s else "0"); A(ex[2*s+t])
            slot()
        A(f"v_fma_f32 {x('tA')}, {x('T0',1)}, {x('ab',1)}, {x('T0')}\nv_fma_f32 {x('tB')}, {x('T1',1)}, {x('ab',1)}, {x('T1')}")
        A(f"v_max_f32 {x('t0')}, {x('tA')}, {x('tB')}")
        for k in (1,2,4,8): A(f"v_max_f32_dpp {x('t0')}, {x('t0')}, {x('t0')} row_ror:{k} {DP}")
        A(f"v_mul_f32 {x('t0')}, {x('t0')}, {x('ab')}\nv_ceil_f32 {x('t0')}, {x('t0')}")
        A(f"v_fma_f32 {x('tA')}, {x('tA')}, {x('ab')}, -{x('t0')}\nv_fma_f32 {x('tB')}, {x('tB')}, {x('ab')}, -{x('t0')}")
        A(f"v_exp_f32 {x('tA')}, {x('tA')}\nv_exp_f32 {x('tB')}, {x('tB')}\nds_write_b32 {x('mW')}, {x('t0')}")
        A(f"v_cvt_pk_bf16_f32 {x('t1')}, {x('tA')}, {x('tB')}\nds_write_b32 {x('pW')}, {x('t1')}")
        if l==0 and vt:
            waitfor("V"); A(f"v_cmp_eq_u32 vcc, s{sTag}, {x('fl')}\nv_cndmask_b32 {x('fl',1)}, 0, {x('fl',1)}, vcc\nds_add_u32 {x('t5')}, {x('fl',1)} offset:{XV}")
        slot(); bar()
        A(f"ds_read_b128 {R('A0')}, {x('rP0')}\nds_read_b128 {R('W4')}, {x('mR')}")
        for s in range(1,4): A(f"ds_read_b128 {R('A%d'%s)}, {x('rP%d'%s)}")
        A(f"ds_read_b128 {R('Ag')}, {x('rPl')}")
        stamp(6); slot()
        A(f"s_waitcnt lgkmcnt(5)")
        mf(R('T0'),R('A0'),ar(a0+64,4),"0"); A(f"s_waitcnt lgkmcnt(4)\nv_max3_f32 {x('st')}, {x('W4')}, {x('W4',1)}, {x('W4',2)}")
        mf(R('T1'),R('A0'),ar(a0+64+16,4),"0"); A(f"v_max_f32 {x('st')}, {x('st')}, {x('W4',3)}\ns_waitcnt lgkmcnt(3)")
        mf(R('T0'),R('A1'),ar(a0+64+4,4),R('T0')); A(f"v_sub_f32 {x('W4')}, {x('W4')}, {x('st')}\nv_sub_f32 {x('W4',1)}, {x('W4',1)}, {x('st')}")
        mf(R('T1'),R('A1'),ar(a0+64+20,4),R('T1')); A(f"v_exp_f32 {x('W4')}, {x('W4')}\ns_waitcnt lgkmcnt(0)")
        mf(R('Tg'),R('Ag'),R('One'),"0"); A(f"v_exp_f32 {x('W4',1)}, {x('W4',1)}")
        mf(R('T0'),R('A2'),ar(a0+64+8,4),R('T0')); A(f"v_sub_f32 {x('W4',2)}, {x('W4',2)}, {x('st')}\nv_sub_f32 {x('W4',3)}, {x('W4',3)}, {x('st')}")
        mf(R('T1'),R('A2'),ar(a0+64+24,4),R('T1')); A(f"v_exp_f32 {x('W4',2)}, {x('W4',2)}")
        mf(R('T0'),R('A3'),ar(a0+64+12,4),R('T0')); A(f"v_exp_f32 {x('W4',3)}, {x('W4',3)}")
        mf(R('T1'),R('A3'),ar(a0+64+28,4),R('T1'))
        def comb(dst,T):
            A(f"v_pk_mul_f32 {R(dst,2)}, {R(T,2)}, {R('W4',2)}\nv_pk_fma_f32 {R(dst,2)}, {vr(r[T]+2,2)}, {vr(r['W4']+2,2)}, {R(dst,2)}\nv_add_f32 {x(dst)}, {x(dst)}, {x(dst,1)}")
        A(f"v_pk_mul_f32 {R('ab',2)}, {R('Tg',2)}, {R('W4',2)}\nv_pk_fma_f32 {R('ab',2)}, {vr(r['Tg']+2,2)}, {vr(r['W4']+2,2)}, {R('ab',2)}\nv_add_f32 {x('st',1)}, {x('ab')}, {x('ab',1)}")
        A(f"s_mov_b64 exec, {sp(mS3)}\nglobal_store_dwordx2 {x('aPS3')}, {R('st',2)}, {sp(sPub[l])} sc1\ns_mov_b64 exec, -1"); vm("P")
        comb('tA','T0'); comb('tB','T1')
        pack_store(sp(mP3),"aP3",sPub[l],True)
        stamp(7)
        for k in range(4): A(f"ds_read_b128 {R('F%d'%k)}, {x('xFr')} offset:{k*FS}")
        if l==0 and vt: A(f"ds_read_b64 {R('pa',2)}, {x('lR')} offset:{XV-XR}")
        A("s_waitcnt lgkmcnt(0)")
        if l==0 and vt:
            A(f"v_readfirstlane_b32 s57, {x('pa')}\nv_readfirstlane_b32 s58, {x('pa',1)}")
            if diag: A(f"s_and_b32 s59, s57, 0xffff\ns_lshl_b32 s60, s58, 16\ns_or_b32 s59, s59, s60\nv_writelane_b32 {x('stamp')}, s59, 16")
            A(f"s_cmp_gt_i32 s57, 0\ns_cselect_b32 s57, 1, 0\ns_xor_b32 s57, s57, s{sSide}\ns_lshl_b32 s57, s57, 13")
            A(f"s_cmp_gt_i32 s58, 0\ns_cselect_b32 s58, 1, 0\ns_xor_b32 s58, s58, s{sSide}\ns_lshl_b32 s58, s58, 13"); gatbases(57,58)
        sumF()
        A(f"v_lshlrev_b32 {x('X4')}, 16, {x('c01')}\nv_and_b32 {x('X4',1)}, 0xffff0000, {x('c01')}\nv_lshlrev_b32 {x('X4',2)}, 16, {x('c01',1)}\nv_and_b32 {x('X4',3)}, 0xffff0000, {x('c01',1)}")
        for k in range(4): A(f"v_mul_f32 {x('X4',k)}, {hex(f2u(0.25))}, {x('X4',k)}")
        def g(sim):
            ld(sim,"g2",2,'S','aS3',sGat[l]); ld(sim,"g0",4,'G0','aG3',sGat[l]); ld(sim,"g1",4,'G1','aG3',sGat[l],1024)
        def c(fail):
            waitfor("g2")
            A(f"v_max_f32_dpp {x('st')}, {x('S')}, {x('S')} quad_perm:[1,0,3,2] {DP}")
            A(f"v_max_u32 {x('chk')}, {x('S')}, {x('S',1)}")
            A(f"v_max_f32_dpp {x('st')}, {x('st')}, {x('st')} quad_perm:[2,3,0,1] {DP}")
            A(f"v_max_f32_dpp {x('st')}, {x('st')}, {x('st')} row_half_mirror {DP}")
            A(f"v_subrev_f32_dpp {x('t0')}, {x('st')}, {x('S')} row_newbcast:0 {DP}")
            A(f"v_exp_f32 {x('t0')}, {x('t0')}")
            waitfor("g0"); chk(q4('G0'),False)
            A(f"v_perm_b32 {x('t1')}, {x('t0')}, {x('t0')}, s{sPerm}\nv_mul_f32 {x('st',1)}, {x('t0')}, {x('S',1)}")
            for e in range(4): A(f"v_and_b32_dpp {x('A0',e)}, {x('t1')}, {x('Msk',e)} row_newbcast:8 {DP}")
            for e in range(2): A(f"v_and_b32_dpp {x('A1',e)}, {x('t1')}, {x('Msk',e)} row_newbcast:9 {DP}")
            mf(R('D'),R('A0'),R('G0'),"0")
            for e in range(2,4): A(f"v_and_b32_dpp {x('A1',e)}, {x('t1')}, {x('Msk',e)} row_newbcast:9 {DP}")
            A(f"v_add_f32_dpp {x('st',1)}, {x('st',1)}, {x('st',1)} quad_perm:[1,0,3,2] {DP}")
            waitfor("g1")
            mf(R('D'),R('A1'),R('G1'),R('D'))
            chk(q4('G1'),False)
            A(f"v_add_f32_dpp {x('st',1)}, {x('st',1)}, {x('st',1)} quad_perm:[2,3,0,1] {DP}")
            A(f"v_cmp_eq_u32 vcc, -1, {x('chk')}")
            A(f"v_add_f32_dpp {x('st',1)}, {x('st',1)}, {x('st',1)} row_half_mirror {DP}")
            A(f"s_cbranch_vccnz {fail}")
        edge(3*l+1,g,c,2,8)
        stamp(9)
        A(f"s_mov_b64 exec, 1\nds_write_b64 {x('lW')}, {R('st',2)}\ns_mov_b64 exec, -1")
        cvtD()
        A(f"ds_write_b64 {x('xW')}, {R('c01',2)} offset:{XO}")
        slot(); bar()
        A(f"ds_read_b128 {R('A0')}, {x('rO')}\nds_read_b128 {R('F0')}, {x('lR')}\nds_read_b128 {R('F1')}, {x('lR')} offset:16")
        for s in range(1,4): A(f"ds_read_b128 {R('A%d'%s)}, {x('rO')} offset:{64*s}")
        stamp(10); slot()
        Ms=[x('F0'),x('F0',2),x('F1'),x('F1',2)]; Ls=[x('F0',1),x('F0',3),x('F1',1),x('F1',3)]
        ex=[f"s_waitcnt lgkmcnt(3)\nv_max3_f32 {x('t0')}, {Ms[0]}, {Ms[1]}, {Ms[2]}",
            f"v_max_f32 {x('t0')}, {x('t0')}, {Ms[3]}\nv_sub_f32 {x('W4')}, {Ms[0]}, {x('t0')}",
            f"v_sub_f32 {x('W4',1)}, {Ms[1]}, {x('t0')}\nv_exp_f32 {x('W4')}, {x('W4')}",
            f"v_sub_f32 {x('W4',2)}, {Ms[2]}, {x('t0')}\nv_exp_f32 {x('W4',1)}, {x('W4',1)}",
            f"v_sub_f32 {x('W4',3)}, {Ms[3]}, {x('t0')}\nv_exp_f32 {x('W4',2)}, {x('W4',2)}",
            f"v_mul_f32 {x('t1')}, {x('W4')}, {Ls[0]}\nv_exp_f32 {x('W4',3)}, {x('W4',3)}",
            f"v_fma_f32 {x('t1')}, {x('W4',1)}, {Ls[1]}, {x('t1')}\nv_fma_f32 {x('t1')}, {x('W4',2)}, {Ls[2]}, {x('t1')}",
            f"v_fma_f32 {x('t1')}, {x('W4',3)}, {Ls[3]}, {x('t1')}\nv_rcp_f32 {x('t1')}, {x('t1')}"]
        for s in range(4):
            A(f"s_waitcnt lgkmcnt({[5,2,1,0][s]})")
            for t in range(2):
                mf(R('T%d'%t),R('A%d'%s),ar(a0+96+(t*4+s)*4,4),R('T%d'%t) if s else "0"); A(ex[2*s+t])
            if s<3: slot()
        A(f"v_pk_mul_f32 {R('tA',2)}, {R('T0',2)}, {R('W4',2)}\nv_pk_fma_f32 {R('tA',2)}, {vr(r['T0']+2,2)}, {vr(r['W4']+2,2)}, {R('tA',2)}\nv_add_f32 {x('tA')}, {x('tA')}, {x('tA',1)}")
        A(f"v_pk_mul_f32 {R('tB',2)}, {R('T1',2)}, {R('W4',2)}\nv_pk_fma_f32 {R('tB',2)}, {vr(r['T1']+2,2)}, {vr(r['W4']+2,2)}, {R('tB',2)}\nv_mul_f32 {x('tA')}, {x('tA')}, {x('t1')}\nv_add_f32 {x('tB')}, {x('tB')}, {x('tB',1)}\nv_mul_f32 {x('tB')}, {x('tB')}, {x('t1')}")
        pack_store("0x11111111","aP1",sPub[l],False)
        stamp(11)
        flush(l)
    A(f"s_lshl_b32 s57, s{sL}, 2\ns_cmp_eq_u32 s57, s{sM}\ns_cbranch_scc0 L_fail")
    A(f"s_lshl_b32 s57, s{sR}, 8\nv_add_u32 {x('t3')}, s57, {x('t2')}\nv_mov_b32 {x('t4')}, {NONCE}\nv_mov_b32 {x('fl')}, s{sTag}")
    E1(11,4)
    stamp(0)
    A(f"ds_write_b128 {x('xFw')}, {R('D')}"); bar()
    if diag: A(f"v_writelane_b32 {x('stamp')}, s76, 60")
    for k in range(4): A(f"ds_read_b128 {R('F%d'%k)}, {x('xFr')} offset:{k*FS}")
    A(f"s_cmp_eq_u32 s{sW}, 0\ns_cbranch_scc0 L_fail")
    A("s_waitcnt lgkmcnt(0)")
    sumF()
    A(f"s_mov_b32 exec_hi, 0\nglobal_store_dwordx2 {x('t3')}, {R('c01',2)}, s[24:25]")
    A(f"s_cmp_eq_u32 s{sL}, 0\ns_cbranch_scc0 L_fail")
    A(f"s_mov_b64 exec, 1\nglobal_store_dword {x('t4')}, {x('fl')}, s[28:29] sc1")
    A("L_fail:")
    if diag:
        A("s_mov_b64 exec, -1\ns_memrealtime s[76:77]\ns_memtime s[78:79]\ns_waitcnt lgkmcnt(0)\ns_sub_u32 s78, s78, s74")
        A(f"v_writelane_b32 {x('stamp')}, s76, 61\nv_writelane_b32 {x('stamp')}, s78, 62\nv_writelane_b32 {x('stamp')}, s{sTo}, 63")
        A(f"s_lshl_b32 s57, s2, 10\ns_lshl_b32 s58, s{sW}, 8\ns_add_u32 s57, s57, s58\ns_add_u32 s57, s57, {DIAG}\nv_lshl_add_u32 {x('t0')}, v0, 2, s57\nglobal_store_dword {x('t0')}, {x('stamp')}, s[28:29]")
    A("s_endpgm")
    L.extend(OOL)
    A("L_end:\ns_endpgm")
    assert V.n<=256 and ns[0]==64
    A(f'.section .rodata,"a"\n.p2align 6\n.amdhsa_kernel {name}_kernel\n  .amdhsa_next_free_vgpr 512\n  .amdhsa_next_free_sgpr 102\n  .amdhsa_accum_offset 256\n  .amdhsa_group_segment_fixed_size 0\n  .amdhsa_kernarg_size 104\n  .amdhsa_user_sgpr_count 2\n  .amdhsa_user_sgpr_kernarg_segment_ptr 1\n  .amdhsa_system_sgpr_workgroup_id_x 1\n.end_amdhsa_kernel')
    out,n=fix(L,verbose=("-v" in sys.argv))
    return "\n".join(out)+"\n"
def parse(args):
    kw={}
    for a in args:
        if "=" in a:
            k,val=a.split("="); kw[k]=val if k[0]=="e" else (tuple(int(z) for z in val.split(",")) if "," in val else int(val))
    return kw
if __name__=="__main__":
    t=gen(**parse(sys.argv[2:]))
    if "diag=1" in sys.argv: t+="; args: "+" ".join(a for a in sys.argv[2:] if a!="diag=1")+"\n"
    open(sys.argv[1],"w").write(t)
```

```python
import sys, math, struct
from hz import fix
NAME="interleave_layers__sliding_block_cached__sliding_block_cached__decode"
HDR=open("cdna_kernels/%s.s.ref"%NAME).read().split("; Override launch")[0]
def f2u(x): return struct.unpack("<I",struct.pack("<f",x))[0]
RS=288
XQ=0; ONES=4*RS; ZERO=5*RS
XA=6*RS; XC={"A":10*RS+32,"B":14*RS+32+128}; XO=19*RS; XP=23*RS; PS=96
XM=XP+16*PS; XR=XM+64; XF=XR+32; FS=528; XV=XF+4*FS
BS=0x8000+128
BUFK=0x2c00; BUFQ=BUFK+0x8000; BUFV=BUFQ+BS; BUFO=BUFV+BS; LDSSZ=BUFO+BS
assert XV+16<=BUFK and BUFK%256==0 and XF%16==0 and XC["B"]+4*RS<=XO+32
LAY=1<<20; FLG=4<<20; NONCE=FLG+0x10000; DIAG=6<<20
P3,P2,P1,PS_,PC=0,32,40,48,56
class Regs:
    def __init__(s,n0): s.n=n0; s.d={}
    def __call__(s,name,k=1,al=1):
        s.n=(s.n+al-1)//al*al; s.d[name]=s.n; s.n+=k; return s.d[name]
ORDER=[(k,X,q) for X in "AB" for k in "qkvo" for q in range(8)]
DEF=dict(diag=0, TMO=30000, slp=2, pol=-1, fe=0, p0=0, loc=0, wfl=0, kfl=0, pad=1, pf=1,
         n0=8, n1=12, fpos=8,
         e0="P24.8_W21_G_L27", e1="L32_W29_G_L35", e2="L40_W37_G_L46", e3="L56_W53_G_L59", e4="L64_W61_G",
         spr=(27,35,46,59,64), spq=12, sk=1,
         d=(-1,-1,-1,-1,-1,-1,-1))
FL=['nt','','sc1','sc0 sc1','sc1 nt','sc0']
def gen(name=NAME, **kw):
    o=dict(DEF); o.update(kw); diag=o["diag"]; TMO=o["TMO"]; slp=o["slp"]; pad=o["pad"]
    L=[]; OOL=[]; cur=[L]
    def A(t):
        for x in t.split("\n"): cur[0].append(x)
    V=Regs(1)
    v=lambda i:f"v{i}"
    vr=lambda i,k:f"v[{i}:{i+k-1}]"
    ar=lambda i,k:f"a[{i}:{i+k-1}]"
    sp=lambda i:f"s[{i}:{i+1}]"
    for n in "Sel Msk One X4 G0 G1 S C0 C1 D T0 T1 Tg Ag A0 A1 A2 A3 P W4 F0 F1 F2 F3 Neg".split(): V(n,4,4)
    for n in "c01 st ab tA tB pa fl".split(): V(n,2,2)
    for n in ("aG1 aG2 aS2 aC2 aG3 aS3 aP2 aPS2 aP3 aPS3 aP1 aR aF aFl dQ dK dV dO dT xW xFw xFr rQ rG rAA rAB rP0 rP1 rP2 rP3 rPl pW mW mR rO lW lR "
              "tT tK tid n g t0 t1 t2 t3 t4 t5 chk fF stamp").split(): V(n)
    r=V.d
    R=lambda n,k=4:vr(r[n],k)
    x=lambda n,o=0:v(r[n]+o)
    AQ={"A":0,"B":128}
    PTR={"A":dict(k=6,v=8,q=10,o=12),"B":dict(k=16,v=18,q=20,o=22)}
    BUF={"q":BUFQ,"k":BUFK,"v":BUFV,"o":BUFO}
    sW,sL,sM,sR,sI,sI2,sCB,sG=30,31,32,33,34,35,36,37
    sPub=[28,38,40,42]; sGat=[44,46,48,50]
    mP3,mS3,mRs=52,54,70
    sTo,sTag,sRt,sPerm,sWk,sWo,sSide=27,26,14,15,3,56,72
    Q=[]
    def vm(tag): Q.append(tag)
    def cnt(tag):
        idx=max(i for i,t in enumerate(Q) if t==tag); n=len(Q)-1-idx; assert n<64; return n
    def waitfor(tag): A(f"s_waitcnt vmcnt({cnt(tag)})")
    curl=[0]
    def stamp(k):
        if diag: A(f"s_memrealtime s[{76+2*k}:{77+2*k}]")
        if o.get("hx")==curl[0]*100+k: A("s_memrealtime s[96:97]")
    def flush(l):
        if not diag: return
        A("s_waitcnt lgkmcnt(0)")
        for k in range(12):
            if l or k: A(f"v_writelane_b32 {x('stamp')}, s{76+2*k}, {4+14*l+k}")
        A(f"v_writelane_b32 {x('stamp')}, s{sRt}, {4+14*l+13}\ns_mov_b32 s{sRt}, 0")
    PADQ=lambda q:(8*(q>>1) if pad else 0)
    ns=[0]; freeAt={}; moved=set(); nbar=[0]; m0v=[None]
    def bar():
        A("s_waitcnt lgkmcnt(0)\ns_barrier"); nbar[0]+=1
    def setm0(sreg,val):
        if m0v[0]!=(sreg,val): A(f"s_add_u32 m0, s{sreg}, {val}"); m0v[0]=(sreg,val)
    def dma(kind,X,q):
        p=PTR[X][kind]; buf=BUF[kind]
        if X=="B": assert kind in freeAt and freeAt[kind]<=nbar[0], ("buffer busy",kind,nbar[0])
        if kind in "qo":
            step=32768 if kind=="q" else 8192
            setm0(sWo,buf+q*1024+PADQ(q))
            src=x("dQ" if kind=="q" else "dO")
            if q: A(f"v_add_u32 {x('dT')}, {q*step}, {src}"); src=x("dT")
            A(f"global_load_lds_dwordx4 {src}, {sp(p)} {FL[o['wfl']]}")
        else:
            hi=q//4
            if kind=="v": setm0(sWo,buf+hi*4096+PADQ(q))
            else: setm0(sWk,buf+hi*4096)
            src=x("dK" if kind=="k" else "dV")
            if kind=="k" and q: A(f"v_xor_b32 {x('dT')}, {q*32}, {src}"); src=x("dT")
            if hi: A(f"v_add_u32 {x('dT')}, 4096, {src}"); src=x("dT")
            A(f"global_load_lds_dwordx4 {src}, {sp(p)} offset:{(q%4)*1024} {FL[o['kfl']]}")
        vm(f"{kind}{X}{q}")
    def stream(n):
        while ns[0]<n:
            k,X,q=ORDER[ns[0]]; dma(k,X,q); ns[0]+=1
    tgt=[0]; SK=o['sk'] if isinstance(o['sk'],tuple) else (o['sk'],)*6; skc=[SK[0]]
    def slot(k=None):
        n=min(tgt[0],ns[0]+(k or skc[0]))
        while ns[0]<n:
            kk,X,q=ORDER[ns[0]]
            if X=="B" and freeAt.get(kk,99)>nbar[0]: break
            dma(kk,X,q); ns[0]+=1
    def trreads(buf,abase):
        A(f"v_add_u32 {x('dT')}, {buf}, {x('tT')}")
        ws=8192+(32 if pad else 0)
        for s in range(4):
            for t in range(2):
                for u in range(2):
                    A(f"ds_read_b64_tr_b16 {ar(abase+(t*4+s)*4+2*u,2)}, {x('dT')} offset:{s*ws+u*1024+8*t}")
    def kreads(abase):
        for s in range(4):
            A(f"v_xor_b32 {x('dT')}, {64*s}, {x('tK')}")
            for t in range(2): A(f"ds_read_b128 {ar(abase+(t*4+s)*4,4)}, {x('dT')} offset:{256*t}")
    def move(groups):
        tr=[g for g in groups if g[0]!="k"]
        for k,X in groups:
            if k=="k": waitfor(f"k{X}7"); kreads(AQ[X]+32)
        if tr:
            k,X=tr[-1]; waitfor(f"{k}{X}7"); A("s_barrier")
            for k,X in tr: trreads(BUF[k],AQ[X]+{"q":0,"v":64,"o":96}[k])
        for k,X in groups: moved.add((k,X)); freeAt[k]=nbar[0]+1
    def mf(d,a,b,c): A(f"v_mfma_f32_16x16x32_bf16 {d}, {a}, {b}, {c}")
    def chk(rs,first=True):
        rs=list(rs); c=x("chk")
        if first:
            A(f"v_max3_u32 {c}, v{rs[0]}, v{rs[1]}, v{rs[2]}"); rs=rs[3:]
        while len(rs)>=2: A(f"v_max3_u32 {c}, {c}, v{rs[0]}, v{rs[1]}"); rs=rs[2:]
        if rs: A(f"v_max_u32 {c}, {c}, v{rs[0]}")
    q4=lambda n:list(range(r[n],r[n]+4))
    DP="row_mask:0xf bank_mask:0xf"
    def pack_store(mask,addr,base,four):
        if four:
            A(f"v_cvt_pk_bf16_f32 {x('t0')}, {x('tA')}, {x('tB')}")
            for k in (0,1,2,3): A(f"v_mov_b32_dpp {x('P',k)}, {x('t0')} quad_perm:[{k},{k},{k},{k}] {DP}")
        else:
            A(f"v_cvt_pk_bf16_f32 {x('P')}, {x('tA')}, {x('tB')}")
            for k in (1,2,3): A(f"v_mov_b32_dpp {x('P',k)}, {x('P')} quad_perm:[{k},{k},{k},{k}] {DP}")
        A(f"s_mov_b64 exec, {mask}\nglobal_store_dwordx4 {x(addr)}, {R('P')}, {sp(base)} sc1\ns_mov_b64 exec, -1"); vm("P")
    A(HDR.rstrip("\n"))
    A(f"; @launch grid=(256,1,1) block=(256,1,1) lds={LDSSZ}")
    A(f'.amdgcn_target "amdgcn-amd-amdhsa--gfx950"\n.text\n.globl {name}_kernel\n.p2align 8\n.type {name}_kernel,@function\n{name}_kernel:')
    A("s_cmp_ge_u32 s2, 256\ns_cbranch_scc1 L_end")
    A("s_load_dwordx16 s[4:19], s[0:1], 0\ns_load_dwordx8 s[20:27], s[0:1], 64\ns_load_dwordx2 s[28:29], s[0:1], 96")
    if o["pf"]:
        A(f"s_getpc_b64 s[58:59]\nL_pc:\nv_lshlrev_b32 {x('t0')}, 6, v0\nv_min_u32 {x('t0')}, L_end-L_pc, {x('t0')}")
        A(f"v_add_co_u32 {x('pa')}, vcc, s58, {x('t0')}\nv_mov_b32 {x('t0')}, s59\nv_addc_co_u32 {x('pa',1)}, vcc, 0, {x('t0')}, vcc")
        A(f"global_load_dword {x('chk')}, {R('pa',2)}, off"); vm("pf")
    if diag: A("s_memrealtime s[98:99]\ns_memtime s[74:75]")
    if "hx" in o: A("s_memrealtime s[96:97]")
    A(f"v_lshrrev_b32 {x('t0')}, 6, v0\nv_mov_b32 {x('tid')}, v0\nv_and_b32 v0, 63, v0\nv_and_b32 {x('n')}, 15, v0\nv_readfirstlane_b32 s{sW}, {x('t0')}")
    if o["loc"]:
        A(f"s_and_b32 s{sL}, s2, 7\ns_lshr_b32 s{sG}, s{sL}, 1\ns_lshr_b32 s{sM}, s2, 3")
    else:
        A(f"s_bfe_u32 s{sG}, s2, 0x20001\ns_bfe_u32 s57, s2, 0x10003\ns_lshl_b32 s{sL}, s{sG}, 1\ns_or_b32 s{sL}, s{sL}, s57")
        A(f"s_and_b32 s57, s2, 1\ns_lshl_b32 s57, s57, 4\ns_lshr_b32 s{sM}, s2, 4\ns_or_b32 s{sM}, s{sM}, s57")
    A(f"s_lshr_b32 s{sR}, s{sM}, 2\ns_and_b32 s{sI}, s{sM}, 3\ns_lshr_b32 s{sI2}, s{sM}, 3\ns_and_b32 s{sCB}, s{sM}, 7")
    A(f"v_lshrrev_b32 {x('g')}, 4, v0")
    A(f"v_lshlrev_b32 {x('t0')}, 2, {x('g')}\nv_xor_b32 {x('t0')}, {x('n')}, {x('t0')}\nv_lshlrev_b32 {x('t1')}, 4, {x('t0')}")
    A(f"s_lshl_b32 s57, s{sR}, 20\ns_lshl_b32 s58, s{sW}, 18\ns_add_u32 s57, s57, s58\ns_lshl_b32 s58, s{sL}, 10\ns_add_u32 s57, s57, s58\ns_lshl_b32 s58, s{sI}, 8\ns_add_u32 s57, s57, s58")
    A(f"v_lshl_add_u32 {x('dQ')}, {x('g')}, 13, {x('t1')}\nv_add_u32 {x('dQ')}, s57, {x('dQ')}")
    A(f"s_mul_i32 s{sWo}, s{sW}, {8192+(32 if pad else 0)}\ns_lshl_b32 s{sWk}, s{sW}, 13")
    A(f"s_lshl_b32 s62, s{sL}, 16\ns_lshl_b32 s57, s{sM}, 8\ns_add_u32 s62, s62, s57")
    A(f"s_lshl_b32 s63, s{sL}, 2\ns_add_u32 s63, s63, s{sI2}\ns_lshl_b32 s63, s63, 8\ns_lshl_b32 s57, s{sCB}, 14\ns_add_u32 s63, s63, s57\ns_add_u32 s63, s63, {P1*16384}")
    A(f"s_lshl_b32 s57, s{sL}, 14\ns_add_u32 s64, s57, {P2*16384}\ns_add_u32 s66, s57, {PS_*16384}")
    A(f"s_lshl_b32 s68, s{sI}, 3\ns_add_u32 s68, s68, s{sR}\ns_lshl_b32 s69, s68, 7\ns_lshl_b32 s68, s68, 8\ns_add_u32 s65, s68, s64\ns_add_u32 s69, s69, s66")
    A(f"s_lshl_b32 s67, s{sM}, 7\ns_add_u32 s67, s67, s66\ns_add_u32 s67, s67, 4096")
    A(f"s_add_u32 s57, s{sWk}, s62\ns_add_u32 s58, s65, {LAY+(PC-P2)*16384}\ns_add_u32 s59, s63, 8192")
    A(f"s_cmp_eq_u32 s{sW}, 2\ns_cselect_b32 s61, s63, s58\ns_cselect_b32 s59, s59, s69\ns_cselect_b32 s68, s65, s67\ns_cselect_b32 s60, s65, s58\ns_cselect_b32 s58, 0, {8192-128}\ns_add_u32 s60, s60, 8192")
    A(f"v_lshlrev_b32 {x('t3')}, 4, {x('n')}\nv_lshrrev_b32 {x('t4')}, 3, {x('n')}\nv_mul_lo_u32 {x('t4')}, {x('t4')}, s58\nv_add_u32 {x('t4')}, {x('t4')}, {x('t3')}")
    A(f"v_add_u32 {x('aR')}, s61, {x('t3')}\nv_add_u32 {x('t0')}, s59, {x('t4')}\nv_cmp_le_u32 vcc, 16, v0\nv_cndmask_b32 {x('aR')}, {x('aR')}, {x('t0')}, vcc")
    A(f"v_add_u32 {x('t0')}, s68, {x('t4')}\nv_cmp_le_u32 vcc, 32, v0\nv_cndmask_b32 {x('aR')}, {x('aR')}, {x('t0')}, vcc")
    A(f"v_add_u32 {x('t0')}, s60, {x('t3')}\nv_cmp_le_u32 vcc, 48, v0\nv_cndmask_b32 {x('aR')}, {x('aR')}, {x('t0')}, vcc")
    A(f"v_lshl_add_u32 {x('t0')}, {x('g')}, 14, {x('t3')}\nv_add_u32 {x('t0')}, s57, {x('t0')}\nv_cmp_gt_u32 vcc, 128, {x('tid')}\nv_cndmask_b32 {x('aR')}, {x('aR')}, {x('t0')}, vcc")
    for k in range(4): A(f"v_mov_b32 {x('Neg',k)}, -1")
    A(f"v_and_b32 {x('t2')}, 1, {x('g')}\nv_lshlrev_b32 {x('t2')}, 3, {x('t2')}\nv_lshl_add_u32 {x('t2')}, {x('n')}, 4, {x('t2')}")
    A(f"s_lshl_b32 s57, s{sR}, 8\nv_add_u32 {x('t3')}, s57, {x('t2')}")
    A(f"s_lshl_b32 s57, s{sG}, 24\ns_lshl_b32 s58, s{sM}, 15\ns_add_u32 s57, s57, s58\ns_add_u32 s57, s57, s{sWk}\ns_add_u32 s57, s57, {61440*256}")
    A(f"v_lshrrev_b32 {x('t0')}, 5, v0\nv_xor_b32 {x('t0')}, {x('n')}, {x('t0')}\nv_lshlrev_b32 {x('t0')}, 4, {x('t0')}\nv_lshl_add_u32 {x('dK')}, {x('g')}, 8, {x('t0')}\nv_add_u32 {x('dK')}, s57, {x('dK')}")
    A(f"v_lshl_add_u32 {x('dV')}, {x('g')}, 8, {x('t1')}\nv_add_u32 {x('dV')}, s57, {x('dV')}")
    vt=o["pol"]<0
    A(f"s_getreg_b32 s{sSide}, hwreg(HW_REG_XCC_ID, 2, 1)")
    if vt:
        A(f"s_and_b32 s73, s{sW}, 1\ns_lshl_b32 s58, s2, 1\ns_add_u32 s57, s73, s58\ns_lshr_b32 s58, s57, 6\ns_lshl_b32 s58, s58, 14\ns_and_b32 s57, s57, 63\ns_lshl_b32 s57, s57, 7\ns_add_u32 s57, s57, s58")
        A(f"s_lshr_b32 s58, s{sW}, 1\ns_lshl_b32 s58, s58, 21\ns_add_u32 s57, s57, s58\ns_lshl_b32 s58, s73, 13\ns_add_u32 s57, s57, s58\ns_add_u32 s60, s57, {PC*16384}\ns_xor_b32 s61, s60, 0x2000")
        A(f"s_mov_b32 s84, 0x5bd1e995\ns_not_b32 s85, s84\ns_mov_b64 s[88:89], s[84:85]\ns_xor_b32 s73, s73, s{sSide}\ns_lshl_b32 s73, s73, 1\ns_sub_u32 s73, s73, 1")
    A("s_waitcnt lgkmcnt(0)")
    if diag: A("s_memrealtime s[76:77]")
    A("s_add_u32 s28, s28, 0x1fffff\ns_addc_u32 s29, s29, 0\ns_and_b32 s28, s28, 0xffe00000")
    A(f"s_add_u32 s58, s28, {NONCE}\ns_addc_u32 s59, s29, 0\ns_load_dword s{sTag}, s[58:59], 0")
    A(f"global_store_dwordx4 {x('aR')}, {R('Neg')}, s[28:29] sc1"); vm("R1")
    stream(8)
    A(f"global_load_dwordx2 {R('c01',2)}, {x('t3')}, s[4:5]"); vm("x")
    if vt: A(f"s_add_u32 s82, s28, s60\ns_addc_u32 s83, s29, 0\ns_add_u32 s90, s28, s61\ns_addc_u32 s91, s29, 0")
    stream(min(o["n0"],24))
    A(f"s_lshl_b32 s57, s{sL}, 5\ns_add_u32 s57, s57, s{sM}\ns_lshl_b32 s57, s57, 7\ns_lshl_b32 s58, s{sW}, 4\ns_add_u32 s57, s57, s58\ns_add_u32 s57, s57, {FLG}\nv_mov_b32 {x('aFl')}, s57")
    def flag():
        waitfor("R1")
        A("s_waitcnt lgkmcnt(0)")
        A(f"s_mul_i32 s{sTag}, s{sTag}, 0x9e3779b1\ns_add_u32 s{sTag}, s{sTag}, 0x7f4a7c15\nv_mov_b32 {x('fl')}, s{sTag}")
        A(f"s_mov_b64 exec, 1\nglobal_store_dword {x('aFl')}, {x('fl')}, s[28:29] sc1\ns_mov_b64 exec, -1"); vm("flag")
        if diag: A("s_memrealtime s[78:79]\ns_waitcnt lgkmcnt(0)")
    def probe():
        if vt:
            if o["fe"]: A("s_waitcnt lgkmcnt(0)")
            A(f"s_load_dwordx2 s[86:87], s[82:83], 0\ns_load_dwordx2 s[88:89], s[90:91], 0")
            A(f"s_waitcnt lgkmcnt(2)\ns_cmp_eq_u64 s[88:89], s[84:85]\ns_cselect_b32 s73, s73, 0\nv_mov_b32 {x('fl',1)}, s73")
            A(f"s_mov_b64 exec, 1\nglobal_store_dwordx2 {x('aFl')}, {R('fl',2)}, s[28:29] offset:8 sc1\ns_mov_b64 exec, -1"); vm("vote")
    if o["fe"]: flag()
    A(f"s_lshl_b32 s57, s{sL}, 20\ns_lshl_b32 s58, s{sI2}, 18\ns_add_u32 s57, s57, s58\ns_lshl_b32 s58, s{sW}, 16\ns_add_u32 s57, s57, s58\ns_lshl_b32 s58, s{sCB}, 8\ns_add_u32 s57, s57, s58")
    A(f"v_lshl_add_u32 {x('dO')}, {x('g')}, 11, {x('t1')}\nv_add_u32 {x('dO')}, s57, {x('dO')}")
    stream(o["n0"])
    A(f"v_lshlrev_b32 {x('t0')}, 4, v0\ns_lshl_b32 s57, s{sW}, 11\nv_add_u32 {x('t0')}, s57, {x('t0')}")
    A(f"s_lshl_b32 s57, s{sR}, 14\ns_add_u32 s57, s57, {P1*16384}\nv_add_u32 {x('aG1')}, s57, {x('t0')}")
    A(f"v_add_u32 {x('aG2')}, s64, {x('t0')}\nv_add_u32 {x('aC2')}, {LAY+(PC-P2)*16384}, {x('aG2')}")
    A(f"s_lshl_b32 s57, s{sI2}, 14\ns_lshl_b32 s58, s{sL}, 16\ns_add_u32 s57, s57, s58\nv_add_u32 {x('aG3')}, s57, {x('t0')}")
    A(f"v_bfe_u32 {x('t0')}, v0, 1, 3\nv_and_b32 {x('t4')}, 1, v0\nv_lshlrev_b32 {x('t5')}, 4, {x('t4')}\nv_lshl_add_u32 {x('t0')}, {x('t0')}, 7, {x('t5')}")
    A(f"s_lshl_b32 s57, s{sW}, 10\ns_add_u32 s57, s57, s66\nv_add_u32 {x('aS2')}, s57, {x('t0')}")
    A(f"v_lshlrev_b32 {x('t5')}, 13, {x('t4')}\ns_lshl_b32 s58, s{sW}, 3\ns_add_u32 s59, s58, s69\nv_add_u32 {x('aPS2')}, s59, {x('t5')}\ns_add_u32 s59, s58, s67\nv_add_u32 {x('aPS3')}, s59, {x('t5')}")
    A(f"v_lshl_add_u32 {x('t4')}, {x('t4')}, 2, {x('g')}\nv_and_b32 {x('t0')}, 7, v0\nv_and_b32 {x('t3')}, 8, v0\nv_cmp_ne_u32 vcc, 0, {x('t3')}\nv_cndmask_b32 {x('t4')}, {x('t0')}, {x('t4')}, vcc")
    A(f"s_lshl_b32 s58, s{sI2}, 3\ns_add_u32 s57, s57, s58\ns_add_u32 s57, s57, 4096\nv_lshl_add_u32 {x('aS3')}, {x('t4')}, 7, s57")
    A(f"s_lshl_b32 s57, s{sL}, 5\ns_add_u32 s57, s57, s{sW}\nv_lshl_add_u32 {x('t4')}, {x('t0')}, 2, s57")
    A(f"v_lshlrev_b32 {x('t3')}, 3, {x('t0')}\ns_lshl_b32 s57, s{sW}, 6\ns_add_u32 s57, s57, s{sR}\nv_add_u32 {x('t3')}, s57, {x('t3')}")
    A(f"v_cndmask_b32 {x('t4')}, {x('t4')}, {x('t3')}, vcc\nv_lshlrev_b32 {x('t4')}, 7, {x('t4')}\nv_lshl_add_u32 {x('t4')}, {x('g')}, 4, {x('t4')}\nv_add_u32 {x('aF')}, {FLG}, {x('t4')}")
    A(f"v_bfe_u32 {x('t3')}, v0, 2, 2\nv_lshlrev_b32 {x('t3')}, 4, {x('t3')}\ns_lshl_b32 s57, s{sW}, 6\nv_add_u32 {x('t3')}, s57, {x('t3')}")
    A(f"v_and_b32 {x('t4')}, 1, {x('g')}")
    A(f"v_lshl_add_u32 {x('t0')}, {x('t4')}, 13, {x('t3')}\nv_add_u32 {x('aP1')}, s63, {x('t0')}")
    A(f"v_add_u32 {x('t3')}, {x('t3')}, {x('t5')}\nv_mul_u32_u24 {x('t0')}, {LAY+(PC-P2)*16384}, {x('t4')}\nv_add3_u32 {x('aP2')}, {x('t0')}, s65, {x('t3')}")
    A(f"v_lshl_add_u32 {x('t0')}, {x('g')}, 14, {x('t3')}\nv_add_u32 {x('aP3')}, s62, {x('t0')}")
    A(f"s_mov_b32 s{mP3}, 0x33333333\ns_mov_b32 s{mP3+1}, 0x33333333")
    A(f"s_lshl_b32 s57, s{sW}, 4\ns_lshl_b64 {sp(mS3)}, 3, s57")
    A(f"s_cmp_eq_u32 s{sW}, 3\ns_cselect_b32 s{mRs}, 0xffff0000, -1\ns_cselect_b32 s{mRs+1}, 0xffff, -1")
    A(f"s_mov_b32 s{sPerm}, 0x03020302\ns_mov_b32 s{sTo}, 0\ns_mov_b32 s{sRt}, 0")
    for l in (1,2,3): A(f"s_add_u32 s{sPub[l]}, s28, {l*LAY}\ns_addc_u32 s{sPub[l]+1}, s29, 0")
    def gatbases(h0,h1):
        for l in range(4): A(f"s_add_u32 s{sGat[l]}, s{sPub[l]}, s{h1 if l>1 else h0}\ns_addc_u32 s{sGat[l]+1}, s{sPub[l]+1}, 0")
    if not vt:
        A(f"s_xor_b32 s57, s{sSide}, {o['pol']&1}\ns_lshl_b32 s57, s57, 13\ns_xor_b32 s58, s{sSide}, {o['pol']>>1}\ns_lshl_b32 s58, s58, 13"); gatbases(57,58)
    else:
        A(f"s_xor_b32 s57, s{sSide}, {o['p0']}\ns_lshl_b32 s57, s57, 13\ns_add_u32 s{sGat[0]}, s28, s57\ns_addc_u32 s{sGat[0]+1}, s29, 0")
    A(f"s_mul_i32 s57, s{sW}, {RS}\nv_add_u32 {x('xW')}, s57, {x('t2')}")
    A(f"v_lshlrev_b32 {x('xFr')}, 1, {x('t2')}\nv_add_u32 {x('xFr')}, {XF}, {x('xFr')}\ns_mul_i32 s57, s{sW}, {FS}\nv_add_u32 {x('xFw')}, s57, {x('xFr')}")
    A(f"v_lshlrev_b32 {x('t0')}, 4, {x('g')}")
    A(f"v_min_u32 {x('t4')}, 5, {x('n')}\nv_mul_u32_u24 {x('t4')}, {RS}, {x('t4')}\nv_add_u32 {x('rQ')}, {x('t4')}, {x('t0')}\ns_lshl_b32 s57, s{sW}, 6\nv_add_u32 {x('rG')}, s57, {x('rQ')}")
    A(f"v_and_b32 {x('t4')}, 3, {x('n')}\nv_lshrrev_b32 {x('t5')}, 2, {x('n')}")
    A(f"v_mul_u32_u24 {x('rO')}, {RS}, {x('t4')}\nv_add_u32 {x('rO')}, {x('rO')}, {x('t0')}\nv_add_u32 {x('rO')}, {XO}, {x('rO')}")
    A(f"v_mul_u32_u24 {x('t3')}, {RS}, {x('t5')}\nv_add_u32 {x('t3')}, {x('t3')}, {x('t0')}\nv_add_u32 {x('t1')}, {ZERO}, {x('t0')}")
    for X in "AB":
        A(f"v_add_u32 {x('rA'+X)}, {XC[X]}, {x('t3')}\nv_cmp_eq_u32 vcc, 1, {x('t4')}\nv_cndmask_b32 {x('rA'+X)}, {x('t1')}, {x('rA'+X)}, vcc")
        A(f"v_add_u32 {x('dT')}, {XA}, {x('t3')}\nv_cmp_eq_u32 vcc, 0, {x('t4')}\nv_cndmask_b32 {x('rA'+X)}, {x('rA'+X)}, {x('dT')}, vcc")
    A(f"v_lshl_add_u32 {x('t3')}, {x('t4')}, 2, {x('t5')}\nv_mul_u32_u24 {x('t3')}, {PS}, {x('t3')}\nv_add_u32 {x('t3')}, {x('t3')}, {x('t0')}\nv_add_u32 {x('rPl')}, {XP}, {x('t3')}")
    for s in range(4): A(f"v_add_u32 {x('dT')}, {o.get('zp',(0,0,0,0))[s]}, {x('t1')}\nv_cmp_eq_u32 vcc, {s}, {x('t4')}\nv_cndmask_b32 {x('rP%d'%s)}, {x('dT')}, {x('rPl')}, vcc")
    A(f"s_lshl_b32 s57, s{sW}, 2\nv_add_u32 {x('t3')}, s57, {x('g')}\nv_mul_u32_u24 {x('t3')}, {PS}, {x('t3')}\nv_lshl_add_u32 {x('t3')}, {x('n')}, 2, {x('t3')}\nv_add_u32 {x('pW')}, {XP}, {x('t3')}")
    A(f"v_add_u32 {x('mR')}, {XM}, {x('t0')}\nv_add_u32 {x('mW')}, s57, {x('mR')}")
    A(f"s_lshl_b32 s57, s{sW}, 3\ns_add_u32 s57, s57, {XR}\nv_mov_b32 {x('lW')}, s57\nv_mov_b32 {x('lR')}, {XR}")
    A(f"s_lshl_b32 s57, s{sW}, 2\nv_add_u32 {x('t3')}, s57, {x('t4')}\nv_lshlrev_b32 {x('t1')}, 2, {x('t5')}\nv_xor_b32 {x('t3')}, {x('t3')}, {x('t1')}\nv_lshlrev_b32 {x('t3')}, 4, {x('t3')}")
    A(f"v_lshl_add_u32 {x('t1')}, {x('g')}, 3, {x('t5')}\nv_lshl_add_u32 {x('tT')}, {x('t1')}, 8, {x('t3')}")
    if pad: A(f"v_lshl_add_u32 {x('tT')}, {x('g')}, 3, {x('tT')}")
    A(f"v_xor_b32 {x('t3')}, {x('g')}, {x('n')}\nv_lshlrev_b32 {x('t3')}, 4, {x('t3')}\nv_lshl_add_u32 {x('t3')}, {x('n')}, 9, {x('t3')}\ns_add_u32 s57, s{sWk}, {BUFK}\nv_add_u32 {x('tK')}, s57, {x('t3')}")
    A(f"v_and_b32 {x('t3')}, 1, {x('t5')}\nv_lshlrev_b32 {x('t3')}, 4, {x('t3')}\nv_mov_b32 {x('t1')}, 0xffff\nv_lshlrev_b32 {x('t1')}, {x('t3')}, {x('t1')}")
    for e in range(4):
        A(f"v_cmp_eq_u32 vcc, {e}, {x('t4')}\nv_cndmask_b32 {x('Msk',e)}, 0, {x('t1')}, vcc\nv_mov_b32 {x('One',e)}, 0x3f803f80\nv_and_b32 {x('Sel',e)}, 0x3f803f80, {x('Msk',e)}")
    A(f"v_lshlrev_b32 {x('t3')}, 2, v0\nv_mov_b32 {x('t1')}, 0\nds_write_b32 {x('t3')}, {x('One')} offset:{ONES}\nds_write_b32 {x('t3')}, {x('t1')} offset:{ZERO}\nds_write_b32 {x('t3')}, {x('t1')} offset:{ZERO+32}")
    A(f"v_lshrrev_b32 {x('t5')}, 5, v0\nv_lshlrev_b32 {x('t5')}, 2, {x('t5')}\nds_write_b32 {x('t5')}, {x('t1')} offset:{XV}")
    if not o["fe"]: flag()
    probe()
    if diag: A(f"v_mov_b32 {x('stamp')}, 0\ns_waitcnt lgkmcnt(0)\nv_writelane_b32 {x('stamp')}, s98, 0\nv_writelane_b32 {x('stamp')}, s76, 1\nv_writelane_b32 {x('stamp')}, s78, 2")
    waitfor("x")
    if diag: A("s_memrealtime s[76:77]")
    def loadF(): A(f"global_load_dword {x('fF')}, {x('aF')}, s[28:29] sc1"); vm("F")
    if "F" not in o["e0"]:
        assert o["n0"]<=o["fpos"]<=o["n1"]
        stream(o["fpos"]); loadF()
    A(f"v_lshlrev_b32 {x('D')}, 16, {x('c01')}\nv_and_b32 {x('D',1)}, 0xffff0000, {x('c01')}\nv_lshlrev_b32 {x('D',2)}, 16, {x('c01',1)}\nv_and_b32 {x('D',3)}, 0xffff0000, {x('c01',1)}")
    A("s_barrier")
    trreads(BUFQ,AQ["A"]); moved.add(("q","A")); freeAt["q"]=nbar[0]+1
    for k in range(4): A(f"v_mul_f32 {x('D',k)}, {hex(f2u(0.25))}, {x('D',k)}")
    stream(o["n1"])
    if diag: A(f"s_waitcnt lgkmcnt(0)\nv_writelane_b32 {x('stamp')}, s76, 3")
    NEED={0:[("k","A"),("v","A")],1:[("o","A")],2:[("q","B")],3:[("k","B"),("v","B")],4:[("o","B")]}
    fchk=[0]
    def retry(lab,back,e):
        A(f"{lab}:\ns_sleep {slp}\ns_add_u32 s{sTo}, s{sTo}, 1")
        if diag: A(f"s_add_u32 s{sRt}, s{sRt}, {1<<(8*e)}")
        A(f"s_cmp_lt_u32 s{sTo}, {TMO}\ns_cbranch_scc0 L_fail")
    def edge(e,gather,check,kind,st):
        m0v[0]=None
        def checkF():
            waitfor("F")
            A(f"L_fc:\nv_cmp_ne_u32 vcc, s{sTag}, {x('fF')}\ns_cbranch_vccnz L_fr")
            cur[0]=OOL; retry("L_fr",None,3); A(f"global_load_dword {x('fF')}, {x('aF')}, s[28:29] sc1\ns_waitcnt vmcnt(0)\ns_branch L_fc"); cur[0]=L
            fchk[0]=1
        if e<5:
            ng=None
            for tk in o["e%d"%e].split("_"):
                c,a=tk[0],tk[1:]
                if c=="L": stream(int(a))
                elif c=="P":
                    n,D=map(int,a.split("."))
                    while ns[0]<n:
                        if ns[0]>=D: k,X,q=ORDER[ns[0]-D]; waitfor(f"{k}{X}{q}")
                        stream(ns[0]+1)
                elif c=="W": k,X,q=ORDER[int(a)]; waitfor(f"{k}{X}{q}")
                elif c=="A": waitfor("P")
                elif c=="S": A(f"s_sleep {a}")
                elif c=="M": move([(k,X) for (k,X,q) in ORDER[:int(a)] if q==7 and (k,X) not in moved])
                elif c=="B": bar()
                elif c=="F": loadF()
                elif c=="C": checkF()
                elif c=="G":
                    if not fchk[0]: checkF()
                    stamp(st); gather(True); ng=ns[0]
                    if e==0 and vt: A(f"global_load_dwordx2 {R('fl',2)}, {x('aF')}, s[28:29] offset:8 sc1"); vm("V")
                else: raise Exception(tk)
            for g_ in NEED[e]: assert ORDER.index((g_[0],g_[1],7))<ns[0], ("weights not issued",e,g_)
            move([g_ for g_ in NEED[e] if g_ not in moved])
            tgt[0]=o["spr"][e]; skc[0]=SK[e+1]
        else:
            d=o["d"][e-5]
            if d<0: A("s_waitcnt vmcnt(0)")
            elif d>0: A(f"s_sleep {d}")
            stamp(st); gather(True)
        A(f"L_c{e}:")
        check(f"L_r{e}")
        cur[0]=OOL; retry(f"L_r{e}",None,kind); gather(False); A(f"s_waitcnt vmcnt(0)\ns_branch L_c{e}"); cur[0]=L
        m0v[0]=None
    def ld(sim,tag,w,dst,addr,base,off=0):
        A(f"global_load_dwordx{w} {R(dst,w)}, {x(addr)}, {sp(base)}"+(f" offset:{off}" if off else "")+" sc1")
        if sim: vm(tag)
    def fin(fail): A(f"v_cmp_eq_u32 vcc, -1, {x('chk')}\ns_cbranch_vccnz {fail}")
    def rowsum():
        A(f"v_pk_add_f32 {R('tA',2)}, {R('T0',2)}, {vr(r['T0']+2,2)}\nv_add_f32 {x('tA')}, {x('tA')}, {x('tA',1)}")
        A(f"v_pk_add_f32 {R('tB',2)}, {R('T1',2)}, {vr(r['T1']+2,2)}\nv_add_f32 {x('tB')}, {x('tB')}, {x('tB',1)}")
    def sumF():
        for h in (0,2):
            A(f"v_pk_add_f32 {vr(r['F0']+h,2)}, {vr(r['F0']+h,2)}, {vr(r['F1']+h,2)}\nv_pk_add_f32 {vr(r['F2']+h,2)}, {vr(r['F2']+h,2)}, {vr(r['F3']+h,2)}\nv_pk_add_f32 {vr(r['F0']+h,2)}, {vr(r['F0']+h,2)}, {vr(r['F2']+h,2)}")
        A(f"v_cvt_pk_bf16_f32 {x('c01')}, {x('F0')}, {x('F0',1)}\nv_cvt_pk_bf16_f32 {x('c01',1)}, {x('F0',2)}, {x('F0',3)}")
    def cvtD(T='D'): A(f"v_cvt_pk_bf16_f32 {x('c01')}, {x(T)}, {x(T,1)}\nv_cvt_pk_bf16_f32 {x('c01',1)}, {x(T,2)}, {x(T,3)}")
    def E1(e,l):
        def g(sim): ld(sim,"g0",4,'G0','aG1',sGat[l-1]); ld(sim,"g1",4,'G1','aG1',sGat[l-1],1024)
        def c(fail):
            waitfor("g0"); mf(R('D'),R('Sel'),R('G0'),R('X4')); chk(q4('G0')); waitfor("g1"); mf(R('D'),R('Sel'),R('G1'),R('D')); chk(q4('G1'),False); fin(fail)
        edge(e,g,c,0,0)
    tgt[0]=o["spq"]
    for l in range(4):
        X="AB"[l&1]; a0=AQ[X]; it=l>>1; curl[0]=l
        if l: E1(3*l-1,l)
        stamp(1)
        cvtD()
        A(f"ds_write_b64 {x('xW')}, {R('c01',2)} offset:{XQ}")
        slot(); bar()
        A(f"ds_read_b128 {R('Ag')}, {x('rG')}")
        for s in range(4): A(f"ds_read_b128 {R('A%d'%s)}, {x('rQ')} offset:{64*s}")
        slot()
        A("s_waitcnt lgkmcnt(4)"); mf(R('Tg'),R('Ag'),R('Ag'),"0")
        ex=["","","",
            f"v_add_f32 {x('st')}, {x('Tg')}, {x('Tg',1)}\nv_add_f32 {x('st',1)}, {x('Tg',2)}, {x('Tg',3)}",
            f"v_add_f32 {x('st')}, {x('st')}, {x('st',1)}",
            f"v_add_f32_dpp {x('st')}, {x('st')}, {x('st')} quad_perm:[1,0,3,2] {DP}",
            f"v_add_f32_dpp {x('st')}, {x('st')}, {x('st')} quad_perm:[2,3,0,1] {DP}",
            f"v_mov_b32_dpp {x('st',1)}, {x('st')} row_shl:4 {DP}"]
        for s in range(4):
            A(f"s_waitcnt lgkmcnt({3-s})")
            for t in range(2):
                mf(R('T%d'%t),R('A%d'%s),ar(a0+(t*4+s)*4,4),R('T%d'%t) if s else "0")
                if ex[2*s+t]: A(ex[2*s+t])
            if s<3: slot()
        A(f"s_mov_b64 exec, 3\nglobal_store_dwordx2 {x('aPS2')}, {R('st',2)}, {sp(sPub[l])} sc1\ns_mov_b64 exec, -1"); vm("P")
        rowsum()
        pack_store("0x3333" if it else "0x11113333","aP2",sPub[l],True)
        stamp(2)
        A(f"ds_write_b128 {x('xFw')}, {R('D')}")
        if l<3: A(f"s_mov_b64 exec, {sp(mRs)}\nglobal_store_dwordx4 {x('aR')}, {R('Neg')}, {sp(sPub[l+1])} sc1\ns_mov_b64 exec, -1"); vm("R")
        if l==0:
            A(f"v_and_b32 {x('t0')}, 1, {x('g')}\nv_mul_u32_u24 {x('t0')}, {LAY-8192}, {x('t0')}\nv_sub_u32 {x('aP2')}, {x('aP2')}, {x('t0')}")
        def g(sim):
            if not it: ld(sim,"c0",4,'C0','aC2',28); ld(sim,"c1",4,'C1','aC2',28,1024)
            ld(sim,"g0",4,'G0','aG2',sGat[l]); ld(sim,"g1",4,'G1','aG2',sGat[l],1024); ld(sim,"g2",4,'S','aS2',sGat[l])
        def c(fail):
            if not it:
                waitfor("c1"); mf(R('T0'),R('Sel'),R('C0'),"0"); chk(q4('C0')+q4('C1')[:1]); mf(R('T0'),R('Sel'),R('C1'),R('T0')); chk(q4('C1')[1:],False)
            waitfor("g0"); mf(R('D'),R('Sel'),R('G0'),"0"); chk(q4('G0'),bool(it)); waitfor("g1"); mf(R('D'),R('Sel'),R('G1'),R('D')); chk(q4('G1'),False)
            waitfor("g2"); chk(q4('S'),False); fin(fail)
        edge(3*l,g,c,1,3)
        stamp(4)
        if not it:
            cvtD('T0'); A(f"ds_write_b64 {x('xW')}, {R('c01',2)} offset:{XC[X]}")
        A(f"v_add_f32 {x('st',1)}, {x('S',1)}, {x('S',3)}\nv_add_f32 {x('st')}, {x('S')}, {x('S',2)}")
        cvtD()
        A(f"ds_write_b64 {x('xW')}, {R('c01',2)} offset:{XA}")
        if l==0: A(f"v_add_u32 {x('aC2')}, 8192, {x('aC2')}")
        for k in (1,2): A(f"v_add_f32_dpp {x('st',1)}, {x('st',1)}, {x('st',1)} row_ror:{k} {DP}\nv_add_f32_dpp {x('st')}, {x('st')}, {x('st')} row_ror:{k} {DP}")
        slot(); bar()
        for s in range(4): A(f"ds_read_b128 {R('A%d'%s)}, {x('rA'+X)} offset:{64*s}")
        stamp(5)
        for k in (4,8): A(f"v_add_f32_dpp {x('st',1)}, {x('st',1)}, {x('st',1)} row_ror:{k} {DP}\nv_add_f32_dpp {x('st')}, {x('st')}, {x('st')} row_ror:{k} {DP}")
        slot()
        ex=[f"v_mul_f32 {x('ab',1)}, {hex(f2u(-1/1024))}, {x('st',1)}",
            f"v_mul_f32 {x('t0')}, {x('ab',1)}, {x('ab',1)}",
            f"v_mul_f32 {x('t1')}, {hex(f2u(1/1024))}, {x('st')}",
            f"v_sub_f32 {x('t1')}, {x('t1')}, {x('t0')}",
            f"v_max_f32 {x('t1')}, 0, {x('t1')}",
            f"v_add_f32 {x('t1')}, {hex(f2u(1e-5))}, {x('t1')}",
            f"v_rsq_f32 {x('t1')}, {x('t1')}",
            f"v_mul_f32 {x('ab')}, {hex(f2u(128**-0.5*1.4426950408889634))}, {x('t1')}"]
        for s in range(4):
            A(f"s_waitcnt lgkmcnt({3-s})")
            for t in range(2):
                mf(R('T%d'%t),R('A%d'%s),ar(a0+32+(t*4+s)*4,4),R('T%d'%t) if s else "0"); A(ex[2*s+t])
            slot()
        A(f"v_fma_f32 {x('tA')}, {x('T0',1)}, {x('ab',1)}, {x('T0')}\nv_fma_f32 {x('tB')}, {x('T1',1)}, {x('ab',1)}, {x('T1')}")
        A(f"v_max_f32 {x('t0')}, {x('tA')}, {x('tB')}")
        for k in (1,2,4,8): A(f"v_max_f32_dpp {x('t0')}, {x('t0')}, {x('t0')} row_ror:{k} {DP}")
        A(f"v_mul_f32 {x('t0')}, {x('t0')}, {x('ab')}\nv_ceil_f32 {x('t0')}, {x('t0')}")
        A(f"v_fma_f32 {x('tA')}, {x('tA')}, {x('ab')}, -{x('t0')}\nv_fma_f32 {x('tB')}, {x('tB')}, {x('ab')}, -{x('t0')}")
        A(f"v_exp_f32 {x('tA')}, {x('tA')}\nv_exp_f32 {x('tB')}, {x('tB')}\nds_write_b32 {x('mW')}, {x('t0')}")
        A(f"v_cvt_pk_bf16_f32 {x('t1')}, {x('tA')}, {x('tB')}\nds_write_b32 {x('pW')}, {x('t1')}")
        if l==0 and vt:
            waitfor("V"); A(f"v_cmp_eq_u32 vcc, s{sTag}, {x('fl')}\nv_cndmask_b32 {x('fl',1)}, 0, {x('fl',1)}, vcc\nds_add_u32 {x('t5')}, {x('fl',1)} offset:{XV}")
        slot(); bar()
        A(f"ds_read_b128 {R('A0')}, {x('rP0')}\nds_read_b128 {R('W4')}, {x('mR')}")
        for s in range(1,4): A(f"ds_read_b128 {R('A%d'%s)}, {x('rP%d'%s)}")
        A(f"ds_read_b128 {R('Ag')}, {x('rPl')}")
        stamp(6); slot()
        A(f"s_waitcnt lgkmcnt(5)")
        mf(R('T0'),R('A0'),ar(a0+64,4),"0"); A(f"s_waitcnt lgkmcnt(4)\nv_max3_f32 {x('st')}, {x('W4')}, {x('W4',1)}, {x('W4',2)}")
        mf(R('T1'),R('A0'),ar(a0+64+16,4),"0"); A(f"v_max_f32 {x('st')}, {x('st')}, {x('W4',3)}\ns_waitcnt lgkmcnt(3)")
        mf(R('T0'),R('A1'),ar(a0+64+4,4),R('T0')); A(f"v_sub_f32 {x('W4')}, {x('W4')}, {x('st')}\nv_sub_f32 {x('W4',1)}, {x('W4',1)}, {x('st')}")
        mf(R('T1'),R('A1'),ar(a0+64+20,4),R('T1')); A(f"v_exp_f32 {x('W4')}, {x('W4')}\ns_waitcnt lgkmcnt(0)")
        mf(R('Tg'),R('Ag'),R('One'),"0"); A(f"v_exp_f32 {x('W4',1)}, {x('W4',1)}")
        mf(R('T0'),R('A2'),ar(a0+64+8,4),R('T0')); A(f"v_sub_f32 {x('W4',2)}, {x('W4',2)}, {x('st')}\nv_sub_f32 {x('W4',3)}, {x('W4',3)}, {x('st')}")
        mf(R('T1'),R('A2'),ar(a0+64+24,4),R('T1')); A(f"v_exp_f32 {x('W4',2)}, {x('W4',2)}")
        mf(R('T0'),R('A3'),ar(a0+64+12,4),R('T0')); A(f"v_exp_f32 {x('W4',3)}, {x('W4',3)}")
        mf(R('T1'),R('A3'),ar(a0+64+28,4),R('T1'))
        def comb(dst,T):
            A(f"v_pk_mul_f32 {R(dst,2)}, {R(T,2)}, {R('W4',2)}\nv_pk_fma_f32 {R(dst,2)}, {vr(r[T]+2,2)}, {vr(r['W4']+2,2)}, {R(dst,2)}\nv_add_f32 {x(dst)}, {x(dst)}, {x(dst,1)}")
        A(f"v_pk_mul_f32 {R('ab',2)}, {R('Tg',2)}, {R('W4',2)}\nv_pk_fma_f32 {R('ab',2)}, {vr(r['Tg']+2,2)}, {vr(r['W4']+2,2)}, {R('ab',2)}\nv_add_f32 {x('st',1)}, {x('ab')}, {x('ab',1)}")
        A(f"s_mov_b64 exec, {sp(mS3)}\nglobal_store_dwordx2 {x('aPS3')}, {R('st',2)}, {sp(sPub[l])} sc1\ns_mov_b64 exec, -1"); vm("P")
        comb('tA','T0'); comb('tB','T1')
        pack_store(sp(mP3),"aP3",sPub[l],True)
        stamp(7)
        for k in range(4): A(f"ds_read_b128 {R('F%d'%k)}, {x('xFr')} offset:{k*FS}")
        if l==0 and vt: A(f"ds_read_b64 {R('pa',2)}, {x('lR')} offset:{XV-XR}")
        A("s_waitcnt lgkmcnt(0)")
        if l==0 and vt:
            A(f"v_readfirstlane_b32 s57, {x('pa')}\nv_readfirstlane_b32 s58, {x('pa',1)}")
            if diag: A(f"s_and_b32 s59, s57, 0xffff\ns_lshl_b32 s60, s58, 16\ns_or_b32 s59, s59, s60\nv_writelane_b32 {x('stamp')}, s59, 16")
            A(f"s_cmp_gt_i32 s57, 0\ns_cselect_b32 s57, 1, 0\ns_xor_b32 s57, s57, s{sSide}\ns_lshl_b32 s57, s57, 13")
            A(f"s_cmp_gt_i32 s58, 0\ns_cselect_b32 s58, 1, 0\ns_xor_b32 s58, s58, s{sSide}\ns_lshl_b32 s58, s58, 13"); gatbases(57,58)
        sumF()
        A(f"v_lshlrev_b32 {x('X4')}, 16, {x('c01')}\nv_and_b32 {x('X4',1)}, 0xffff0000, {x('c01')}\nv_lshlrev_b32 {x('X4',2)}, 16, {x('c01',1)}\nv_and_b32 {x('X4',3)}, 0xffff0000, {x('c01',1)}")
        for k in range(4): A(f"v_mul_f32 {x('X4',k)}, {hex(f2u(0.25))}, {x('X4',k)}")
        def g(sim):
            ld(sim,"g2",2,'S','aS3',sGat[l]); ld(sim,"g0",4,'G0','aG3',sGat[l]); ld(sim,"g1",4,'G1','aG3',sGat[l],1024)
        def c(fail):
            waitfor("g2")
            A(f"v_max_f32_dpp {x('st')}, {x('S')}, {x('S')} quad_perm:[1,0,3,2] {DP}")
            A(f"v_max_u32 {x('chk')}, {x('S')}, {x('S',1)}")
            A(f"v_max_f32_dpp {x('st')}, {x('st')}, {x('st')} quad_perm:[2,3,0,1] {DP}")
            A(f"v_max_f32_dpp {x('st')}, {x('st')}, {x('st')} row_half_mirror {DP}")
            A(f"v_subrev_f32_dpp {x('t0')}, {x('st')}, {x('S')} row_newbcast:0 {DP}")
            A(f"v_exp_f32 {x('t0')}, {x('t0')}")
            waitfor("g0"); chk(q4('G0'),False)
            A(f"v_perm_b32 {x('t1')}, {x('t0')}, {x('t0')}, s{sPerm}\nv_mul_f32 {x('st',1)}, {x('t0')}, {x('S',1)}")
            for e in range(4): A(f"v_and_b32_dpp {x('A0',e)}, {x('t1')}, {x('Msk',e)} row_newbcast:8 {DP}")
            for e in range(2): A(f"v_and_b32_dpp {x('A1',e)}, {x('t1')}, {x('Msk',e)} row_newbcast:9 {DP}")
            mf(R('D'),R('A0'),R('G0'),"0")
            for e in range(2,4): A(f"v_and_b32_dpp {x('A1',e)}, {x('t1')}, {x('Msk',e)} row_newbcast:9 {DP}")
            A(f"v_add_f32_dpp {x('st',1)}, {x('st',1)}, {x('st',1)} quad_perm:[1,0,3,2] {DP}")
            waitfor("g1")
            mf(R('D'),R('A1'),R('G1'),R('D'))
            chk(q4('G1'),False)
            A(f"v_add_f32_dpp {x('st',1)}, {x('st',1)}, {x('st',1)} quad_perm:[2,3,0,1] {DP}")
            A(f"v_cmp_eq_u32 vcc, -1, {x('chk')}")
            A(f"v_add_f32_dpp {x('st',1)}, {x('st',1)}, {x('st',1)} row_half_mirror {DP}")
            A(f"s_cbranch_vccnz {fail}")
        edge(3*l+1,g,c,2,8)
        stamp(9)
        A(f"s_mov_b64 exec, 1\nds_write_b64 {x('lW')}, {R('st',2)}\ns_mov_b64 exec, -1")
        cvtD()
        A(f"ds_write_b64 {x('xW')}, {R('c01',2)} offset:{XO}")
        slot(); bar()
        A(f"ds_read_b128 {R('A0')}, {x('rO')}\nds_read_b128 {R('F0')}, {x('lR')}\nds_read_b128 {R('F1')}, {x('lR')} offset:16")
        for s in range(1,4): A(f"ds_read_b128 {R('A%d'%s)}, {x('rO')} offset:{64*s}")
        stamp(10); slot()
        Ms=[x('F0'),x('F0',2),x('F1'),x('F1',2)]; Ls=[x('F0',1),x('F0',3),x('F1',1),x('F1',3)]
        ex=[f"s_waitcnt lgkmcnt(3)\nv_max3_f32 {x('t0')}, {Ms[0]}, {Ms[1]}, {Ms[2]}",
            f"v_max_f32 {x('t0')}, {x('t0')}, {Ms[3]}\nv_sub_f32 {x('W4')}, {Ms[0]}, {x('t0')}",
            f"v_sub_f32 {x('W4',1)}, {Ms[1]}, {x('t0')}\nv_exp_f32 {x('W4')}, {x('W4')}",
            f"v_sub_f32 {x('W4',2)}, {Ms[2]}, {x('t0')}\nv_exp_f32 {x('W4',1)}, {x('W4',1)}",
            f"v_sub_f32 {x('W4',3)}, {Ms[3]}, {x('t0')}\nv_exp_f32 {x('W4',2)}, {x('W4',2)}",
            f"v_mul_f32 {x('t1')}, {x('W4')}, {Ls[0]}\nv_exp_f32 {x('W4',3)}, {x('W4',3)}",
            f"v_fma_f32 {x('t1')}, {x('W4',1)}, {Ls[1]}, {x('t1')}\nv_fma_f32 {x('t1')}, {x('W4',2)}, {Ls[2]}, {x('t1')}",
            f"v_fma_f32 {x('t1')}, {x('W4',3)}, {Ls[3]}, {x('t1')}\nv_rcp_f32 {x('t1')}, {x('t1')}"]
        for s in range(4):
            A(f"s_waitcnt lgkmcnt({[5,2,1,0][s]})")
            for t in range(2):
                mf(R('T%d'%t),R('A%d'%s),ar(a0+96+(t*4+s)*4,4),R('T%d'%t) if s else "0"); A(ex[2*s+t])
            if s<3: slot()
        A(f"v_pk_mul_f32 {R('tA',2)}, {R('T0',2)}, {R('W4',2)}\nv_pk_fma_f32 {R('tA',2)}, {vr(r['T0']+2,2)}, {vr(r['W4']+2,2)}, {R('tA',2)}\nv_add_f32 {x('tA')}, {x('tA')}, {x('tA',1)}")
        A(f"v_pk_mul_f32 {R('tB',2)}, {R('T1',2)}, {R('W4',2)}\nv_pk_fma_f32 {R('tB',2)}, {vr(r['T1']+2,2)}, {vr(r['W4']+2,2)}, {R('tB',2)}\nv_mul_f32 {x('tA')}, {x('tA')}, {x('t1')}\nv_add_f32 {x('tB')}, {x('tB')}, {x('tB',1)}\nv_mul_f32 {x('tB')}, {x('tB')}, {x('t1')}")
        pack_store("0x11111111","aP1",sPub[l],False)
        stamp(11)
        flush(l)
    A(f"s_lshl_b32 s57, s{sL}, 2\ns_cmp_eq_u32 s57, s{sM}\ns_cbranch_scc0 L_fail")
    A(f"s_lshl_b32 s57, s{sR}, 8\nv_add_u32 {x('t3')}, s57, {x('t2')}\nv_mov_b32 {x('t4')}, {NONCE}\nv_mov_b32 {x('fl')}, s{sTag}")
    E1(11,4)
    stamp(0)
    A(f"ds_write_b128 {x('xFw')}, {R('D')}"); bar()
    if diag: A(f"v_writelane_b32 {x('stamp')}, s76, 60")
    for k in range(4): A(f"ds_read_b128 {R('F%d'%k)}, {x('xFr')} offset:{k*FS}")
    A(f"s_cmp_eq_u32 s{sW}, 0\ns_cbranch_scc0 L_fail")
    A("s_waitcnt lgkmcnt(0)")
    sumF()
    A(f"s_mov_b32 exec_hi, 0\nglobal_store_dwordx2 {x('t3')}, {R('c01',2)}, s[24:25]")
    A(f"s_cmp_eq_u32 s{sL}, 0\ns_cbranch_scc0 L_fail")
    A(f"s_mov_b64 exec, 1\nglobal_store_dword {x('t4')}, {x('fl')}, s[28:29] sc1")
    A("L_fail:")
    if "hx" in o:
        A(f"s_waitcnt lgkmcnt(0)\ns_add_u32 s96, s96, {o.get('hxus',40)*100}\ns_mov_b32 s95, 0\nL_hx:\ns_sleep 1\ns_memrealtime s[92:93]\ns_add_u32 s95, s95, 1\ns_waitcnt lgkmcnt(0)\ns_cmp_gt_u32 s95, 20000\ns_cbranch_scc1 L_hx1\ns_sub_u32 s92, s92, s96\ns_cmp_lt_i32 s92, 0\ns_cbranch_scc1 L_hx\nL_hx1:")
    if diag:
        A("s_mov_b64 exec, -1\ns_memrealtime s[76:77]\ns_memtime s[78:79]\ns_waitcnt lgkmcnt(0)\ns_sub_u32 s78, s78, s74")
        A(f"v_writelane_b32 {x('stamp')}, s76, 61\nv_writelane_b32 {x('stamp')}, s78, 62\nv_writelane_b32 {x('stamp')}, s{sTo}, 63")
        A(f"s_lshl_b32 s57, s2, 10\ns_lshl_b32 s58, s{sW}, 8\ns_add_u32 s57, s57, s58\ns_add_u32 s57, s57, {DIAG}\nv_lshl_add_u32 {x('t0')}, v0, 2, s57\nglobal_store_dword {x('t0')}, {x('stamp')}, s[28:29]")
    A("s_endpgm")
    L.extend(OOL)
    A("L_end:\ns_endpgm")
    assert V.n<=256 and ns[0]==64
    A(f'.section .rodata,"a"\n.p2align 6\n.amdhsa_kernel {name}_kernel\n  .amdhsa_next_free_vgpr 512\n  .amdhsa_next_free_sgpr 102\n  .amdhsa_accum_offset 256\n  .amdhsa_group_segment_fixed_size 0\n  .amdhsa_kernarg_size 104\n  .amdhsa_user_sgpr_count 2\n  .amdhsa_user_sgpr_kernarg_segment_ptr 1\n  .amdhsa_system_sgpr_workgroup_id_x 1\n.end_amdhsa_kernel')
    out,n=fix(L,verbose=("-v" in sys.argv))
    return "\n".join(out)+"\n"
def parse(args):
    kw={}
    for a in args:
        if "=" in a:
            k,val=a.split("="); kw[k]=val if k[0]=="e" else (tuple(int(z) for z in val.split(",")) if "," in val else int(val))
    return kw
if __name__=="__main__":
    t=gen(**parse(sys.argv[2:]))
    if "diag=1" in sys.argv: t+="; args: "+" ".join(a for a in sys.argv[2:] if a!="diag=1")+"\n"
    open(sys.argv[1],"w").write(t)
```

```python
import sys, math, struct
from hz import fix
NAME="interleave_layers__sliding_block_cached__sliding_block_cached__decode"
HDR=open("cdna_kernels/%s.s.ref"%NAME).read().split("; Override launch")[0]
def f2u(x): return struct.unpack("<I",struct.pack("<f",x))[0]
RS=288
XQ=0; ONES=4*RS; ZERO=5*RS
XA=6*RS; XC={"A":10*RS+32,"B":14*RS+32+128}; XO=19*RS; XP=23*RS; PS=96
XM=XP+16*PS; XR=XM+64; XF=XR+32; FS=528; XV=XF+4*FS
BS=0x8000+128
BUFK=0x2c00; BUFQ=BUFK+0x8000; BUFV=BUFQ+BS; BUFO=BUFV+BS; LDSSZ=BUFO+BS
assert XV+16<=BUFK and BUFK%256==0 and XF%16==0 and XC["B"]+4*RS<=XO+32
LAY=1<<20; FLG=4<<20; NONCE=FLG+0x10000; DIAG=6<<20
P3,P2,P1,PS_,PC=0,32,40,48,56
class Regs:
    def __init__(s,n0): s.n=n0; s.d={}
    def __call__(s,name,k=1,al=1):
        s.n=(s.n+al-1)//al*al; s.d[name]=s.n; s.n+=k; return s.d[name]
ORDER=[(k,X,q) for X in "AB" for k in "qkvo" for q in range(8)]
DEF=dict(diag=0, TMO=30000, slp=2, pol=-1, fe=0, p0=0, loc=0, wfl=0, kfl=0, pad=1, pf=1,
         n0=8, n1=12, fpos=8,
         e0="P24.8_W21_G_L27", e1="L32_W29_G_L35", e2="L40_W37_G_L46", e3="L56_W53_G_L59", e4="L64_W61_G",
         spr=(27,35,46,59,64), spq=12, sk=1,
         d=(-1,-1,-1,-1,-1,-1,-1))
FL=['nt','','sc1','sc0 sc1','sc1 nt','sc0']
def gen(name=NAME, **kw):
    o=dict(DEF); o.update(kw); diag=o["diag"]; TMO=o["TMO"]; slp=o["slp"]; pad=o["pad"]
    L=[]; OOL=[]; cur=[L]
    def A(t):
        for x in t.split("\n"): cur[0].append(x)
    V=Regs(1)
    v=lambda i:f"v{i}"
    vr=lambda i,k:f"v[{i}:{i+k-1}]"
    ar=lambda i,k:f"a[{i}:{i+k-1}]"
    sp=lambda i:f"s[{i}:{i+1}]"
    for n in "Sel Msk One X4 G0 G1 S C0 C1 D T0 T1 Tg Ag A0 A1 A2 A3 P W4 F0 F1 F2 F3 Neg".split(): V(n,4,4)
    for n in "c01 st ab tA tB pa fl".split(): V(n,2,2)
    for n in ("aG1 aG2 aS2 aC2 aG3 aS3 aP2 aPS2 aP3 aPS3 aP1 aR aF aFl dQ dK dV dO dT xW xFw xFr rQ rG rAA rAB rP0 rP1 rP2 rP3 rPl pW mW mR rO lW lR "
              "tT tK tid n g t0 t1 t2 t3 t4 t5 chk fF stamp").split(): V(n)
    r=V.d
    R=lambda n,k=4:vr(r[n],k)
    x=lambda n,o=0:v(r[n]+o)
    AQ={"A":0,"B":128}
    PTR={"A":dict(k=6,v=8,q=10,o=12),"B":dict(k=16,v=18,q=20,o=22)}
    BUF={"q":BUFQ,"k":BUFK,"v":BUFV,"o":BUFO}
    sW,sL,sM,sR,sI,sI2,sCB,sG=30,31,32,33,34,35,36,37
    sPub=[28,38,40,42]; sGat=[44,46,48,50]
    mP3,mS3,mRs=52,54,70
    sTo,sTag,sRt,sPerm,sWk,sWo,sSide=27,26,14,15,3,56,72
    Q=[]
    def vm(tag): Q.append(tag)
    def cnt(tag):
        idx=max(i for i,t in enumerate(Q) if t==tag); n=len(Q)-1-idx; assert n<64; return n
    def waitfor(tag): A(f"s_waitcnt vmcnt({cnt(tag)})")
    curl=[0]
    def stamp(k):
        if diag: A(f"s_memrealtime s[{76+2*k}:{77+2*k}]")
        if o.get("hx")==curl[0]*100+k: A("s_memrealtime s[96:97]")
    def flush(l):
        if not diag: return
        A("s_waitcnt lgkmcnt(0)")
        for k in range(12):
            if l or k: A(f"v_writelane_b32 {x('stamp')}, s{76+2*k}, {4+14*l+k}")
        A(f"v_writelane_b32 {x('stamp')}, s{sRt}, {4+14*l+13}\ns_mov_b32 s{sRt}, 0")
    PADQ=lambda q:(8*(q>>1) if pad else 0)
    ns=[0]; freeAt={}; moved=set(); nbar=[0]; m0v=[None]
    def bar():
        A("s_waitcnt lgkmcnt(0)\ns_barrier"); nbar[0]+=1
    def setm0(sreg,val):
        if m0v[0]!=(sreg,val): A(f"s_add_u32 m0, s{sreg}, {val}"); m0v[0]=(sreg,val)
    def dma(kind,X,q):
        p=PTR[X][kind]; buf=BUF[kind]
        if X=="B": assert kind in freeAt and freeAt[kind]<=nbar[0], ("buffer busy",kind,nbar[0])
        if kind in "qo":
            step=32768 if kind=="q" else 8192
            setm0(sWo,buf+q*1024+PADQ(q))
            src=x("dQ" if kind=="q" else "dO")
            if q: A(f"v_add_u32 {x('dT')}, {q*step}, {src}"); src=x("dT")
            A(f"global_load_lds_dwordx4 {src}, {sp(p)} {FL[o['wfl']]}")
        else:
            hi=q//4
            if kind=="v": setm0(sWo,buf+hi*4096+PADQ(q))
            else: setm0(sWk,buf+hi*4096)
            src=x("dK" if kind=="k" else "dV")
            if kind=="k" and q: A(f"v_xor_b32 {x('dT')}, {q*32}, {src}"); src=x("dT")
            if hi: A(f"v_add_u32 {x('dT')}, 4096, {src}"); src=x("dT")
            A(f"global_load_lds_dwordx4 {src}, {sp(p)} offset:{(q%4)*1024} {FL[o['kfl']]}")
        vm(f"{kind}{X}{q}")
    def stream(n):
        while ns[0]<n:
            k,X,q=ORDER[ns[0]]; dma(k,X,q); ns[0]+=1
    tgt=[0]; SK=o['sk'] if isinstance(o['sk'],tuple) else (o['sk'],)*6; skc=[SK[0]]
    def slot(k=None):
        n=min(tgt[0],ns[0]+(k or skc[0]))
        while ns[0]<n:
            kk,X,q=ORDER[ns[0]]
            if X=="B" and freeAt.get(kk,99)>nbar[0]: break
            dma(kk,X,q); ns[0]+=1
    def trreads(buf,abase):
        A(f"v_add_u32 {x('dT')}, {buf}, {x('tT')}")
        ws=8192+(32 if pad else 0)
        for s in range(4):
            for t in range(2):
                for u in range(2):
                    A(f"ds_read_b64_tr_b16 {ar(abase+(t*4+s)*4+2*u,2)}, {x('dT')} offset:{s*ws+u*1024+8*t}")
    def kreads(abase):
        for s in range(4):
            A(f"v_xor_b32 {x('dT')}, {64*s}, {x('tK')}")
            for t in range(2): A(f"ds_read_b128 {ar(abase+(t*4+s)*4,4)}, {x('dT')} offset:{256*t}")
    def move(groups):
        tr=[g for g in groups if g[0]!="k"]
        for k,X in groups:
            if k=="k": waitfor(f"k{X}7"); kreads(AQ[X]+32)
        if tr:
            k,X=tr[-1]; waitfor(f"{k}{X}7"); A("s_barrier")
            for k,X in tr: trreads(BUF[k],AQ[X]+{"q":0,"v":64,"o":96}[k])
        for k,X in groups: moved.add((k,X)); freeAt[k]=nbar[0]+1
    def mf(d,a,b,c): A(f"v_mfma_f32_16x16x32_bf16 {d}, {a}, {b}, {c}")
    def chk(rs,first=True):
        rs=list(rs); c=x("chk")
        if first:
            A(f"v_max3_u32 {c}, v{rs[0]}, v{rs[1]}, v{rs[2]}"); rs=rs[3:]
        while len(rs)>=2: A(f"v_max3_u32 {c}, {c}, v{rs[0]}, v{rs[1]}"); rs=rs[2:]
        if rs: A(f"v_max_u32 {c}, {c}, v{rs[0]}")
    q4=lambda n:list(range(r[n],r[n]+4))
    DP="row_mask:0xf bank_mask:0xf"
    def pack_store(mask,addr,base,four):
        if four:
            A(f"v_cvt_pk_bf16_f32 {x('t0')}, {x('tA')}, {x('tB')}")
            for k in (0,1,2,3): A(f"v_mov_b32_dpp {x('P',k)}, {x('t0')} quad_perm:[{k},{k},{k},{k}] {DP}")
        else:
            A(f"v_cvt_pk_bf16_f32 {x('P')}, {x('tA')}, {x('tB')}")
            for k in (1,2,3): A(f"v_mov_b32_dpp {x('P',k)}, {x('P')} quad_perm:[{k},{k},{k},{k}] {DP}")
        A(f"s_mov_b64 exec, {mask}\nglobal_store_dwordx4 {x(addr)}, {R('P')}, {sp(base)} sc1\ns_mov_b64 exec, -1"); vm("P")
    A(HDR.rstrip("\n"))
    A(f"; @launch grid=(256,1,1) block=(256,1,1) lds={LDSSZ}")
    A(f'.amdgcn_target "amdgcn-amd-amdhsa--gfx950"\n.text\n.globl {name}_kernel\n.p2align 8\n.type {name}_kernel,@function\n{name}_kernel:')
    A("s_cmp_ge_u32 s2, 256\ns_cbranch_scc1 L_end")
    A("s_load_dwordx16 s[4:19], s[0:1], 0\ns_load_dwordx8 s[20:27], s[0:1], 64\ns_load_dwordx2 s[28:29], s[0:1], 96")
    if o["pf"]:
        A(f"s_getpc_b64 s[58:59]\nL_pc:\nv_lshlrev_b32 {x('t0')}, 6, v0\nv_min_u32 {x('t0')}, L_end-L_pc, {x('t0')}")
        A(f"v_add_co_u32 {x('pa')}, vcc, s58, {x('t0')}\nv_mov_b32 {x('t0')}, s59\nv_addc_co_u32 {x('pa',1)}, vcc, 0, {x('t0')}, vcc")
        A(f"global_load_dword {x('chk')}, {R('pa',2)}, off"); vm("pf")
    if diag: A("s_memrealtime s[98:99]\ns_memtime s[74:75]")
    if "hx" in o: A("s_memrealtime s[96:97]")
    A(f"v_lshrrev_b32 {x('t0')}, 6, v0\nv_mov_b32 {x('tid')}, v0\nv_and_b32 v0, 63, v0\nv_and_b32 {x('n')}, 15, v0\nv_readfirstlane_b32 s{sW}, {x('t0')}")
    if o["loc"]:
        A(f"s_and_b32 s{sL}, s2, 7\ns_lshr_b32 s{sG}, s{sL}, 1\ns_lshr_b32 s{sM}, s2, 3")
    else:
        A(f"s_bfe_u32 s{sG}, s2, 0x20001\ns_bfe_u32 s57, s2, 0x10003\ns_lshl_b32 s{sL}, s{sG}, 1\ns_or_b32 s{sL}, s{sL}, s57")
        A(f"s_and_b32 s57, s2, 1\ns_lshl_b32 s57, s57, 4\ns_lshr_b32 s{sM}, s2, 4\ns_or_b32 s{sM}, s{sM}, s57")
    A(f"s_lshr_b32 s{sR}, s{sM}, 2\ns_and_b32 s{sI}, s{sM}, 3\ns_lshr_b32 s{sI2}, s{sM}, 3\ns_and_b32 s{sCB}, s{sM}, 7")
    A(f"v_lshrrev_b32 {x('g')}, 4, v0")
    A(f"v_lshlrev_b32 {x('t0')}, 2, {x('g')}\nv_xor_b32 {x('t0')}, {x('n')}, {x('t0')}\nv_lshlrev_b32 {x('t1')}, 4, {x('t0')}")
    A(f"s_lshl_b32 s57, s{sR}, 20\ns_lshl_b32 s58, s{sW}, 18\ns_add_u32 s57, s57, s58\ns_lshl_b32 s58, s{sL}, 10\ns_add_u32 s57, s57, s58\ns_lshl_b32 s58, s{sI}, 8\ns_add_u32 s57, s57, s58")
    A(f"v_lshl_add_u32 {x('dQ')}, {x('g')}, 13, {x('t1')}\nv_add_u32 {x('dQ')}, s57, {x('dQ')}")
    A(f"s_mul_i32 s{sWo}, s{sW}, {8192+(32 if pad else 0)}\ns_lshl_b32 s{sWk}, s{sW}, 13")
    A(f"s_lshl_b32 s62, s{sL}, 16\ns_lshl_b32 s57, s{sM}, 8\ns_add_u32 s62, s62, s57")
    A(f"s_lshl_b32 s63, s{sL}, 2\ns_add_u32 s63, s63, s{sI2}\ns_lshl_b32 s63, s63, 8\ns_lshl_b32 s57, s{sCB}, 14\ns_add_u32 s63, s63, s57\ns_add_u32 s63, s63, {P1*16384}")
    A(f"s_lshl_b32 s57, s{sL}, 14\ns_add_u32 s64, s57, {P2*16384}\ns_add_u32 s66, s57, {PS_*16384}")
    A(f"s_lshl_b32 s68, s{sI}, 3\ns_add_u32 s68, s68, s{sR}\ns_lshl_b32 s69, s68, 7\ns_lshl_b32 s68, s68, 8\ns_add_u32 s65, s68, s64\ns_add_u32 s69, s69, s66")
    A(f"s_lshl_b32 s67, s{sM}, 7\ns_add_u32 s67, s67, s66\ns_add_u32 s67, s67, 4096")
    A(f"s_add_u32 s57, s{sWk}, s62\ns_add_u32 s58, s65, {LAY+(PC-P2)*16384}\ns_add_u32 s59, s63, 8192")
    A(f"s_cmp_eq_u32 s{sW}, 2\ns_cselect_b32 s61, s63, s58\ns_cselect_b32 s59, s59, s69\ns_cselect_b32 s68, s65, s67\ns_cselect_b32 s60, s65, s58\ns_cselect_b32 s58, 0, {8192-128}\ns_add_u32 s60, s60, 8192")
    A(f"v_lshlrev_b32 {x('t3')}, 4, {x('n')}\nv_lshrrev_b32 {x('t4')}, 3, {x('n')}\nv_mul_lo_u32 {x('t4')}, {x('t4')}, s58\nv_add_u32 {x('t4')}, {x('t4')}, {x('t3')}")
    A(f"v_add_u32 {x('aR')}, s61, {x('t3')}\nv_add_u32 {x('t0')}, s59, {x('t4')}\nv_cmp_le_u32 vcc, 16, v0\nv_cndmask_b32 {x('aR')}, {x('aR')}, {x('t0')}, vcc")
    A(f"v_add_u32 {x('t0')}, s68, {x('t4')}\nv_cmp_le_u32 vcc, 32, v0\nv_cndmask_b32 {x('aR')}, {x('aR')}, {x('t0')}, vcc")
    A(f"v_add_u32 {x('t0')}, s60, {x('t3')}\nv_cmp_le_u32 vcc, 48, v0\nv_cndmask_b32 {x('aR')}, {x('aR')}, {x('t0')}, vcc")
    A(f"v_lshl_add_u32 {x('t0')}, {x('g')}, 14, {x('t3')}\nv_add_u32 {x('t0')}, s57, {x('t0')}\nv_cmp_gt_u32 vcc, 128, {x('tid')}\nv_cndmask_b32 {x('aR')}, {x('aR')}, {x('t0')}, vcc")
    for k in range(4): A(f"v_mov_b32 {x('Neg',k)}, -1")
    A(f"v_and_b32 {x('t2')}, 1, {x('g')}\nv_lshlrev_b32 {x('t2')}, 3, {x('t2')}\nv_lshl_add_u32 {x('t2')}, {x('n')}, 4, {x('t2')}")
    A(f"s_lshl_b32 s57, s{sR}, 8\nv_add_u32 {x('t3')}, s57, {x('t2')}")
    A(f"s_lshl_b32 s57, s{sG}, 24\ns_lshl_b32 s58, s{sM}, 15\ns_add_u32 s57, s57, s58\ns_add_u32 s57, s57, s{sWk}\ns_add_u32 s57, s57, {61440*256}")
    A(f"v_lshrrev_b32 {x('t0')}, 5, v0\nv_xor_b32 {x('t0')}, {x('n')}, {x('t0')}\nv_lshlrev_b32 {x('t0')}, 4, {x('t0')}\nv_lshl_add_u32 {x('dK')}, {x('g')}, 8, {x('t0')}\nv_add_u32 {x('dK')}, s57, {x('dK')}")
    A(f"v_lshl_add_u32 {x('dV')}, {x('g')}, 8, {x('t1')}\nv_add_u32 {x('dV')}, s57, {x('dV')}")
    vt=o["pol"]<0
    A(f"s_getreg_b32 s{sSide}, hwreg(HW_REG_XCC_ID, 2, 1)")
    if vt:
        A(f"s_and_b32 s73, s{sW}, 1\ns_lshl_b32 s58, s2, 1\ns_add_u32 s57, s73, s58\ns_lshr_b32 s58, s57, 6\ns_lshl_b32 s58, s58, 14\ns_and_b32 s57, s57, 63\ns_lshl_b32 s57, s57, 7\ns_add_u32 s57, s57, s58")
        A(f"s_lshr_b32 s58, s{sW}, 1\ns_lshl_b32 s58, s58, 21\ns_add_u32 s57, s57, s58\ns_lshl_b32 s58, s73, 13\ns_add_u32 s57, s57, s58\ns_add_u32 s60, s57, {PC*16384}\ns_xor_b32 s61, s60, 0x2000")
        A(f"s_mov_b32 s84, 0x5bd1e995\ns_not_b32 s85, s84\ns_mov_b64 s[88:89], s[84:85]\ns_xor_b32 s73, s73, s{sSide}\ns_lshl_b32 s73, s73, 1\ns_sub_u32 s73, s73, 1")
    A("s_waitcnt lgkmcnt(0)")
    if diag: A("s_memrealtime s[76:77]")
    A("s_add_u32 s28, s28, 0x1fffff\ns_addc_u32 s29, s29, 0\ns_and_b32 s28, s28, 0xffe00000")
    A(f"s_add_u32 s58, s28, {NONCE}\ns_addc_u32 s59, s29, 0\ns_load_dword s{sTag}, s[58:59], 0")
    A(f"global_store_dwordx4 {x('aR')}, {R('Neg')}, s[28:29] sc1"); vm("R1")
    stream(8)
    A(f"global_load_dwordx2 {R('c01',2)}, {x('t3')}, s[4:5]"); vm("x")
    if vt: A(f"s_add_u32 s82, s28, s60\ns_addc_u32 s83, s29, 0\ns_add_u32 s90, s28, s61\ns_addc_u32 s91, s29, 0")
    stream(min(o["n0"],24))
    A(f"s_lshl_b32 s57, s{sL}, 5\ns_add_u32 s57, s57, s{sM}\ns_lshl_b32 s57, s57, 7\ns_lshl_b32 s58, s{sW}, 4\ns_add_u32 s57, s57, s58\ns_add_u32 s57, s57, {FLG}\nv_mov_b32 {x('aFl')}, s57")
    def flag():
        waitfor("R1")
        A("s_waitcnt lgkmcnt(0)")
        A(f"s_mul_i32 s{sTag}, s{sTag}, 0x9e3779b1\ns_add_u32 s{sTag}, s{sTag}, 0x7f4a7c15\nv_mov_b32 {x('fl')}, s{sTag}")
        A(f"s_mov_b64 exec, 1\nglobal_store_dword {x('aFl')}, {x('fl')}, s[28:29] sc1\ns_mov_b64 exec, -1"); vm("flag")
        if diag: A("s_memrealtime s[78:79]\ns_waitcnt lgkmcnt(0)")
    def probe():
        if vt:
            if o["fe"]: A("s_waitcnt lgkmcnt(0)")
            A(f"s_load_dwordx2 s[86:87], s[82:83], 0\ns_load_dwordx2 s[88:89], s[90:91], 0")
            A(f"s_waitcnt lgkmcnt(2)\ns_cmp_eq_u64 s[88:89], s[84:85]\ns_cselect_b32 s73, s73, 0\nv_mov_b32 {x('fl',1)}, s73")
            A(f"s_mov_b64 exec, 1\nglobal_store_dwordx2 {x('aFl')}, {R('fl',2)}, s[28:29] offset:8 sc1\ns_mov_b64 exec, -1"); vm("vote")
    if o["fe"]: flag()
    A(f"s_lshl_b32 s57, s{sL}, 20\ns_lshl_b32 s58, s{sI2}, 18\ns_add_u32 s57, s57, s58\ns_lshl_b32 s58, s{sW}, 16\ns_add_u32 s57, s57, s58\ns_lshl_b32 s58, s{sCB}, 8\ns_add_u32 s57, s57, s58")
    A(f"v_lshl_add_u32 {x('dO')}, {x('g')}, 11, {x('t1')}\nv_add_u32 {x('dO')}, s57, {x('dO')}")
    stream(o["n0"])
    A(f"v_lshlrev_b32 {x('t0')}, 4, v0\ns_lshl_b32 s57, s{sW}, 11\nv_add_u32 {x('t0')}, s57, {x('t0')}")
    A(f"s_lshl_b32 s57, s{sR}, 14\ns_add_u32 s57, s57, {P1*16384}\nv_add_u32 {x('aG1')}, s57, {x('t0')}")
    A(f"v_add_u32 {x('aG2')}, s64, {x('t0')}\nv_add_u32 {x('aC2')}, {LAY+(PC-P2)*16384}, {x('aG2')}")
    A(f"s_lshl_b32 s57, s{sI2}, 14\ns_lshl_b32 s58, s{sL}, 16\ns_add_u32 s57, s57, s58\nv_add_u32 {x('aG3')}, s57, {x('t0')}")
    A(f"v_bfe_u32 {x('t0')}, v0, 1, 3\nv_and_b32 {x('t4')}, 1, v0\nv_lshlrev_b32 {x('t5')}, 4, {x('t4')}\nv_lshl_add_u32 {x('t0')}, {x('t0')}, 7, {x('t5')}")
    A(f"s_lshl_b32 s57, s{sW}, 10\ns_add_u32 s57, s57, s66\nv_add_u32 {x('aS2')}, s57, {x('t0')}")
    A(f"v_lshlrev_b32 {x('t5')}, 13, {x('t4')}\ns_lshl_b32 s58, s{sW}, 3\ns_add_u32 s59, s58, s69\nv_add_u32 {x('aPS2')}, s59, {x('t5')}\ns_add_u32 s59, s58, s67\nv_add_u32 {x('aPS3')}, s59, {x('t5')}")
    A(f"v_lshl_add_u32 {x('t4')}, {x('t4')}, 2, {x('g')}\nv_and_b32 {x('t0')}, 7, v0\nv_and_b32 {x('t3')}, 8, v0\nv_cmp_ne_u32 vcc, 0, {x('t3')}\nv_cndmask_b32 {x('t4')}, {x('t0')}, {x('t4')}, vcc")
    A(f"s_lshl_b32 s58, s{sI2}, 3\ns_add_u32 s57, s57, s58\ns_add_u32 s57, s57, 4096\nv_lshl_add_u32 {x('aS3')}, {x('t4')}, 7, s57")
    A(f"s_lshl_b32 s57, s{sL}, 5\ns_add_u32 s57, s57, s{sW}\nv_lshl_add_u32 {x('t4')}, {x('t0')}, 2, s57")
    A(f"v_lshlrev_b32 {x('t3')}, 3, {x('t0')}\ns_lshl_b32 s57, s{sW}, 6\ns_add_u32 s57, s57, s{sR}\nv_add_u32 {x('t3')}, s57, {x('t3')}")
    A(f"v_cndmask_b32 {x('t4')}, {x('t4')}, {x('t3')}, vcc\nv_lshlrev_b32 {x('t4')}, 7, {x('t4')}\nv_lshl_add_u32 {x('t4')}, {x('g')}, 4, {x('t4')}\nv_add_u32 {x('aF')}, {FLG}, {x('t4')}")
    A(f"v_bfe_u32 {x('t3')}, v0, 2, 2\nv_lshlrev_b32 {x('t3')}, 4, {x('t3')}\ns_lshl_b32 s57, s{sW}, 6\nv_add_u32 {x('t3')}, s57, {x('t3')}")
    A(f"v_and_b32 {x('t4')}, 1, {x('g')}")
    A(f"v_lshl_add_u32 {x('t0')}, {x('t4')}, 13, {x('t3')}\nv_add_u32 {x('aP1')}, s63, {x('t0')}")
    A(f"v_add_u32 {x('t3')}, {x('t3')}, {x('t5')}\nv_mul_u32_u24 {x('t0')}, {LAY+(PC-P2)*16384}, {x('t4')}\nv_add3_u32 {x('aP2')}, {x('t0')}, s65, {x('t3')}")
    A(f"v_lshl_add_u32 {x('t0')}, {x('g')}, 14, {x('t3')}\nv_add_u32 {x('aP3')}, s62, {x('t0')}")
    A(f"s_mov_b32 s{mP3}, 0x33333333\ns_mov_b32 s{mP3+1}, 0x33333333")
    A(f"s_lshl_b32 s57, s{sW}, 4\ns_lshl_b64 {sp(mS3)}, 3, s57")
    A(f"s_cmp_eq_u32 s{sW}, 3\ns_cselect_b32 s{mRs}, 0xffff0000, -1\ns_cselect_b32 s{mRs+1}, 0xffff, -1")
    A(f"s_mov_b32 s{sPerm}, 0x03020302\ns_mov_b32 s{sTo}, 0\ns_mov_b32 s{sRt}, 0")
    for l in (1,2,3): A(f"s_add_u32 s{sPub[l]}, s28, {l*LAY}\ns_addc_u32 s{sPub[l]+1}, s29, 0")
    def gatbases(h0,h1):
        for l in range(4): A(f"s_add_u32 s{sGat[l]}, s{sPub[l]}, s{h1 if l>1 else h0}\ns_addc_u32 s{sGat[l]+1}, s{sPub[l]+1}, 0")
    if not vt:
        A(f"s_xor_b32 s57, s{sSide}, {o['pol']&1}\ns_lshl_b32 s57, s57, 13\ns_xor_b32 s58, s{sSide}, {o['pol']>>1}\ns_lshl_b32 s58, s58, 13"); gatbases(57,58)
    else:
        A(f"s_xor_b32 s57, s{sSide}, {o['p0']}\ns_lshl_b32 s57, s57, 13\ns_add_u32 s{sGat[0]}, s28, s57\ns_addc_u32 s{sGat[0]+1}, s29, 0")
    A(f"s_mul_i32 s57, s{sW}, {RS}\nv_add_u32 {x('xW')}, s57, {x('t2')}")
    A(f"v_lshlrev_b32 {x('xFr')}, 1, {x('t2')}\nv_add_u32 {x('xFr')}, {XF}, {x('xFr')}\ns_mul_i32 s57, s{sW}, {FS}\nv_add_u32 {x('xFw')}, s57, {x('xFr')}")
    A(f"v_lshlrev_b32 {x('t0')}, 4, {x('g')}")
    A(f"v_min_u32 {x('t4')}, 5, {x('n')}\nv_mul_u32_u24 {x('t4')}, {RS}, {x('t4')}\nv_add_u32 {x('rQ')}, {x('t4')}, {x('t0')}\ns_lshl_b32 s57, s{sW}, 6\nv_add_u32 {x('rG')}, s57, {x('rQ')}")
    A(f"v_and_b32 {x('t4')}, 3, {x('n')}\nv_lshrrev_b32 {x('t5')}, 2, {x('n')}")
    A(f"v_mul_u32_u24 {x('rO')}, {RS}, {x('t4')}\nv_add_u32 {x('rO')}, {x('rO')}, {x('t0')}\nv_add_u32 {x('rO')}, {XO}, {x('rO')}")
    A(f"v_mul_u32_u24 {x('t3')}, {RS}, {x('t5')}\nv_add_u32 {x('t3')}, {x('t3')}, {x('t0')}\nv_add_u32 {x('t1')}, {ZERO}, {x('t0')}")
    for X in "AB":
        A(f"v_add_u32 {x('rA'+X)}, {XC[X]}, {x('t3')}\nv_cmp_eq_u32 vcc, 1, {x('t4')}\nv_cndmask_b32 {x('rA'+X)}, {x('t1')}, {x('rA'+X)}, vcc")
        A(f"v_add_u32 {x('dT')}, {XA}, {x('t3')}\nv_cmp_eq_u32 vcc, 0, {x('t4')}\nv_cndmask_b32 {x('rA'+X)}, {x('rA'+X)}, {x('dT')}, vcc")
    A(f"v_lshl_add_u32 {x('t3')}, {x('t4')}, 2, {x('t5')}\nv_mul_u32_u24 {x('t3')}, {PS}, {x('t3')}\nv_add_u32 {x('t3')}, {x('t3')}, {x('t0')}\nv_add_u32 {x('rPl')}, {XP}, {x('t3')}")
    for s in range(4): A(f"v_add_u32 {x('dT')}, {o.get('zp',(0,0,0,0))[s]}, {x('t1')}\nv_cmp_eq_u32 vcc, {s}, {x('t4')}\nv_cndmask_b32 {x('rP%d'%s)}, {x('dT')}, {x('rPl')}, vcc")
    A(f"s_lshl_b32 s57, s{sW}, 2\nv_add_u32 {x('t3')}, s57, {x('g')}\nv_mul_u32_u24 {x('t3')}, {PS}, {x('t3')}\nv_lshl_add_u32 {x('t3')}, {x('n')}, 2, {x('t3')}\nv_add_u32 {x('pW')}, {XP}, {x('t3')}")
    A(f"v_add_u32 {x('mR')}, {XM}, {x('t0')}\nv_add_u32 {x('mW')}, s57, {x('mR')}")
    A(f"s_lshl_b32 s57, s{sW}, 3\ns_add_u32 s57, s57, {XR}\nv_mov_b32 {x('lW')}, s57\nv_mov_b32 {x('lR')}, {XR}")
    A(f"s_lshl_b32 s57, s{sW}, 2\nv_add_u32 {x('t3')}, s57, {x('t4')}\nv_lshlrev_b32 {x('t1')}, 2, {x('t5')}\nv_xor_b32 {x('t3')}, {x('t3')}, {x('t1')}\nv_lshlrev_b32 {x('t3')}, 4, {x('t3')}")
    A(f"v_lshl_add_u32 {x('t1')}, {x('g')}, 3, {x('t5')}\nv_lshl_add_u32 {x('tT')}, {x('t1')}, 8, {x('t3')}")
    if pad: A(f"v_lshl_add_u32 {x('tT')}, {x('g')}, 3, {x('tT')}")
    A(f"v_xor_b32 {x('t3')}, {x('g')}, {x('n')}\nv_lshlrev_b32 {x('t3')}, 4, {x('t3')}\nv_lshl_add_u32 {x('t3')}, {x('n')}, 9, {x('t3')}\ns_add_u32 s57, s{sWk}, {BUFK}\nv_add_u32 {x('tK')}, s57, {x('t3')}")
    A(f"v_and_b32 {x('t3')}, 1, {x('t5')}\nv_lshlrev_b32 {x('t3')}, 4, {x('t3')}\nv_mov_b32 {x('t1')}, 0xffff\nv_lshlrev_b32 {x('t1')}, {x('t3')}, {x('t1')}")
    for e in range(4):
        A(f"v_cmp_eq_u32 vcc, {e}, {x('t4')}\nv_cndmask_b32 {x('Msk',e)}, 0, {x('t1')}, vcc\nv_mov_b32 {x('One',e)}, 0x3f803f80\nv_and_b32 {x('Sel',e)}, 0x3f803f80, {x('Msk',e)}")
    A(f"v_lshlrev_b32 {x('t3')}, 2, v0\nv_mov_b32 {x('t1')}, 0\nds_write_b32 {x('t3')}, {x('One')} offset:{ONES}\nds_write_b32 {x('t3')}, {x('t1')} offset:{ZERO}\nds_write_b32 {x('t3')}, {x('t1')} offset:{ZERO+32}")
    A(f"v_lshrrev_b32 {x('t5')}, 5, v0\nv_lshlrev_b32 {x('t5')}, 2, {x('t5')}\nds_write_b32 {x('t5')}, {x('t1')} offset:{XV}")
    if not o["fe"]: flag()
    probe()
    if diag: A(f"v_mov_b32 {x('stamp')}, 0\ns_waitcnt lgkmcnt(0)\nv_writelane_b32 {x('stamp')}, s98, 0\nv_writelane_b32 {x('stamp')}, s76, 1\nv_writelane_b32 {x('stamp')}, s78, 2")
    waitfor("x")
    if diag: A("s_memrealtime s[76:77]")
    def loadV():
        if vt: A(f"global_load_dwordx2 {R('fl',2)}, {x('aF')}, s[28:29] offset:8 sc1"); vm("V")
    def useV():
        if not vt: return
        waitfor("V")
        A(f"v_cmp_eq_u32 vcc, s{sTag}, {x('fl')}\nv_cndmask_b32 {x('fl',1)}, 0, {x('fl',1)}, vcc")
        A(f"v_cmp_lt_i32 s[58:59], 0, {x('fl',1)}\nv_cmp_gt_i32 vcc, 0, {x('fl',1)}")
        A(f"s_nop 1\ns_bcnt1_i32_b32 s58, s58\ns_bcnt1_i32_b32 s59, s59\ns_bcnt1_i32_b32 s60, vcc_lo\ns_bcnt1_i32_b32 s61, vcc_hi\ns_sub_u32 s58, s58, s60\ns_sub_u32 s59, s59, s61")
        A(f"v_mov_b32 {x('fl',1)}, s58\nv_writelane_b32 {x('fl',1)}, s59, 32\ns_mov_b32 exec_lo, 1\ns_mov_b32 exec_hi, 1\nds_add_u32 {x('t5')}, {x('fl',1)} offset:{XV}\ns_mov_b64 exec, -1")
    def loadF(): A(f"global_load_dword {x('fF')}, {x('aF')}, s[28:29] sc1"); vm("F")
    if "F" not in o["e0"]:
        assert o["n0"]<=o["fpos"]<=o["n1"]
        stream(o["fpos"]); loadF()
    A(f"v_lshlrev_b32 {x('D')}, 16, {x('c01')}\nv_and_b32 {x('D',1)}, 0xffff0000, {x('c01')}\nv_lshlrev_b32 {x('D',2)}, 16, {x('c01',1)}\nv_and_b32 {x('D',3)}, 0xffff0000, {x('c01',1)}")
    A("s_barrier")
    trreads(BUFQ,AQ["A"]); moved.add(("q","A")); freeAt["q"]=nbar[0]+1
    for k in range(4): A(f"v_mul_f32 {x('D',k)}, {hex(f2u(0.25))}, {x('D',k)}")
    stream(o["n1"])
    if diag: A(f"s_waitcnt lgkmcnt(0)\nv_writelane_b32 {x('stamp')}, s76, 3")
    NEED={0:[("k","A"),("v","A")],1:[("o","A")],2:[("q","B")],3:[("k","B"),("v","B")],4:[("o","B")]}
    fchk=[0]
    def retry(lab,back,e):
        A(f"{lab}:\ns_sleep {slp}\ns_add_u32 s{sTo}, s{sTo}, 1")
        if diag: A(f"s_add_u32 s{sRt}, s{sRt}, {1<<(8*e)}")
        A(f"s_cmp_lt_u32 s{sTo}, {TMO}\ns_cbranch_scc0 L_fail")
    def edge(e,gather,check,kind,st):
        m0v[0]=None
        def checkF():
            waitfor("F")
            A(f"L_fc:\nv_cmp_ne_u32 vcc, s{sTag}, {x('fF')}\ns_cbranch_vccnz L_fr")
            cur[0]=OOL; retry("L_fr",None,3); A(f"global_load_dword {x('fF')}, {x('aF')}, s[28:29] sc1\ns_waitcnt vmcnt(0)\ns_branch L_fc"); cur[0]=L
            fchk[0]=1
        if e<5:
            ng=None
            for tk in o["e%d"%e].split("_"):
                c,a=tk[0],tk[1:]
                if c=="L": stream(int(a))
                elif c=="P":
                    n,D=map(int,a.split("."))
                    while ns[0]<n:
                        if ns[0]>=D: k,X,q=ORDER[ns[0]-D]; waitfor(f"{k}{X}{q}")
                        stream(ns[0]+1)
                elif c=="W": k,X,q=ORDER[int(a)]; waitfor(f"{k}{X}{q}")
                elif c=="A": waitfor("P")
                elif c=="S": A(f"s_sleep {a}")
                elif c=="M": move([(k,X) for (k,X,q) in ORDER[:int(a)] if q==7 and (k,X) not in moved])
                elif c=="B": bar()
                elif c=="F": loadF()
                elif c=="C": checkF()
                elif c=="G":
                    if not fchk[0]: checkF()
                    stamp(st); gather(True); ng=ns[0]
                    if e==0 and "V" not in o["e0"]: loadV()
                elif c=="V": loadV()
                elif c=="U": useV()
                else: raise Exception(tk)
            for g_ in NEED[e]: assert ORDER.index((g_[0],g_[1],7))<ns[0], ("weights not issued",e,g_)
            move([g_ for g_ in NEED[e] if g_ not in moved])
            tgt[0]=o["spr"][e]; skc[0]=SK[e+1]
        else:
            d=o["d"][e-5]
            if d<0 or d>=100: A("s_waitcnt vmcnt(0)")
            if d>0 and d%100: A(f"s_sleep {d%100}")
            stamp(st); gather(True)
        A(f"L_c{e}:")
        check(f"L_r{e}")
        cur[0]=OOL; retry(f"L_r{e}",None,kind); gather(False); A(f"s_waitcnt vmcnt(0)\ns_branch L_c{e}"); cur[0]=L
        m0v[0]=None
    def ld(sim,tag,w,dst,addr,base,off=0):
        A(f"global_load_dwordx{w} {R(dst,w)}, {x(addr)}, {sp(base)}"+(f" offset:{off}" if off else "")+" sc1")
        if sim: vm(tag)
    def fin(fail): A(f"v_cmp_eq_u32 vcc, -1, {x('chk')}\ns_cbranch_vccnz {fail}")
    def rowsum():
        A(f"v_pk_add_f32 {R('tA',2)}, {R('T0',2)}, {vr(r['T0']+2,2)}\nv_add_f32 {x('tA')}, {x('tA')}, {x('tA',1)}")
        A(f"v_pk_add_f32 {R('tB',2)}, {R('T1',2)}, {vr(r['T1']+2,2)}\nv_add_f32 {x('tB')}, {x('tB')}, {x('tB',1)}")
    def sumF():
        for h in (0,2):
            A(f"v_pk_add_f32 {vr(r['F0']+h,2)}, {vr(r['F0']+h,2)}, {vr(r['F1']+h,2)}\nv_pk_add_f32 {vr(r['F2']+h,2)}, {vr(r['F2']+h,2)}, {vr(r['F3']+h,2)}\nv_pk_add_f32 {vr(r['F0']+h,2)}, {vr(r['F0']+h,2)}, {vr(r['F2']+h,2)}")
        A(f"v_cvt_pk_bf16_f32 {x('c01')}, {x('F0')}, {x('F0',1)}\nv_cvt_pk_bf16_f32 {x('c01',1)}, {x('F0',2)}, {x('F0',3)}")
    def cvtD(T='D'): A(f"v_cvt_pk_bf16_f32 {x('c01')}, {x(T)}, {x(T,1)}\nv_cvt_pk_bf16_f32 {x('c01',1)}, {x(T,2)}, {x(T,3)}")
    def E1(e,l):
        def g(sim): ld(sim,"g0",4,'G0','aG1',sGat[l-1]); ld(sim,"g1",4,'G1','aG1',sGat[l-1],1024)
        def c(fail):
            waitfor("g0"); mf(R('D'),R('Sel'),R('G0'),R('X4')); chk(q4('G0')); waitfor("g1"); mf(R('D'),R('Sel'),R('G1'),R('D')); chk(q4('G1'),False); fin(fail)
        edge(e,g,c,0,0)
    tgt[0]=o["spq"]
    for l in range(4):
        X="AB"[l&1]; a0=AQ[X]; it=l>>1; curl[0]=l
        if l: E1(3*l-1,l)
        stamp(1)
        cvtD()
        A(f"ds_write_b64 {x('xW')}, {R('c01',2)} offset:{XQ}")
        slot(); bar()
        A(f"ds_read_b128 {R('Ag')}, {x('rG')}")
        for s in range(4): A(f"ds_read_b128 {R('A%d'%s)}, {x('rQ')} offset:{64*s}")
        slot()
        A("s_waitcnt lgkmcnt(4)"); mf(R('Tg'),R('Ag'),R('Ag'),"0")
        ex=["","","",
            f"v_add_f32 {x('st')}, {x('Tg')}, {x('Tg',1)}\nv_add_f32 {x('st',1)}, {x('Tg',2)}, {x('Tg',3)}",
            f"v_add_f32 {x('st')}, {x('st')}, {x('st',1)}",
            f"v_add_f32_dpp {x('st')}, {x('st')}, {x('st')} quad_perm:[1,0,3,2] {DP}",
            f"v_add_f32_dpp {x('st')}, {x('st')}, {x('st')} quad_perm:[2,3,0,1] {DP}",
            f"v_mov_b32_dpp {x('st',1)}, {x('st')} row_shl:4 {DP}"]
        for s in range(4):
            A(f"s_waitcnt lgkmcnt({3-s})")
            for t in range(2):
                mf(R('T%d'%t),R('A%d'%s),ar(a0+(t*4+s)*4,4),R('T%d'%t) if s else "0")
                if ex[2*s+t]: A(ex[2*s+t])
            if s<3: slot()
        A(f"s_mov_b64 exec, 3\nglobal_store_dwordx2 {x('aPS2')}, {R('st',2)}, {sp(sPub[l])} sc1\ns_mov_b64 exec, -1"); vm("P")
        rowsum()
        pack_store("0x3333" if it else "0x11113333","aP2",sPub[l],True)
        stamp(2)
        A(f"ds_write_b128 {x('xFw')}, {R('D')}")
        if l<3: A(f"s_mov_b64 exec, {sp(mRs)}\nglobal_store_dwordx4 {x('aR')}, {R('Neg')}, {sp(sPub[l+1])} sc1\ns_mov_b64 exec, -1"); vm("R")
        if l==0:
            A(f"v_and_b32 {x('t0')}, 1, {x('g')}\nv_mul_u32_u24 {x('t0')}, {LAY-8192}, {x('t0')}\nv_sub_u32 {x('aP2')}, {x('aP2')}, {x('t0')}")
        def g(sim):
            if not it: ld(sim,"c0",4,'C0','aC2',28); ld(sim,"c1",4,'C1','aC2',28,1024)
            ld(sim,"g0",4,'G0','aG2',sGat[l]); ld(sim,"g1",4,'G1','aG2',sGat[l],1024); ld(sim,"g2",4,'S','aS2',sGat[l])
        def c(fail):
            if not it:
                waitfor("c1"); mf(R('T0'),R('Sel'),R('C0'),"0"); chk(q4('C0')+q4('C1')[:1]); mf(R('T0'),R('Sel'),R('C1'),R('T0')); chk(q4('C1')[1:],False)
            waitfor("g0"); mf(R('D'),R('Sel'),R('G0'),"0"); chk(q4('G0'),bool(it)); waitfor("g1"); mf(R('D'),R('Sel'),R('G1'),R('D')); chk(q4('G1'),False)
            waitfor("g2"); chk(q4('S'),False); fin(fail)
        edge(3*l,g,c,1,3)
        stamp(4)
        if not it:
            cvtD('T0'); A(f"ds_write_b64 {x('xW')}, {R('c01',2)} offset:{XC[X]}")
        A(f"v_add_f32 {x('st',1)}, {x('S',1)}, {x('S',3)}\nv_add_f32 {x('st')}, {x('S')}, {x('S',2)}")
        cvtD()
        A(f"ds_write_b64 {x('xW')}, {R('c01',2)} offset:{XA}")
        if l==0: A(f"v_add_u32 {x('aC2')}, 8192, {x('aC2')}")
        for k in (1,2): A(f"v_add_f32_dpp {x('st',1)}, {x('st',1)}, {x('st',1)} row_ror:{k} {DP}\nv_add_f32_dpp {x('st')}, {x('st')}, {x('st')} row_ror:{k} {DP}")
        slot(); bar()
        for s in range(4): A(f"ds_read_b128 {R('A%d'%s)}, {x('rA'+X)} offset:{64*s}")
        stamp(5)
        for k in (4,8): A(f"v_add_f32_dpp {x('st',1)}, {x('st',1)}, {x('st',1)} row_ror:{k} {DP}\nv_add_f32_dpp {x('st')}, {x('st')}, {x('st')} row_ror:{k} {DP}")
        slot()
        ex=[f"v_mul_f32 {x('ab',1)}, {hex(f2u(-1/1024))}, {x('st',1)}",
            f"v_mul_f32 {x('t0')}, {x('ab',1)}, {x('ab',1)}",
            f"v_mul_f32 {x('t1')}, {hex(f2u(1/1024))}, {x('st')}",
            f"v_sub_f32 {x('t1')}, {x('t1')}, {x('t0')}",
            f"v_max_f32 {x('t1')}, 0, {x('t1')}",
            f"v_add_f32 {x('t1')}, {hex(f2u(1e-5))}, {x('t1')}",
            f"v_rsq_f32 {x('t1')}, {x('t1')}",
            f"v_mul_f32 {x('ab')}, {hex(f2u(128**-0.5*1.4426950408889634))}, {x('t1')}"]
        for s in range(4):
            A(f"s_waitcnt lgkmcnt({3-s})")
            for t in range(2):
                mf(R('T%d'%t),R('A%d'%s),ar(a0+32+(t*4+s)*4,4),R('T%d'%t) if s else "0"); A(ex[2*s+t])
            slot()
        A(f"v_fma_f32 {x('tA')}, {x('T0',1)}, {x('ab',1)}, {x('T0')}\nv_fma_f32 {x('tB')}, {x('T1',1)}, {x('ab',1)}, {x('T1')}")
        A(f"v_max_f32 {x('t0')}, {x('tA')}, {x('tB')}")
        for k in (1,2,4,8): A(f"v_max_f32_dpp {x('t0')}, {x('t0')}, {x('t0')} row_ror:{k} {DP}")
        A(f"v_mul_f32 {x('t0')}, {x('t0')}, {x('ab')}\nv_ceil_f32 {x('t0')}, {x('t0')}")
        A(f"v_fma_f32 {x('tA')}, {x('tA')}, {x('ab')}, -{x('t0')}\nv_fma_f32 {x('tB')}, {x('tB')}, {x('ab')}, -{x('t0')}")
        A(f"v_exp_f32 {x('tA')}, {x('tA')}\nv_exp_f32 {x('tB')}, {x('tB')}\nds_write_b32 {x('mW')}, {x('t0')}")
        A(f"v_cvt_pk_bf16_f32 {x('t1')}, {x('tA')}, {x('tB')}\nds_write_b32 {x('pW')}, {x('t1')}")
        if l==0 and vt:
            if "U" not in o["e0"]: useV()
        slot(); bar()
        A(f"ds_read_b128 {R('A0')}, {x('rP0')}\nds_read_b128 {R('W4')}, {x('mR')}")
        for s in range(1,4): A(f"ds_read_b128 {R('A%d'%s)}, {x('rP%d'%s)}")
        A(f"ds_read_b128 {R('Ag')}, {x('rPl')}")
        stamp(6); slot()
        A(f"s_waitcnt lgkmcnt(5)")
        mf(R('T0'),R('A0'),ar(a0+64,4),"0"); A(f"s_waitcnt lgkmcnt(4)\nv_max3_f32 {x('st')}, {x('W4')}, {x('W4',1)}, {x('W4',2)}")
        mf(R('T1'),R('A0'),ar(a0+64+16,4),"0"); A(f"v_max_f32 {x('st')}, {x('st')}, {x('W4',3)}\ns_waitcnt lgkmcnt(3)")
        mf(R('T0'),R('A1'),ar(a0+64+4,4),R('T0')); A(f"v_sub_f32 {x('W4')}, {x('W4')}, {x('st')}\nv_sub_f32 {x('W4',1)}, {x('W4',1)}, {x('st')}")
        mf(R('T1'),R('A1'),ar(a0+64+20,4),R('T1')); A(f"v_exp_f32 {x('W4')}, {x('W4')}\ns_waitcnt lgkmcnt(0)")
        mf(R('Tg'),R('Ag'),R('One'),"0"); A(f"v_exp_f32 {x('W4',1)}, {x('W4',1)}")
        mf(R('T0'),R('A2'),ar(a0+64+8,4),R('T0')); A(f"v_sub_f32 {x('W4',2)}, {x('W4',2)}, {x('st')}\nv_sub_f32 {x('W4',3)}, {x('W4',3)}, {x('st')}")
        mf(R('T1'),R('A2'),ar(a0+64+24,4),R('T1')); A(f"v_exp_f32 {x('W4',2)}, {x('W4',2)}")
        mf(R('T0'),R('A3'),ar(a0+64+12,4),R('T0')); A(f"v_exp_f32 {x('W4',3)}, {x('W4',3)}")
        mf(R('T1'),R('A3'),ar(a0+64+28,4),R('T1'))
        def comb(dst,T):
            A(f"v_pk_mul_f32 {R(dst,2)}, {R(T,2)}, {R('W4',2)}\nv_pk_fma_f32 {R(dst,2)}, {vr(r[T]+2,2)}, {vr(r['W4']+2,2)}, {R(dst,2)}\nv_add_f32 {x(dst)}, {x(dst)}, {x(dst,1)}")
        A(f"v_pk_mul_f32 {R('ab',2)}, {R('Tg',2)}, {R('W4',2)}\nv_pk_fma_f32 {R('ab',2)}, {vr(r['Tg']+2,2)}, {vr(r['W4']+2,2)}, {R('ab',2)}\nv_add_f32 {x('st',1)}, {x('ab')}, {x('ab',1)}")
        A(f"s_mov_b64 exec, {sp(mS3)}\nglobal_store_dwordx2 {x('aPS3')}, {R('st',2)}, {sp(sPub[l])} sc1\ns_mov_b64 exec, -1"); vm("P")
        comb('tA','T0'); comb('tB','T1')
        pack_store(sp(mP3),"aP3",sPub[l],True)
        stamp(7)
        for k in range(4): A(f"ds_read_b128 {R('F%d'%k)}, {x('xFr')} offset:{k*FS}")
        if l==0 and vt: A(f"ds_read_b64 {R('pa',2)}, {x('lR')} offset:{XV-XR}")
        A("s_waitcnt lgkmcnt(0)")
        if l==0 and vt:
            A(f"v_readfirstlane_b32 s57, {x('pa')}\nv_readfirstlane_b32 s58, {x('pa',1)}")
            if diag: A(f"s_and_b32 s59, s57, 0xffff\ns_lshl_b32 s60, s58, 16\ns_or_b32 s59, s59, s60\nv_writelane_b32 {x('stamp')}, s59, 16")
            A(f"s_cmp_gt_i32 s57, 0\ns_cselect_b32 s57, 1, 0\ns_xor_b32 s57, s57, s{sSide}\ns_lshl_b32 s57, s57, 13")
            A(f"s_cmp_gt_i32 s58, 0\ns_cselect_b32 s58, 1, 0\ns_xor_b32 s58, s58, s{sSide}\ns_lshl_b32 s58, s58, 13"); gatbases(57,58)
        sumF()
        A(f"v_lshlrev_b32 {x('X4')}, 16, {x('c01')}\nv_and_b32 {x('X4',1)}, 0xffff0000, {x('c01')}\nv_lshlrev_b32 {x('X4',2)}, 16, {x('c01',1)}\nv_and_b32 {x('X4',3)}, 0xffff0000, {x('c01',1)}")
        for k in range(4): A(f"v_mul_f32 {x('X4',k)}, {hex(f2u(0.25))}, {x('X4',k)}")
        def g(sim):
            ld(sim,"g2",2,'S','aS3',sGat[l]); ld(sim,"g0",4,'G0','aG3',sGat[l]); ld(sim,"g1",4,'G1','aG3',sGat[l],1024)
        def c(fail):
            waitfor("g2")
            A(f"v_max_f32_dpp {x('st')}, {x('S')}, {x('S')} quad_perm:[1,0,3,2] {DP}")
            A(f"v_max_u32 {x('chk')}, {x('S')}, {x('S',1)}")
            A(f"v_max_f32_dpp {x('st')}, {x('st')}, {x('st')} quad_perm:[2,3,0,1] {DP}")
            A(f"v_max_f32_dpp {x('st')}, {x('st')}, {x('st')} row_half_mirror {DP}")
            A(f"v_subrev_f32_dpp {x('t0')}, {x('st')}, {x('S')} row_newbcast:0 {DP}")
            A(f"v_exp_f32 {x('t0')}, {x('t0')}")
            waitfor("g0"); chk(q4('G0'),False)
            A(f"v_perm_b32 {x('t1')}, {x('t0')}, {x('t0')}, s{sPerm}\nv_mul_f32 {x('st',1)}, {x('t0')}, {x('S',1)}")
            for e in range(4): A(f"v_and_b32_dpp {x('A0',e)}, {x('t1')}, {x('Msk',e)} row_newbcast:8 {DP}")
            for e in range(2): A(f"v_and_b32_dpp {x('A1',e)}, {x('t1')}, {x('Msk',e)} row_newbcast:9 {DP}")
            mf(R('D'),R('A0'),R('G0'),"0")
            for e in range(2,4): A(f"v_and_b32_dpp {x('A1',e)}, {x('t1')}, {x('Msk',e)} row_newbcast:9 {DP}")
            A(f"v_add_f32_dpp {x('st',1)}, {x('st',1)}, {x('st',1)} quad_perm:[1,0,3,2] {DP}")
            waitfor("g1")
            mf(R('D'),R('A1'),R('G1'),R('D'))
            chk(q4('G1'),False)
            A(f"v_add_f32_dpp {x('st',1)}, {x('st',1)}, {x('st',1)} quad_perm:[2,3,0,1] {DP}")
            A(f"v_cmp_eq_u32 vcc, -1, {x('chk')}")
            A(f"v_add_f32_dpp {x('st',1)}, {x('st',1)}, {x('st',1)} row_half_mirror {DP}")
            A(f"s_cbranch_vccnz {fail}")
        edge(3*l+1,g,c,2,8)
        stamp(9)
        A(f"s_mov_b64 exec, 1\nds_write_b64 {x('lW')}, {R('st',2)}\ns_mov_b64 exec, -1")
        cvtD()
        A(f"ds_write_b64 {x('xW')}, {R('c01',2)} offset:{XO}")
        slot(); bar()
        A(f"ds_read_b128 {R('A0')}, {x('rO')}\nds_read_b128 {R('F0')}, {x('lR')}\nds_read_b128 {R('F1')}, {x('lR')} offset:16")
        for s in range(1,4): A(f"ds_read_b128 {R('A%d'%s)}, {x('rO')} offset:{64*s}")
        stamp(10); slot()
        Ms=[x('F0'),x('F0',2),x('F1'),x('F1',2)]; Ls=[x('F0',1),x('F0',3),x('F1',1),x('F1',3)]
        ex=[f"s_waitcnt lgkmcnt(3)\nv_max3_f32 {x('t0')}, {Ms[0]}, {Ms[1]}, {Ms[2]}",
            f"v_max_f32 {x('t0')}, {x('t0')}, {Ms[3]}\nv_sub_f32 {x('W4')}, {Ms[0]}, {x('t0')}",
            f"v_sub_f32 {x('W4',1)}, {Ms[1]}, {x('t0')}\nv_exp_f32 {x('W4')}, {x('W4')}",
            f"v_sub_f32 {x('W4',2)}, {Ms[2]}, {x('t0')}\nv_exp_f32 {x('W4',1)}, {x('W4',1)}",
            f"v_sub_f32 {x('W4',3)}, {Ms[3]}, {x('t0')}\nv_exp_f32 {x('W4',2)}, {x('W4',2)}",
            f"v_mul_f32 {x('t1')}, {x('W4')}, {Ls[0]}\nv_exp_f32 {x('W4',3)}, {x('W4',3)}",
            f"v_fma_f32 {x('t1')}, {x('W4',1)}, {Ls[1]}, {x('t1')}\nv_fma_f32 {x('t1')}, {x('W4',2)}, {Ls[2]}, {x('t1')}",
            f"v_fma_f32 {x('t1')}, {x('W4',3)}, {Ls[3]}, {x('t1')}\nv_rcp_f32 {x('t1')}, {x('t1')}"]
        for s in range(4):
            A(f"s_waitcnt lgkmcnt({[5,2,1,0][s]})")
            for t in range(2):
                mf(R('T%d'%t),R('A%d'%s),ar(a0+96+(t*4+s)*4,4),R('T%d'%t) if s else "0"); A(ex[2*s+t])
            if s<3: slot()
        A(f"v_pk_mul_f32 {R('tA',2)}, {R('T0',2)}, {R('W4',2)}\nv_pk_fma_f32 {R('tA',2)}, {vr(r['T0']+2,2)}, {vr(r['W4']+2,2)}, {R('tA',2)}\nv_add_f32 {x('tA')}, {x('tA')}, {x('tA',1)}")
        A(f"v_pk_mul_f32 {R('tB',2)}, {R('T1',2)}, {R('W4',2)}\nv_pk_fma_f32 {R('tB',2)}, {vr(r['T1']+2,2)}, {vr(r['W4']+2,2)}, {R('tB',2)}\nv_mul_f32 {x('tA')}, {x('tA')}, {x('t1')}\nv_add_f32 {x('tB')}, {x('tB')}, {x('tB',1)}\nv_mul_f32 {x('tB')}, {x('tB')}, {x('t1')}")
        pack_store("0x11111111","aP1",sPub[l],False)
        stamp(11)
        flush(l)
    A(f"s_lshl_b32 s57, s{sL}, 2\ns_cmp_eq_u32 s57, s{sM}\ns_cbranch_scc0 L_fail")
    A(f"s_lshl_b32 s57, s{sR}, 8\nv_add_u32 {x('t3')}, s57, {x('t2')}\nv_mov_b32 {x('t4')}, {NONCE}\nv_mov_b32 {x('fl')}, s{sTag}")
    E1(11,4)
    stamp(0)
    A(f"ds_write_b128 {x('xFw')}, {R('D')}"); bar()
    if diag: A(f"v_writelane_b32 {x('stamp')}, s76, 60")
    for k in range(4): A(f"ds_read_b128 {R('F%d'%k)}, {x('xFr')} offset:{k*FS}")
    A(f"s_cmp_eq_u32 s{sW}, 0\ns_cbranch_scc0 L_fail")
    A("s_waitcnt lgkmcnt(0)")
    sumF()
    A(f"s_mov_b32 exec_hi, 0\nglobal_store_dwordx2 {x('t3')}, {R('c01',2)}, s[24:25]")
    A(f"s_cmp_eq_u32 s{sL}, 0\ns_cbranch_scc0 L_fail")
    A(f"s_mov_b64 exec, 1\nglobal_store_dword {x('t4')}, {x('fl')}, s[28:29] sc1")
    A("L_fail:")
    if "hx" in o:
        A(f"s_waitcnt lgkmcnt(0)\ns_add_u32 s96, s96, {o.get('hxus',40)*100}\ns_mov_b32 s95, 0\nL_hx:\ns_sleep 1\ns_memrealtime s[92:93]\ns_add_u32 s95, s95, 1\ns_waitcnt lgkmcnt(0)\ns_cmp_gt_u32 s95, 20000\ns_cbranch_scc1 L_hx1\ns_sub_u32 s92, s92, s96\ns_cmp_lt_i32 s92, 0\ns_cbranch_scc1 L_hx\nL_hx1:")
    if diag:
        A("s_mov_b64 exec, -1\ns_memrealtime s[76:77]\ns_memtime s[78:79]\ns_waitcnt lgkmcnt(0)\ns_sub_u32 s78, s78, s74")
        A(f"v_writelane_b32 {x('stamp')}, s76, 61\nv_writelane_b32 {x('stamp')}, s78, 62\nv_writelane_b32 {x('stamp')}, s{sTo}, 63")
        A(f"s_lshl_b32 s57, s2, 10\ns_lshl_b32 s58, s{sW}, 8\ns_add_u32 s57, s57, s58\ns_add_u32 s57, s57, {DIAG}\nv_lshl_add_u32 {x('t0')}, v0, 2, s57\nglobal_store_dword {x('t0')}, {x('stamp')}, s[28:29]")
    A("s_endpgm")
    L.extend(OOL)
    A("L_end:\ns_endpgm")
    assert V.n<=256 and ns[0]==64
    A(f'.section .rodata,"a"\n.p2align 6\n.amdhsa_kernel {name}_kernel\n  .amdhsa_next_free_vgpr 512\n  .amdhsa_next_free_sgpr 102\n  .amdhsa_accum_offset 256\n  .amdhsa_group_segment_fixed_size 0\n  .amdhsa_kernarg_size 104\n  .amdhsa_user_sgpr_count 2\n  .amdhsa_user_sgpr_kernarg_segment_ptr 1\n  .amdhsa_system_sgpr_workgroup_id_x 1\n.end_amdhsa_kernel')
    out,n=fix(L,verbose=("-v" in sys.argv))
    return "\n".join(out)+"\n"
def parse(args):
    kw={}
    for a in args:
        if "=" in a:
            k,val=a.split("="); kw[k]=val if k[0]=="e" else (tuple(int(z) for z in val.split(",")) if "," in val else int(val))
    return kw
if __name__=="__main__":
    t=gen(**parse(sys.argv[2:]))
    if "diag=1" in sys.argv: t+="; args: "+" ".join(a for a in sys.argv[2:] if a!="diag=1")+"\n"
    open(sys.argv[1],"w").write(t)
```

```python
import re,sys
import numpy as np
M=0xffffffff
SZ={0:2048,8:1<<26,16:1<<26,24:1<<23,32:1<<23,40:2048,48:1<<26,56:1<<26,64:1<<23,72:1<<23,80:2048,88:256,96:301993984,104:16384}
WSLO=0; VOTE=(0,0); SIDE=None
def run(path,wgs=range(256),verbose=False,collect=None):
    T=[l.split(";")[0].strip() for l in open(path)]
    lds=int(re.search(r"lds=(\d+)",open(path).read()).group(1))
    T=[t for t in T if t]
    st=[i for i,t in enumerate(T) if t.endswith("_kernel:")][0]
    lab={t[:-1]:i for i,t in enumerate(T) if t.endswith(":")}
    P=[]
    for t in T:
        p=t.split(None,1); op=p[0]; rest=p[1] if len(p)>1 else ""
        ops=[o.strip() for o in re.split(r",(?![^\[]*\])",rest)] if rest else []
        mods=""
        if ops:
            l=ops[-1].split(None,1); ops[-1]=l[0]; mods=l[1] if len(l)>1 else ""
        P.append((op,ops,mods))
    nacc=0
    for wg in wgs:
      for w in range(4):
        S={0:0x1000,1:0xAA,2:wg}; V={0:(np.arange(64)+64*w).astype(np.uint64)}
        ex=[M,M]; vcc=None; scc=None; m0=None
        def rng(o):
            m=re.fullmatch(r"([vas])\[(\d+):(\d+)\]",o)
            if m: return m.group(1),list(range(int(m.group(2)),int(m.group(3))+1))
            m=re.fullmatch(r"([vas])(\d+)",o)
            if m: return m.group(1),[int(m.group(2))]
            return None,None
        def sval(o):
            if o=="m0": return m0
            if o=="exec_lo": return ex[0]
            if o=="exec_hi": return ex[1]
            k,r=rng(o)
            if k=="s": return S.get(r[0])
            if k: raise Exception(o)
            if o.startswith("L_end"): return 15000
            try: return int(o,0)&M
            except: return None
        def s64(o):
            if o=="exec": return ex[0]|(ex[1]<<32)
            k,r=rng(o)
            if k=="s":
                a,b=S.get(r[0]),S.get(r[1]); return None if a is None or b is None else a|(b<<32)
            v=int(o,0); return v&((1<<64)-1)
        def val(o):
            k,r=rng(o)
            if k=="v": return V.get(r[0])
            if k=="a": return None
            x=sval(o); return None if x is None else np.full(64,x,dtype=np.uint64)
        def mask():
            e=ex[0]|(ex[1]<<32); return np.array([(e>>i)&1 for i in range(64)],dtype=bool)
        def setv(o,x):
            k,r=rng(o)
            if k=="a": return
            if x is None or len(r)>1:
                for i in r: V[i]=None
                return
            x=x&M; mk=mask()
            if mk.all(): V[r[0]]=x
            else:
                old=V.get(r[0])
                if old is None:
                    V[r[0]]=np.where(mk,x,np.uint64(0xdeadbeef))
                else: V[r[0]]=np.where(mk,x,old)
        def sets(o,x):
            nonlocal m0
            if o=="m0": m0=x; return
            if o=="exec_lo": ex[0]=x; return
            if o=="exec_hi": ex[1]=x; return
            if o=="exec": ex[0]=x&M; ex[1]=(x>>32)&M; return
            k,r=rng(o)
            if len(r)==1: S[r[0]]=None if x is None else x&M
            else:
                for j,i in enumerate(r): S[i]=None if x is None else (x>>(32*j))&M
        pc=st+1; steps=0; nv=[0]
        while True:
            steps+=1; assert steps<100000
            op,o,mods=P[pc]; pc+=1
            if op.endswith(":") or op.startswith("."): continue
            if op=="s_endpgm": break
            off=re.search(r"offset:(-?\d+)",mods); off=int(off.group(1)) if off else 0
            if op.startswith("s_load"):
                base=s64(o[1]); k,r=rng(o[0]); a=int(o[2],0)
                if base==0x1000|(0xAA<<32):
                    for j,i in enumerate(r):
                        slot=(a+4*j)//8*8; assert slot in SZ,(op,o)
                        S[i]=(WSLO if slot==96 else 0) if (a+4*j)%8==0 else (slot//8+1)<<8
                else:
                    b=(base>>40)-1; sl=b*8; x=(base&((1<<40)-1))+a-(WSLO if sl==96 else 0)
                    assert sl in SZ and 0<=x and x+4*len(r)<=SZ[sl],(op,o,hex(base))
                    for i in r: S[i]=None
                continue
            if op in("s_waitcnt","s_barrier","s_nop","s_sleep","s_setprio"): continue
            if op=="s_memrealtime" or op=="s_memtime": sets(o[0],None); continue
            if op=="s_getpc_b64": sets(o[0],(104//8+1)<<40); continue
            if op=="s_getreg_b32":
                xc=(wg&7) if SIDE is None else SIDE*4
                mm=re.search(r"hwreg\(HW_REG_XCC_ID, *(\d+), *(\d+)\)",T[pc-1]); sets(o[0],(xc>>int(mm.group(1)))&((1<<int(mm.group(2)))-1)); continue
            if op=="s_branch": pc=lab[o[0]]; continue
            if op=="s_cbranch_scc1":
                assert scc is not None,(pc,o)
                if scc: pc=lab[o[0]]
                continue
            if op=="s_cbranch_scc0":
                assert scc is not None,(pc,o)
                if not scc: pc=lab[o[0]]
                continue
            if op=="s_cbranch_vccnz":
                assert vcc is None; continue
            if op=="s_cbranch_vccz":
                assert vcc is None; pc=lab[o[0]]; continue
            if op=="s_bitcmp1_b32": scc=bool((sval(o[0])>>int(o[1]))&1); continue
            if op.startswith("s_cmp"):
                a,b=(s64(o[0]),s64(o[1])) if op.endswith("64") else (sval(o[0]),sval(o[1]))
                if a is None or b is None: scc=None; continue
                if op.endswith("i32"): a=a-(a>>31<<32); b=b-(b>>31<<32)
                scc={"eq":a==b,"lg":a!=b,"lt":a<b,"ge":a>=b,"gt":a>b,"le":a<=b}[op.split("_")[2]]; continue
            if op.startswith("s_"):
                if op in("s_mov_b64",): sets(o[0],s64(o[1])); continue
                if op=="s_lshl_b64": sets(o[0],(s64(o[1])<<sval(o[2]))&((1<<64)-1)); continue
                a=sval(o[1]); b=sval(o[2]) if len(o)>2 else 0
                if op=="s_cselect_b32":
                    sets(o[0],None if scc is None else (a if scc else b)); continue
                if a is None or b is None: sets(o[0],None); scc=None; continue
                if op in("s_mov_b32","s_movk_i32"): r=a
                elif op=="s_not_b32": r=~a; scc=(r&M)!=0
                elif op=="s_add_u32": r=a+b; scc=r>M
                elif op=="s_addc_u32": r=a+b+int(scc); scc=r>M
                elif op=="s_sub_u32": r=a-b; scc=r<0
                elif op=="s_mul_i32": r=a*b
                elif op=="s_lshl_b32": r=a<<(b&31); scc=(r&M)!=0
                elif op=="s_lshr_b32": r=a>>(b&31); scc=r!=0
                elif op=="s_and_b32": r=a&b; scc=r!=0
                elif op=="s_or_b32": r=a|b; scc=r!=0
                elif op=="s_xor_b32": r=a^b; scc=r!=0
                elif op=="s_bfe_u32": r=(a>>(b&31))&((1<<((b>>16)&127))-1); scc=r!=0
                else: raise Exception(op)
                sets(o[0],r&M); continue
            if op.startswith("global_"):
                nacc+=1
                wd={"dword":4,"dwordx2":8,"dwordx3":12,"dwordx4":16,"add":4,"or":4,"ubyte":1,"ushort":2,"short":2}[op.split("_")[-1]]
                if "load_lds" in op: va,sb=o[0],o[1]
                elif "load" in op: va,sb=o[1],o[2]
                elif "atomic" in op: va,sb=(o[1],o[3]) if len(o)==4 else (o[0],o[2])
                else: va,sb=o[0],o[2]
                if sb=="off":
                    k,rr=rng(va); lo,hi=V.get(rr[0]),V.get(rr[1]); assert lo is not None and hi is not None and (hi==hi[0]).all()
                    a=lo; base=int(hi[0])<<32
                else: a=val(va); base=s64(sb)
                assert a is not None and base is not None,(pc,op,o)
                sl=((base>>40)-1)*8; x=(base&((1<<40)-1))+a.astype(np.int64)+off-(WSLO if sl==96 else 0); mk=mask()
                assert sl in SZ,(op,o)
                assert (x>=0).all() and (x+wd<=SZ[sl]).all(),(wg,w,op,o,mods,x,SZ[sl])
                assert (x[mk]%(4 if wd==12 else min(wd,16))==0).all(),(op,o,x)
                if "store" in op or "atomic" in op: assert sl>=80,(op,o)
                if collect is not None: collect.append((wg,w,pc-1,op,sl,x[mk].copy(),m0,off))
                if "load_lds" in op:
                    assert m0 is not None and m0+off+64*wd<=lds,(op,o,m0)
                elif "load" in op or ("atomic" in op and len(o)==4): setv(o[0],None)
                continue
            if op.startswith("ds_"):
                wd={"b32":4,"u32":4,"b64":8,"b128":16,"b16":8}[op.split("_")[-1]]
                rd="read" in op
                a=val(o[1] if rd else o[0]); assert a is not None,(pc,op,o)
                if "2_b32" in op:
                    o0,o1=[4*int(z) for z in re.findall(r"offset[01]:(\d+)",mods)]; mk=mask(); x=a.astype(np.int64)
                    assert (x[mk]+max(o0,o1)+4<=lds).all() and (x[mk]%4==0).all()
                    if collect is not None:
                        for oo in (o0,o1): collect.append((wg,w,pc-1,op.replace("2_b32","_b32"),-1,x[mk]+oo,m0,oo))
                    if rd: setv(o[0],None)
                    continue
                x=a.astype(np.int64)+off; mk=mask()
                assert (x[mk]+wd<=lds).all() and (x[mk]%wd==0).all(),(wg,w,op,o,mods,x)
                if collect is not None: collect.append((wg,w,pc-1,op,-1,x[mk].copy(),m0,off))
                if rd: setv(o[0],None)
                continue
            if op.startswith("v_"):
                if op=="v_readfirstlane_b32":
                    a=val(o[1])
                    if a is None: sets(o[0],VOTE[nv[0]&1]&M); nv[0]+=1; continue
                    sets(o[0],int(a[0])); continue
                if op.startswith("v_cmp"):
                    a,b=val(o[1]),val(o[2]); c=op.split("_")[2]
                    if a is None or b is None or not op.endswith("u32"): r=None
                    else: r={"eq":a==b,"ne":a!=b,"lt":a<b,"le":a<=b,"gt":a>b,"ge":a>=b}[c]
                    if o[0]=="vcc": vcc=r
                    else: sets(o[0],None)
                    continue
                if op=="v_add_co_u32":
                    a,b2=val(o[2]),val(o[3]); r_=a+b2; vcc=r_>M; setv(o[0],r_); continue
                if op=="v_addc_co_u32":
                    a,b2=val(o[2]),val(o[3]); r_=a+b2+vcc.astype(np.uint64); vcc=None; setv(o[0],r_); continue
                if op=="v_writelane_b32": setv(o[0],None); continue
                X=[val(z) if not z.startswith("-") or z[1:].isdigit() else None for z in o[1:] if z!="vcc"]
                if any(z is None for z in X) or "dpp" in op: setv(o[0],None); continue
                u=np.uint64
                f={"v_mov_b32":lambda a:a,"v_add_u32":lambda a,b:a+b,"v_sub_u32":lambda a,b:a+(u(1<<32)-b),"v_and_b32":lambda a,b:a&b,"v_or_b32":lambda a,b:a|b,"v_xor_b32":lambda a,b:a^b,
                   "v_lshlrev_b32":lambda a,b:b<<(a&u(31)),"v_lshrrev_b32":lambda a,b:b>>(a&u(31)),"v_lshl_add_u32":lambda a,b,c:(a<<(b&u(31)))+c,"v_add3_u32":lambda a,b,c:a+b+c,
                   "v_lshl_or_b32":lambda a,b,c:(a<<(b&u(31)))|c,"v_and_or_b32":lambda a,b,c:(a&b)|c,"v_or3_b32":lambda a,b,c:a|b|c,"v_add_lshl_u32":lambda a,b,c:((a+b)&u(M))<<(c&u(31)),
                   "v_mul_lo_u32":lambda a,b:a*b,"v_mul_u32_u24":lambda a,b:(a&u(0xffffff))*(b&u(0xffffff)),"v_min_u32":np.minimum,"v_max_u32":np.maximum,
                   "v_mad_u32_u24":lambda a,b,c:(a&u(0xffffff))*(b&u(0xffffff))+c,
                   "v_bfe_u32":lambda a,b,c:(a>>b)&((u(1)<<c)-u(1))}.get(op)
                if op=="v_cndmask_b32":
                    setv(o[0],None if vcc is None else np.where(vcc,X[1],X[0])); continue
                setv(o[0],f(*X) if f else None); continue
            raise Exception(op)
    return nacc
if __name__=="__main__":
    for f in sys.argv[1:]:
        if f=="-q": continue
        if "-q" in sys.argv:
            for VOTE,WSLO in (((0,-1),0),((1,1),256),((0,1),0x1fff00)): n=run(f,wgs=[0,1,9,110,131,246,229,255,256])
            print(f,"accesses checked:",n)
        else:
            VOTE=(1,-1); WSLO=4096
            print(f,"accesses checked:",run(f,wgs=range(257)))
```

```python
import sys, math, struct
from hz import fix
NAME="interleave_layers__sliding_block_cached__sliding_block_cached__decode"
HDR=open("cdna_kernels/%s.s.ref"%NAME).read().split("; Override launch")[0]
def f2u(x): return struct.unpack("<I",struct.pack("<f",x))[0]
AS=1056
XQ=0; XA=2*AS; XO=4*AS; XP=6*AS; XM=8*AS; XR=XM+128; XV=XR+32; XF=XV+32; FS=528
BUFK=0x2c00; VS=8320; BUFV=BUFK+0x8000; WS=16416; BUFW=BUFV+4*VS; LDSSZ=BUFW+4*WS
assert XF+4*FS<=BUFK and XF%16==0
S=0x20000; DB=0x80000; PRB=0xC0000; MISC=0x100000; ST2=MISC+0x10000; ST3=MISC+0x14000; CS=MISC+0x18000
FLG=0x1A0000; NONCE=0x1A8000; E3=0x200000; DIAG=6<<20
class Regs:
    def __init__(s,n0): s.n=n0; s.d={}
    def __call__(s,name,k=1,al=1):
        s.n=(s.n+al-1)//al*al; s.d[name]=s.n; s.n+=k; return s.d[name]
ORDER=[("q",q) for q in range(16)]+[("k",q) for q in range(8)]+[("v",q) for q in range(8)]+[("o",q) for q in range(16)]
DEF=dict(diag=0, TMO=30000, slp=2, slpl=1, wfl=0, kfl=0, pf=1, force=0, dsl=3, ring=(3,1,1), vpos=2,
         an0=16, ap="U_Z_H0_L24_E_M8_M16", aq=24, br0="",
         a0="N1_F_L26_W21_C_G_B_L32_K", a1="L40_S2_G_B_L48_M40_M48", acs="F_H1_V_Q_X_Y", a2="D_G", a3="S2_G", a4="S2_G",
         asp=(36,48),
         bn0=2, bp="U_N0_N1_Z_O_H0_H1_P12.2_F_P24.8_C_M16_B_Y_Q_P32.8_K_X_M32_P40.8",
         b1="D_G_B_L44", b2="S2_G_B_L48", b3="S2_G_M48", b4="D_G", b5="S2_G", b6="S2_G", b7="A_G",
         bsp=(44,48,48), sk=1)
FL=['nt','','sc1','sc0 sc1','sc1 nt','sc0']
V=Regs(1)
for n in "Sel SelL SelH Msk G0 G1 G2 G3 S D T0 T1 T2 T3 U0 U1 L0 L1 Tg Ag A0 A1 W0 W1 F0 F1 F2 F3 Neg P4 X4 fF".split(): V(n,4,4)
V("One",8,4)
for n in "c01 st ab tA tB tC tD kc0 kc1 xr pa fl mx".split(): V(n,2,2)
for n in ("aG1 aG2 aC2 aS2 aG3 aS3 aP2 aPS2 aP3 aPS3 aP1 aR aWm aF aFl aDp aDc dQ dK dV dO dT dS xWQ xWA xWO xFw xFr rA rG rP pW mW mR lW lR lR2 vW "
          "tT0 tT1 tV tK idx tid n g t0 t1 t2 t3 t4 t5 chk p0 p1 p2 p3 dbv stamp").split(): V(n)
assert V.n<=256
r=V.d
v=lambda i:f"v{i}"
vr=lambda i,k:f"v[{i}:{i+k-1}]"
ar=lambda i,k:f"a[{i}:{i+k-1}]"
sp=lambda i:f"s[{i}:{i+1}]"
R=lambda n,k=4,o=0:vr(r[n]+o,k)
x=lambda n,o=0:v(r[n]+o)
q4=lambda n:list(range(r[n],r[n]+4))
DP="row_mask:0xf bank_mask:0xf"
sW,sG,sM,sR,sI,sI2,sCB,sMode=30,31,32,33,34,35,36,37
sLb=[38,40]; sN=42; sWq,sWv,sXs,sExp=44,45,46,47; mS3,mCC,mS2=48,50,52; sX28,sSide,sPerm=54,55,56
sWk,sRt,sTo,sTag=3,14,15,26

def path(role,mode,o):
    RING=o["ring"] if isinstance(o["ring"],tuple) else (o["ring"],)*3
    X="AB"[role]; diag=o["diag"]; TMO=o["TMO"]
    pre=[]; preo=[]; post=[]; posto=[]
    main=[pre]; ool=[preo]; cur=[pre]; sfx=[X]
    def A_(t):
        for z in t.split("\n"): cur[0].append(z)
    hook=[A_]
    def A(t): hook[0](t)
    def OOL(): cur[0]=ool[0]
    def MAIN(): cur[0]=main[0]
    lab=lambda n:f"L_{n}_{sfx[0]}"
    PTR=[dict(k=6,v=8,q=10,o=12),dict(k=16,v=18,q=20,o=22)][role]
    LOC=lambda: "sc1" if (mode or main[0] is pre) else ""
    Q=[]
    def vm(tag): Q.append(tag)
    def cnt(tag):
        i=max(i for i,t in enumerate(Q) if t==tag); n=len(Q)-1-i; return min(n,63)
    done=[0]
    def waitfor(tag): n=cnt(tag); done[0]=max(done[0],len(Q)-n); A(f"s_waitcnt vmcnt({n})")
    def acked(tag): return tag in Q and max(i for i,t in enumerate(Q) if t==tag)<done[0]
    curl=[0]
    def stamp(k):
        if diag: A(f"s_memrealtime s[{76+2*k}:{77+2*k}]")
    def lane(k):
        if diag: A(f"s_memrealtime s[100:101]\ns_waitcnt lgkmcnt(0)\nv_writelane_b32 {x('stamp')}, s100, {k}")
    def flush(l):
        if not diag: return
        A("s_waitcnt lgkmcnt(0)")
        for k in range(13):
            if l or 0<k<12: A(f"v_writelane_b32 {x('stamp')}, s{76+2*k}, {4+14*l+k}")
        A(f"v_writelane_b32 {x('stamp')}, s{sRt}, {4+14*l+13}\ns_mov_b32 s{sRt}, 0")
    ns=[0]; moved=set(); nbar=[0]; m0v=[None]; wfree=[99]
    def bar():
        A("s_waitcnt lgkmcnt(0)\ns_barrier"); nbar[0]+=1
    def setm0(sreg,val):
        if m0v[0]!=(sreg,val): A(f"s_add_u32 m0, s{sreg}, {val}"); m0v[0]=(sreg,val)
    def dma(kind,q):
        p=PTR[kind]
        if kind in "qo":
            if kind=="o": assert wfree[0]<=nbar[0] or o.get("nochk"), ("W buffer busy",nbar[0])
            setm0(sWq,BUFW+(q>>2)*WS+(q&3)*4104)
            src=x("dQ" if kind=="q" else "dO")
            if q: A(f"v_add_u32 {x('dT')}, {q*(65536 if kind=='q' else 16384)}, {src}"); src=x("dT")
            A(f"global_load_lds_dwordx4 {src}, {sp(p)} {FL[o['wfl']]}")
        else:
            hi=q//4
            if kind=="v": setm0(sWv,BUFV+hi*4096+8*q)
            else: setm0(sWk,BUFK+hi*4096)
            src=x("dK" if kind=="k" else "dV")
            if kind=="k" and q: A(f"v_xor_b32 {x('dT')}, {q*32}, {src}"); src=x("dT")
            if hi: A(f"v_add_u32 {x('dT')}, 4096, {src}"); src=x("dT")
            A(f"global_load_lds_dwordx4 {src}, {sp(p)} offset:{(q%4)*1024} {FL[o['kfl']]}")
        vm(f"{kind}{q}")
    def stream(n):
        while ns[0]<n: dma(*ORDER[ns[0]]); ns[0]+=1
    def wload(i): k,q=ORDER[i]; assert i<ns[0]; waitfor(f"{k}{q}")
    tgt=[0]
    def slot():
        n=min(tgt[0],ns[0]+o["sk"])
        while ns[0]<n:
            k,q=ORDER[ns[0]]
            if k=="o" and wfree[0]>nbar[0]: break
            dma(k,q); ns[0]+=1
    def trW(kind,reg):
        ab=0 if kind=="q" else 128; Sx=reg>>1
        for t in range(4):
            for ub in range(2):
                u=2*(reg&1)+ub
                A(f"ds_read_b64_tr_b16 {ar(ab+(t*2+Sx)*8+2*u,2)}, {x('tT%d'%(t&1))} offset:{reg*WS+ub*2048+8*(t>>1)}")
        moved.add((kind,reg))
        if kind=="q" and reg==3: wfree[0]=nbar[0]+1
    def trV():
        for U in range(2):
            for t in range(2):
                for jh in range(2):
                    for ib in range(2):
                        A(f"ds_read_b64_tr_b16 {ar(96+(t*2+U)*8+2*(2*jh+ib),2)}, {x('tV')} offset:{2*U*VS+jh*4128+ib*512+8*t}")
        moved.add(("v",0))
    def kreads():
        wload(23)
        for s in range(4):
            A(f"v_xor_b32 {x('dT')}, {64*s}, {x('tK')}")
            for t in range(2): A(f"ds_read_b128 {ar(64+(t*4+s)*4,4)}, {x('dT')} offset:{256*t}")
        moved.add(("k",0))
    def move(n):
        gs=[("q",k) for k in range(4) if 4*k+4<=n]+([("v",0)] if n>=32 else [])+[("o",k) for k in range(4) if 36+4*k<=n]
        gs=[g_ for g_ in gs if g_ not in moved]
        if not gs: return
        k,j=gs[-1]; wload({"q":4*j+3,"v":31,"o":35+4*j}[k]); bar()
        for k,j in gs:
            if k=="v": trV()
            else: trW(k,j)
    def mf(d,a,b,c): A(f"v_mfma_f32_16x16x32_bf16 {d}, {a}, {b}, {c}")
    def smf(d,a,b): A(f"v_smfmac_f32_16x16x64_bf16 {R(d)}, {R(a)}, {b}, {x('idx')}")
    def zero(*names):
        for n in names: A(f"v_mov_b64 {R(n,2)}, 0\nv_mov_b64 {R(n,2,2)}, 0")
    def chk(rs,first=True):
        rs=list(rs); c=x("chk")
        if first:
            A(f"v_max3_u32 {c}, v{rs[0]}, v{rs[1]}, v{rs[2]}"); rs=rs[3:]
        while len(rs)>=2: A(f"v_max3_u32 {c}, {c}, v{rs[0]}, v{rs[1]}"); rs=rs[2:]
        if rs: A(f"v_max_u32 {c}, {c}, v{rs[0]}")
    def fin(fail): A(f"v_cmp_eq_u32 vcc, -1, {x('chk')}\ns_cbranch_vccnz {fail}")
    def cvtD(T='D'): A(f"v_cvt_pk_bf16_f32 {x('c01')}, {x(T)}, {x(T,1)}\nv_cvt_pk_bf16_f32 {x('c01',1)}, {x(T,2)}, {x(T,3)}")
    def wrA(a): A(f"ds_write2_b32 {x(a)}, {x('c01')}, {x('c01',1)} offset0:0 offset1:8")
    def sel2(dst,a,b,thr,src="v0"): A(f"v_cmp_le_u32 vcc, {thr}, {src}\nv_cndmask_b32 {dst}, {a}, {b}, vcc")
    if role: A("L_B:")
    if o["pf"]:
        A(f"s_getpc_b64 s[58:59]\nL_pc{X}:\nv_lshlrev_b32 {x('t0')}, 6, v0\nv_min_u32 {x('t0')}, L_end{X}-L_pc{X}, {x('t0')}")
        A(f"v_add_co_u32 {x('pa')}, vcc, s58, {x('t0')}\nv_mov_b32 {x('t0')}, s59\nv_addc_co_u32 {x('pa',1)}, vcc, 0, {x('t0')}, vcc")
        A(f"global_load_dword {x('chk')}, {R('pa',2)}, off"); vm("pf")
    if diag: A("s_memrealtime s[98:99]\ns_memtime s[74:75]")
    A(f"v_lshrrev_b32 {x('t0')}, 6, v0\nv_mov_b32 {x('tid')}, v0\nv_and_b32 v0, 63, v0\nv_and_b32 {x('n')}, 15, v0\nv_readfirstlane_b32 s{sW}, {x('t0')}")
    A(f"s_bfe_u32 s{sG}, s2, 0x20001\ns_lshr_b32 s{sM}, s2, 3\ns_lshr_b32 s{sR}, s2, 5\ns_and_b32 s{sI}, s{sM}, 3\ns_and_b32 s{sI2}, s{sM}, 7\ns_lshr_b32 s{sCB}, s2, 6")
    A(f"v_lshrrev_b32 {x('g')}, 4, v0\nv_lshrrev_b32 {x('t5')}, 5, v0")
    A(f"v_and_b32 {x('t0')}, 31, v0\nv_lshlrev_b32 {x('t4')}, 4, {x('t0')}\nv_lshlrev_b32 {x('t0')}, 6, {x('t5')}\nv_xor_b32 {x('t1')}, {x('t4')}, {x('t0')}")
    A(f"s_and_b32 s60, s{sW}, 1\ns_lshl_b32 s57, s60, 7\nv_xor_b32 {x('t1')}, s57, {x('t1')}")
    A(f"s_lshl_b32 s57, s{sR}, 20\ns_lshl_b32 s58, s{sW}, 14\ns_add_u32 s57, s57, s58\ns_lshl_b32 s58, s{sG}, 11\ns_add_u32 s57, s57, s58\ns_lshl_b32 s58, s{sI}, 9\ns_add_u32 s57, s57, s58")
    A(f"v_lshl_add_u32 {x('dQ')}, {x('t5')}, 13, {x('t1')}\nv_add_u32 {x('dQ')}, s57, {x('dQ')}")
    A(f"s_lshl_b32 s{sWq}, s{sW}, 10\ns_mul_i32 s{sWv}, s{sW}, {VS}\ns_lshl_b32 s{sWk}, s{sW}, 13")
    A(f"s_lshr_b32 s57, s{sG}, 1\ns_lshl_b32 s57, s57, 19\ns_and_b32 s58, s{sG}, 1\ns_lshl_b32 s58, s58, 16\ns_add_u32 s57, s57, s58\ns_add_u32 s62, s57, {E3}")
    A(f"s_lshl_b32 s57, s{sG}, 3\ns_add_u32 s57, s57, s{sI2}\ns_lshl_b32 s57, s57, 8\ns_lshl_b32 s58, s{sCB}, 15\ns_add_u32 s63, s57, s58")
    A(f"s_lshl_b32 s57, s{sG}, 14\ns_add_u32 s64, s57, {MISC}\ns_lshl_b32 s58, s{sR}, 8\ns_lshl_b32 s59, s{sI}, 12\ns_add_u32 s59, s59, s58\ns_add_u32 s65, s64, s59")
    A(f"s_lshl_b32 s66, s{sG}, 12\ns_lshl_b32 s57, s{sG}, 13\ns_add_u32 s69, s57, {CS}\ns_lshl_b32 s59, s{sI}, 11\ns_add_u32 s59, s59, s58\ns_add_u32 s67, s69, s59")
    A(f"s_lshl_b32 s57, s{sM}, 7\ns_add_u32 s68, s66, s57")
    A(f"v_lshlrev_b32 {x('t3')}, 4, {x('n')}")
    A(f"v_lshl_add_u32 {x('t0')}, {x('g')}, 11, {x('t3')}\nv_add_u32 {x('aWm')}, s65, {x('t0')}")
    A(f"v_bfe_u32 {x('t0')}, v0, 3, 1\nv_mul_u32_u24 {x('t0')}, {ST3-ST2-128}, {x('t0')}\ns_add_u32 s57, s68, {ST2}\nv_add3_u32 {x('t0')}, {x('t0')}, s57, {x('t3')}")
    sel2(x('aWm'),x('aWm'),x('t0'),32)
    A(f"v_add_u32 {x('t0')}, s67, {x('t3')}"); sel2(x('aWm'),x('aWm'),x('t0'),48)
    A(f"s_lshl_b32 s57, s{sW}, 15\ns_lshl_b32 s58, s{sM}, 9\ns_add_u32 s57, s57, s58\ns_add_u32 s57, s57, s62\nv_lshl_add_u32 {x('t0')}, {x('t5')}, 14, {x('t4')}\nv_add_u32 {x('t0')}, s57, {x('t0')}")
    A(f"s_movk_i32 s57, 128\ns_movk_i32 s58, 192"); sel2(x('aWm'),x('t0'),x('aWm'),"s57",x('tid'))
    A(f"v_lshl_add_u32 {x('t0')}, {x('g')}, 13, {x('t3')}\nv_add_u32 {x('t0')}, s63, {x('t0')}"); sel2(x('aR'),x('aWm'),x('t0'),"s58",x('tid'))
    for k in (0,2): A(f"v_mov_b64 {R('Neg',2,k)}, -1")
    A(f"v_and_b32 {x('t2')}, 1, {x('g')}\nv_lshl_add_u32 {x('t2')}, {x('t2')}, 3, {x('t3')}")
    if not role: A(f"s_lshl_b32 s57, s{sR}, 8\nv_add_u32 {x('p0')}, s57, {x('t2')}\nv_lshlrev_b32 {x('p1')}, 5, v0")
    A(f"s_getreg_b32 s{sX28}, hwreg(HW_REG_XCC_ID, 0, 4)")
    if o["force"]: A(f"s_lshr_b32 s57, s2, 3\ns_and_b32 s57, s57, {o['force']}\ns_xor_b32 s{sX28}, s{sX28}, s57")
    A(f"s_bfe_u32 s{sSide}, s{sX28}, 0x10002\ns_lshl_b32 s{sX28}, s{sX28}, 28")
    A("s_waitcnt lgkmcnt(0)")
    if diag: A(f"s_memrealtime s[76:77]\nv_mov_b32 {x('stamp')}, 0\ns_waitcnt lgkmcnt(0)\nv_writelane_b32 {x('stamp')}, s98, 0\nv_writelane_b32 {x('stamp')}, s76, 1")
    A("s_add_u32 s28, s28, 0x1fffff\ns_addc_u32 s29, s29, 0\ns_and_b32 s28, s28, 0xffe00000")
    if not role:
        A(f"global_load_dwordx2 {R('c01',2)}, {x('p0')}, s[4:5]"); vm("x")
        A(f"global_load_dwordx4 {R('G0')}, {x('p1')}, s[4:5]\nglobal_load_dwordx4 {R('G1')}, {x('p1')}, s[4:5] offset:16"); vm("x"); vm("x")
    for j in range(2): A(f"s_add_u32 s{sLb[j]}, s28, {(2*j+role)*S}\ns_addc_u32 s{sLb[j]+1}, s29, 0")
    A(f"s_add_u32 s58, s28, {NONCE}\ns_addc_u32 s59, s29, 0\ns_load_dword s{sTag}, s[58:59], 0")
    def reset(j): A(f"global_store_dwordx4 {x('aR')}, {R('Neg')}, {sp(sLb[j])} sc1"); vm("R"); vm2.add(j)
    vm2=set()
    for j in (o["br0"] if role else "0"): reset(int(j))
    n0=o["bn0"] if role else o["an0"]
    stream(min(n0,16))
    A(f"s_lshl_b32 s57, s{sG}, 24\ns_lshl_b32 s58, s{sM}, 15\ns_add_u32 s57, s57, s58\ns_add_u32 s57, s57, s{sWk}\ns_add_u32 s57, s57, {61440*256}")
    A(f"v_xor_b32 {x('t0')}, {x('n')}, {x('t5')}\nv_lshlrev_b32 {x('t0')}, 4, {x('t0')}\nv_lshl_add_u32 {x('dK')}, {x('g')}, 8, {x('t0')}\nv_add_u32 {x('dK')}, s57, {x('dK')}")
    A(f"v_and_b32 {x('p2')}, 1, {x('g')}\nv_lshlrev_b32 {x('p2')}, 6, {x('p2')}\nv_xor_b32 {x('t0')}, {x('t3')}, {x('p2')}\nv_lshl_add_u32 {x('dV')}, {x('g')}, 8, {x('t0')}\nv_add_u32 {x('dV')}, s57, {x('dV')}")
    stream(min(n0,32))
    A(f"s_lshl_b32 s57, s{sG}, 21\ns_lshl_b32 s58, s{sI2}, 18\ns_add_u32 s57, s57, s58\ns_lshl_b32 s58, s{sW}, 12\ns_add_u32 s57, s57, s58\ns_lshl_b32 s58, s{sCB}, 9\ns_add_u32 s57, s57, s58")
    A(f"v_lshl_add_u32 {x('dO')}, {x('t5')}, 11, {x('t1')}\nv_add_u32 {x('dO')}, s57, {x('dO')}")
    if role: A(f"s_lshl_b32 s57, s2, 2\ns_add_u32 s57, s57, s{sW}\ns_lshr_b32 s58, s57, 6\ns_lshl_b32 s58, s58, 14\ns_and_b32 s57, s57, 63\ns_lshl_b32 s57, s57, 7\ns_add_u32 s57, s57, s58")
    if role: A(f"s_lshl_b32 s58, s60, 13\ns_add_u32 s57, s57, s58\ns_add_u32 s57, s57, {PRB}\ns_xor_b32 s58, s57, 0x2000")
    if role: A(f"s_add_u32 s82, s28, s57\ns_addc_u32 s83, s29, 0\ns_add_u32 s90, s28, s58\ns_addc_u32 s91, s29, 0")
    if role: A(f"s_mov_b32 s84, 0x5bd1e995\ns_not_b32 s85, s84\ns_mov_b64 s[88:89], s[84:85]\ns_xor_b32 s73, s60, s{sSide}\ns_lshl_b32 s73, s73, 1\ns_sub_u32 s73, s73, 1")
    A(f"s_lshl_b32 s57, s2, 7\ns_lshl_b32 s58, s{sW}, 4\ns_add_u32 s57, s57, s58\ns_add_u32 s57, s57, {FLG}\nv_mov_b32 {x('aFl')}, s57")
    def flag():
        waitfor("R")
        A("s_waitcnt lgkmcnt(0)")
        A(f"s_mul_i32 s{sTag}, s{sTag}, 0x9e3779b1\ns_add_u32 s{sTag}, s{sTag}, 0x7f4a7c15\ns_xor_b32 s92, s{sTag}, s{sX28}\nv_mov_b32 {x('fl')}, s92")
        A(f"s_mov_b64 exec, 1\nglobal_store_dword {x('aFl')}, {x('fl')}, s[28:29] sc1\ns_mov_b64 exec, -1"); vm("flag")
        if diag: A("s_memrealtime s[78:79]\ns_waitcnt lgkmcnt(0)")
        if diag: A(f"v_writelane_b32 {x('stamp')}, s78, 2")
        assert len(vm2)==2 or not role
    def probe():
        assert role
        A(f"s_waitcnt lgkmcnt(0)\ns_load_dwordx2 s[86:87], s[82:83], 0\ns_load_dwordx2 s[88:89], s[90:91], 0")
        A(f"v_mov_b32 {x('pa')}, s{sTag}\ns_waitcnt lgkmcnt(2)\ns_cmp_eq_u64 s[88:89], s[84:85]\ns_cselect_b32 s73, s73, 0\nv_mov_b32 {x('pa',1)}, s73")
        A(f"s_mov_b64 exec, 1\nglobal_store_dwordx2 {x('aFl')}, {R('pa',2)}, s[28:29] offset:8 sc1\ns_mov_b64 exec, -1"); vm("vote")
    late=[]; hook[0]=late.append
    A(f"v_lshlrev_b32 {x('t0')}, 4, v0\ns_lshl_b32 s61, s{sW}, 11")
    A(f"s_lshl_b32 s57, s{sR}, 14\ns_add_u32 s57, s57, s61\ns_add_u32 s57, s57, {(1-role)*S}\nv_add_u32 {x('aG1')}, s57, {x('t0')}")
    A(f"s_lshl_b32 s57, s{sW}, 12\ns_add_u32 s57, s57, s64\nv_add_u32 {x('aG2')}, s57, {x('t0')}")
    A(f"s_add_u32 s57, s61, s69\nv_add_u32 {x('aC2')}, s57, {x('t0')}")
    A(f"s_lshr_b32 s58, s{sI2}, 1\ns_and_b32 s59, s{sI2}, 1\ns_lshl_b32 s57, s58, 14\ns_add_u32 s57, s57, s62\ns_lshl_b32 s70, s59, 8\ns_add_u32 s57, s57, s70\ns_lshl_b32 s70, s{sW}, 12\ns_add_u32 s57, s57, s70")
    A(f"v_lshl_add_u32 {x('t0')}, {x('g')}, 9, {x('t3')}\nv_add_u32 {x('aG3')}, s57, {x('t0')}")
    A(f"s_lshl_b32 s58, s58, 4\ns_lshl_b32 s59, s59, 2\ns_add_u32 s57, s58, s59\ns_add_u32 s57, s57, s66\ns_add_u32 s57, s57, s{sWq}\ns_add_u32 s57, s57, {ST3}")
    A(f"v_and_b32 {x('t4')}, 1, v0\nv_lshl_add_u32 {x('p3')}, {x('t4')}, 2, {x('g')}\nv_and_b32 {x('p1')}, 7, v0\nv_and_b32 {x('t0')}, 8, v0\nv_cmp_ne_u32 vcc, 0, {x('t0')}\nv_cndmask_b32 {x('p3')}, {x('p1')}, {x('p3')}, vcc")
    A(f"v_lshl_add_u32 {x('aS3')}, {x('p3')}, 7, s57")
    A(f"s_lshl_b32 s57, s{sW}, 7\ns_add_u32 s57, s57, s66\ns_add_u32 s57, s57, {ST2}\nv_bfe_u32 {x('t0')}, v0, 1, 3\nv_lshlrev_b32 {x('t0')}, 9, {x('t0')}\nv_lshl_add_u32 {x('t0')}, {x('t4')}, 4, {x('t0')}\nv_add_u32 {x('aS2')}, s57, {x('t0')}")
    A(f"s_and_b32 s57, s2, 7\ns_lshl_b32 s58, s{sW}, 3\ns_add_u32 s57, s57, s58\nv_lshl_add_u32 {x('t0')}, {x('p1')}, 5, s57")
    A(f"s_lshl_b32 s57, s{sCB}, 6\ns_lshl_b32 s58, s{sW}, 1\ns_add_u32 s57, s57, s58\ns_add_u32 s57, s57, {1-role}\nv_lshl_add_u32 {x('p3')}, {x('p1')}, 3, s57")
    sel2(x('t0'),x('t0'),x('p3'),32)
    A(f"v_bfe_u32 {x('p3')}, v0, 3, 2\nv_lshlrev_b32 {x('p3')}, 4, {x('p3')}\nv_lshl_add_u32 {x('t0')}, {x('t0')}, 7, {x('p3')}\nv_add_u32 {x('aF')}, {FLG}, {x('t0')}")
    A(f"s_lshl_b32 s57, s{sR}, 14\ns_lshl_b32 s58, s{sI}, 11\ns_add_u32 s57, s57, s58\ns_add_u32 s59, s57, {DB+(1-role)*0x20000}\nv_and_b32 {x('t0')}, 3, v0\nv_lshl_add_u32 {x('aDc')}, {x('t0')}, 9, s59")
    A(f"s_lshl_b32 s58, s{sG}, 9\ns_add_u32 s57, s57, s58\ns_lshl_b32 s58, s{sW}, 7\ns_add_u32 s57, s57, s58\ns_add_u32 s57, s57, {DB+role*0x20000}\nv_lshl_add_u32 {x('aDp')}, {x('t4')}, 13, s57")
    A(f"v_lshl_add_u32 {x('p3')}, {x('n')}, 2, {x('p2')}\ns_lshl_b32 s70, s60, 7\ns_lshr_b32 s71, s{sW}, 1")
    A(f"s_lshl_b32 s57, s71, 11\ns_add_u32 s57, s57, s65\ns_add_u32 s57, s57, s70\nv_add_u32 {x('aP2')}, s57, {x('p3')}")
    A(f"s_lshl_b32 s57, s71, 18\ns_add_u32 s57, s57, s67\ns_add_u32 s57, s57, s70\nv_add_u32 {x('t0')}, s57, {x('p3')}"); sel2(x('aP2'),x('aP2'),x('t0'),32)
    A(f"s_lshl_b32 s57, s71, 14\ns_add_u32 s57, s57, s63\ns_add_u32 s57, s57, s70\nv_lshl_add_u32 {x('t0')}, {x('t5')}, 13, {x('p3')}\nv_add_u32 {x('aP1')}, s57, {x('t0')}")
    A(f"s_lshl_b32 s57, s{sM}, 9\ns_lshl_b32 s58, s{sW}, 6\ns_add_u32 s57, s57, s58\ns_add_u32 s57, s57, s62\nv_lshlrev_b32 {x('t0')}, 2, {x('n')}\nv_lshl_add_u32 {x('t0')}, {x('g')}, 14, {x('t0')}\nv_add_u32 {x('aP3')}, s57, {x('t0')}")
    A(f"s_lshl_b32 s57, s{sW}, 4\ns_add_u32 s58, s57, s68\ns_add_u32 s58, s58, {ST2}\nv_lshl_add_u32 {x('aPS2')}, {x('g')}, 2, s58\ns_add_u32 s58, s68, {ST3}\nv_lshl_add_u32 {x('aPS3')}, {x('g')}, 4, s58")
    A(f"s_lshl_b64 {sp(mS3)}, 1, s57\ns_mov_b32 s{mCC}, 0xcccccccc\ns_mov_b32 s{mCC+1}, 0xcccccccc\ns_mov_b32 s{mS2}, 0x10001\ns_mov_b32 s{mS2+1}, 0x10001")
    A(f"s_and_b32 s57, s{sR}, 1\ns_cmp_eq_u32 s57, s71\ns_cselect_b32 s{sXs}, {hex(f2u(1/16))}, 0")
    A(f"s_mov_b32 s{sPerm}, 0x03020302\ns_mov_b32 s{sTo}, 0\ns_mov_b32 s{sRt}, 0")
    def X12(dst,src,lo):
        A(f"v_lshrrev_b32 {dst}, 1, {src}\nv_mul_u32_u24 {dst}, 12, {dst}\nv_and_b32 {x('dS')}, 1, {src}\nv_lshl_add_u32 {dst}, {x('dS')}, {lo-1}, {dst}")
    X12(x('t0'),x('g'),1); A(f"v_xor_b32 {x('t0')}, {x('t0')}, {x('n')}\nv_lshlrev_b32 {x('t0')}, 4, {x('t0')}\nv_lshl_add_u32 {x('rA')}, {x('g')}, 8, {x('t0')}")
    X12(x('t0'),x('g'),2); A(f"v_xor_b32 {x('t0')}, {x('t0')}, {x('n')}\nv_lshlrev_b32 {x('t0')}, 4, {x('t0')}\nv_lshl_add_u32 {x('rP')}, {x('g')}, 8, {x('t0')}")
    A(f"s_mul_i32 s57, s60, {AS}\nv_add_u32 {x('rG')}, s57, {x('rA')}")
    A(f"v_bfe_u32 {x('p3')}, v0, 1, 2\nv_bfe_u32 {x('p0')}, v0, 3, 1\nv_mul_u32_u24 {x('p0')}, {AS}, {x('p0')}\nv_lshl_add_u32 {x('p0')}, {x('p3')}, 8, {x('p0')}")
    A(f"v_lshl_add_u32 {x('p0')}, {x('t4')}, 3, {x('p0')}\nv_lshrrev_b32 {x('t0')}, 4, {x('p2')}\nv_add_u32 {x('p0')}, {x('p0')}, {x('t0')}")
    X12(x('t0'),x('p3'),1)
    A(f"s_lshl_b32 s57, s71, 2\ns_add_u32 s57, s57, s60\nv_xor_b32 {x('p3')}, s57, {x('t0')}\nv_lshl_add_u32 {x('xWQ')}, {x('p3')}, 4, {x('p0')}")
    A(f"v_lshlrev_b32 {x('dS')}, 3, {x('t5')}\nv_xor_b32 {x('p3')}, {x('p3')}, {x('dS')}\nv_lshl_add_u32 {x('xWO')}, {x('p3')}, 4, {x('p0')}\nv_add_u32 {x('xWO')}, {XO}, {x('xWO')}")
    A(f"s_lshl_b32 s57, s{sW}, 2\nv_add_u32 {x('p3')}, s57, {x('t5')}\nv_xor_b32 {x('p3')}, {x('p3')}, {x('t0')}\nv_lshl_add_u32 {x('xWA')}, {x('p3')}, 4, {x('p0')}\nv_add_u32 {x('xWA')}, {XA}, {x('xWA')}")
    A(f"v_and_b32 {x('t4')}, 3, {x('n')}\nv_lshrrev_b32 {x('p0')}, 2, {x('n')}")
    X12(x('t0'),x('p0'),2)
    A(f"s_lshl_b32 s57, s60, 1\nv_lshl_add_u32 {x('p3')}, {x('g')}, 2, s57\nv_xor_b32 {x('p3')}, {x('p3')}, {x('t0')}\nv_lshlrev_b32 {x('p3')}, 4, {x('p3')}\nv_lshl_add_u32 {x('p3')}, {x('p0')}, 8, {x('p3')}")
    A(f"s_mul_i32 s57, s71, {AS}\ns_add_u32 s57, s57, {XP}\nv_lshl_add_u32 {x('p3')}, {x('t4')}, 2, {x('p3')}\nv_add_u32 {x('pW')}, s57, {x('p3')}")
    A(f"v_lshlrev_b32 {x('mR')}, 5, {x('g')}\nv_add_u32 {x('mR')}, {XM}, {x('mR')}\ns_lshl_b32 s57, s{sW}, 3\nv_add_u32 {x('mW')}, s57, {x('mR')}")
    A(f"s_add_u32 s58, s57, {XR}\nv_mov_b32 {x('lW')}, s58\ns_add_u32 s58, s57, {XV}\nv_mov_b32 {x('vW')}, s58")
    A(f"v_lshrrev_b32 {x('t0')}, 2, {x('p2')}\nv_add_u32 {x('lR')}, {XR}, {x('t0')}\nv_sub_u32 {x('lR2')}, {XR+16}, {x('t0')}")
    A(f"s_mul_i32 s57, s{sW}, {FS}\ns_add_u32 s57, s57, {XF}\nv_lshl_add_u32 {x('xFw')}, {x('t2')}, 1, s57")
    A(f"s_lshl_b32 s57, s60, 8\ns_add_u32 s57, s57, {XF}\nv_lshl_add_u32 {x('t0')}, {x('p2')}, 1, s57\nv_lshl_add_u32 {x('t0')}, {x('p0')}, 5, {x('t0')}\nv_lshl_add_u32 {x('xFr')}, {x('t4')}, 2, {x('t0')}")
    A(f"v_mul_u32_u24 {x('t0')}, 4104, {x('g')}\nv_lshl_add_u32 {x('t0')}, {x('p0')}, 9, {x('t0')}\nv_add_u32 {x('t0')}, {BUFW}, {x('t0')}")
    A(f"s_lshl_b32 s57, s{sW}, 3\nv_add_u32 {x('p3')}, s57, {x('t4')}\nv_lshlrev_b32 {x('dS')}, 2, {x('p0')}\nv_xor_b32 {x('p3')}, {x('p3')}, {x('dS')}\nv_lshl_add_u32 {x('tT0')}, {x('p3')}, 4, {x('t0')}")
    A(f"v_xor_b32 {x('p3')}, 4, {x('p3')}\nv_lshl_add_u32 {x('tT1')}, {x('p3')}, 4, {x('t0')}")
    A(f"v_mul_u32_u24 {x('t0')}, 1032, {x('g')}\nv_lshrrev_b32 {x('dS')}, 1, {x('p0')}\nv_mul_u32_u24 {x('dS')}, {VS}, {x('dS')}\nv_add_u32 {x('t0')}, {x('t0')}, {x('dS')}\nv_and_b32 {x('t3')}, 1, {x('p0')}")
    A(f"v_lshl_add_u32 {x('t0')}, {x('t3')}, 8, {x('t0')}\ns_lshl_b32 s57, s{sW}, 2\nv_add_u32 {x('p3')}, s57, {x('t4')}\nv_lshlrev_b32 {x('dS')}, 2, {x('t3')}\nv_xor_b32 {x('p3')}, {x('p3')}, {x('dS')}")
    A(f"v_lshl_add_u32 {x('t0')}, {x('p3')}, 4, {x('t0')}\nv_add_u32 {x('tV')}, {BUFV}, {x('t0')}")
    A(f"v_xor_b32 {x('t0')}, {x('g')}, {x('n')}\nv_lshlrev_b32 {x('t0')}, 4, {x('t0')}\nv_lshl_add_u32 {x('t0')}, {x('n')}, 9, {x('t0')}\ns_add_u32 s57, s{sWk}, {BUFK}\nv_add_u32 {x('tK')}, s57, {x('t0')}")
    A(f"v_lshlrev_b32 {x('t3')}, 4, {x('t3')}\nv_mov_b32 {x('t1')}, 0xffff\nv_lshlrev_b32 {x('t1')}, {x('t3')}, {x('t1')}")
    for e in range(4): A(f"v_cmp_eq_u32 vcc, {e}, {x('t4')}\nv_cndmask_b32 {x('Msk',e)}, 0, {x('t1')}, vcc\nv_and_b32 {x('Sel',e)}, 0x3f803f80, {x('Msk',e)}")
    A(f"v_cmp_gt_u32 vcc, 8, {x('n')}")
    for e in range(4): A(f"v_cndmask_b32 {x('SelL',e)}, 0, {x('Sel',e)}, vcc\nv_sub_u32 {x('SelH',e)}, {x('Sel',e)}, {x('SelL',e)}")
    for e in range(8): A(f"v_mov_b32 {x('One',e)}, 0x3f803f80")
    A(f"v_mov_b32 {x('idx')}, 0x44444444\nv_mov_b32 {x('t0')}, 0xeeeeeeee\nv_cndmask_b32 {x('idx')}, {x('idx')}, {x('t0')}, {sp(mCC)}")
    A(f"v_and_b32 {x('t0')}, 13, {x('n')}\nv_cmp_eq_u32 vcc, 8, {x('t0')}")
    for e in range(4): A(f"v_cndmask_b32 {x('Tg',e)}, 0, {x('One')}, vcc")
    A(f"ds_write_b128 {x('rA')}, {R('Tg')} offset:{XQ}\nds_write_b128 {x('rA')}, {R('Tg')} offset:{XQ+AS}")
    hook[0]=A_
    def setup(n):
        while late and n>0: t=late.pop(0); A(t); n-=t.count('\n')+1
    def retry(name,e,loc=False):
        A(f"{name}:\ns_sleep {o['slpl'] if loc else o['slp']}\ns_add_u32 s{sTo}, s{sTo}, 1")
        if diag: A(f"s_add_u32 s{sRt}, s{sRt}, {1<<(8*e)}")
        A(f"s_cmp_lt_u32 s{sTo}, {TMO}\ns_cbranch_scc0 L_fail")
    def loadF(): A(f"global_load_dwordx4 {R('fF')}, {x('aF')}, s[28:29] sc1"); vm("F")
    ALLF=role and "D" not in o["b1"]
    def checkF(wait=True):
        waitfor("F")
        if wait:
            A(f"{lab('fc')}:\nv_xor_b32 {x('t0')}, s{sTag}, {x('fF')}\nv_and_b32 {x('t1')}, 0xfffffff, {x('t0')}"+("" if ALLF else "\ns_mov_b32 exec_hi, 0")+f"\nv_cmp_ne_u32 vcc, 0, {x('t1')}\ns_mov_b32 exec_hi, -1\ns_cbranch_vccnz {lab('fr')}")
            OOL(); retry(lab('fr'),3); A(f"global_load_dwordx4 {R('fF')}, {x('aF')}, s[28:29] sc1\ns_waitcnt vmcnt(0)\ns_branch {lab('fc')}"); MAIN()
        else: A(f"v_xor_b32 {x('t0')}, s{sTag}, {x('fF')}")
        A(f"v_cmp_ne_u32 s[60:61], s{sX28}, {x('t0')}\nv_cmp_eq_u32 vcc, s{sTag}, {x('fF',2)}\nv_cndmask_b32 {x('t1')}, 0, {x('fF',3)}, vcc")
        A(f"v_cmp_lt_i32 s[58:59], 0, {x('t1')}\nv_cmp_gt_i32 vcc, 0, {x('t1')}\nv_mov_b32 {x('pa')}, s60")
        A(f"s_nop 1\ns_bcnt1_i32_b64 s58, s[58:59]\ns_bcnt1_i32_b64 s59, vcc\ns_sub_u32 s58, s58, s59\nv_mov_b32 {x('pa',1)}, s58\nds_write_b64 {x('vW')}, {R('pa',2)}")
        m0v[0]=None
    YR=f"v_mov_b32 {x('t2')}, {XV}\nds_read_b128 {R('F0')}, {x('t2')}\nds_read_b128 {R('F1')}, {x('t2')} offset:16"
    YC=[f"v_or3_b32 {x('t2')}, {x('F0')}, {x('F0',2)}, {x('F1')}\nv_add3_u32 {x('t3')}, {x('F0',1)}, {x('F0',3)}, {x('F1',1)}",
        f"v_or_b32 {x('t2')}, {x('t2')}, {x('F1',2)}\nv_add_u32 {x('t3')}, {x('t3')}, {x('F1',3)}",
        f"v_readfirstlane_b32 s{sMode}, {x('t2')}\nv_readfirstlane_b32 s72, {x('t3')}"]
    def near():
        if diag: A(f"s_and_b32 s57, s72, 0xffff\ns_cmp_lg_u32 s{sMode}, 0\ns_cselect_b32 s58, 0x10000, 0\ns_or_b32 s57, s57, s58\nv_writelane_b32 {x('stamp')}, s57, 4")
        A(f"s_cmp_gt_i32 s72, 0\ns_cselect_b32 s57, 1, 0\ns_xor_b32 s57, s57, s{sSide}\ns_lshl_b32 s57, s57, 13\ns_add_u32 s{sN}, s28, s57\ns_addc_u32 s{sN+1}, s29, 0")
    def marker():
        A(f"s_cmp_lg_u32 s{sMode}, 0\ns_cbranch_scc1 L_post_{X}1")
        main[0]=post; ool[0]=posto; cur[0]=post; sfx[0]=f"{X}{mode}"; A(f"L_post_{X}{mode}:"); m0v[0]=None
    def ld(sim,tag,w,dst,addr,base,off=0):
        A(f"global_load_dwordx{w} {R(dst,w)}, {x(addr)}, {sp(base)}"+(f" offset:{off}" if off else "")+" sc1")
        if sim: vm(tag)
    def doorbell(l):
        A(f"s_add_u32 s{sExp}, s{sTag}, {l}\ns_cmp_eq_u32 s{sW}, 0\ns_cbranch_scc0 {lab('db%d'%l)}\ns_mov_b64 exec, 15")
        for k in range(4): A(f"global_load_dword {x('p%d'%k)}, {x('aDc')}, {sp(sN)} offset:{128*k} sc1\ns_sleep {o['dsl']}")
        A(f"{lab('dp%d'%l)}:")
        for k in range(4):
            A(f"s_waitcnt vmcnt(3)\nv_cmp_ne_u32 vcc, s{sExp}, {x('p%d'%k)}\ns_cbranch_vccz {lab('dd%d'%l)}")
            A(f"global_load_dword {x('p%d'%k)}, {x('aDc')}, {sp(sN)} offset:{128*k} sc1\ns_sleep {o['dsl']}")
        A(f"s_add_u32 s{sTo}, s{sTo}, 1\ns_cmp_lt_u32 s{sTo}, {TMO}\ns_cbranch_scc1 {lab('dp%d'%l)}\ns_branch L_fail")
        A(f"{lab('dd%d'%l)}:\ns_mov_b64 exec, -1\n{lab('db%d'%l)}:\ns_barrier"); nbar[0]+=1
        stamp(12); m0v[0]=None
    def ring(l): A(f"s_mov_b64 exec, 3\nglobal_store_dword {x('aDp')}, {x('dbv')}, s[28:29] sc1\ns_mov_b64 exec, -1"); vm("ring")
    def swapadd(a,b): A(f"v_permlane16_swap_b32 {x(a)}, {x(b)}\nv_add_f32 {x(a)}, {x(a)}, {x(b)}")
    rs=lambda d,T:[f"v_pk_add_f32 {R(d,2)}, {R(T,2)}, {R(T,2,2)}",f"v_add_f32 {x(d)}, {x(d)}, {x(d,1)}"]
    WO=[(0,0),(1,0),(0,1),(1,1),(2,0),(3,0),(2,1),(3,1)]
    def wmm(base,ex,w1=0):
        for k,(t,s_) in enumerate(WO):
            if k==2: A(f"s_waitcnt lgkmcnt({w1})")
            smf(f"T{t}",f"A{s_}",ar(base+(t*2+s_)*8,8))
            if ex[k]: A(ex[k])
            if k in (1,3,5): slot()
    def gE2(sim,a,b0,b1):
        for j in range(4): ld(sim,f"g{j}",4,f"G{j}",a,b0 if j<2 else b1,1024*j if b0==b1 else 1024*(j&1))
    def cE2():
        for j in range(4):
            waitfor(f"g{j}"); mf(R('D'),R('SelL' if j<2 else 'SelH'),R(f"G{j}"),R('D') if j else "0"); chk(q4(f"G{j}"),j==0)
    def cspub():
        assert ("q",3) in moved
        zero("T0","T1","T2","T3")
        A(f"ds_read_b128 {R('A0')}, {x('rA')} offset:{XQ}\nds_read_b128 {R('A1')}, {x('rA')} offset:{XQ+AS}\ns_waitcnt lgkmcnt(0)")
        wmm(0,[""]*8)
        for d,T in zip(("tA","tB","tC","tD"),("T0","T1","T2","T3")): A("\n".join(rs(d,T)))
        swapadd("tA","tB"); swapadd("tC","tD")
        A(f"v_cvt_pk_bf16_f32 {x('t0')}, {x('tA')}, {x('tC')}\ns_mov_b32 exec_lo, 0\nglobal_store_dword {x('aP2')}, {x('t0')}, {sp(sLb[0])} {LOC()}\ns_mov_b32 exec_lo, -1"); vm("P")
    kg=[0]
    def kcs0(): gE2(True,'aC2',sLb[0],sLb[1]); kg[0]=1
    def kcs():
        assert ("k",0) in moved
        if not kg[0]: kcs0()
        zero("U0","U1")
        A(f"{lab('cc')}:"); cE2(); fin(lab('cr'))
        OOL(); retry(lab('cr'),3); gE2(False,'aC2',sLb[0],sLb[1]); A(f"s_waitcnt vmcnt(0)\ns_branch {lab('cc')}"); MAIN()
        cvtD(); wrA('xWA'); bar()
        A(f"ds_read_b128 {R('A0')}, {x('rA')} offset:{XA}\nds_read_b128 {R('A1')}, {x('rA')} offset:{XA+AS}\ns_waitcnt lgkmcnt(0)")
        for s_ in range(2):
            for t in range(2): smf(f"U{t}",f"A{s_}",ar(64+(t*2+s_)*8,8))
        for t in range(2): A(f"v_pk_add_f32 {R('kc%d'%t,2)}, {R('U%d'%t,2)}, {R('U%d'%t,2,2)}")
        lane(16); m0v[0]=None
    def prog(p,gather=None,st=None,l=None):
        for tk in p.split("_"):
            if not tk: continue
            c,a=tk[0],tk[1:]
            if c not in "ULPWZNSTHO": assert not late,tk
            if c=="L": stream(int(a))
            elif c=="P":
                n,D=map(int,a.split("."))
                while ns[0]<n:
                    if ns[0]>=D: wload(ns[0]-D)
                    stream(ns[0]+1)
            elif c=="W": wload(int(a))
            elif c=="A": waitfor("P")
            elif c=="S": A(f"s_sleep {a}")
            elif c=="M": move(int(a))
            elif c=="K": kreads()
            elif c=="B": bar()
            elif c=="F": loadF()
            elif c=="C": checkF()
            elif c=="U": setup(int(a or 9999))
            elif c=="x": kcs0()
            elif c=="V": checkF(False)
            elif c=="N": reset(int(a))
            elif c=="E": lnorm()
            elif c=="Z": flag()
            elif c=="O": probe()
            elif c=="H": assert acked("R") and int(a) in vm2; A(f"global_load_dword {x('chk')}, {x('aWm')}, {sp(sLb[int(a)])} sc1"); vm("H")
            elif c=="Y": A(YR+"\ns_waitcnt lgkmcnt(0)\n"+"\n".join(YC)); near()
            elif c=="Q": cspub()
            elif c=="X": kcs()
            elif c=="D": doorbell(l)
            elif c=="R": ring(l)
            elif c=="T": lane(int(a))
            elif c=="G": stamp(st); gather(True)
            else: raise Exception(tk)
    def edge(e,p,gather,check,kind,st,l,prep=None,loc=False):
        m0v[0]=None
        prog(p,gather,st,l)
        if prep: prep()
        A(f"{lab('c%d'%e)}:"); check(lab('r%d'%e))
        OOL(); retry(lab('r%d'%e),kind,loc and not mode); gather(False); A(f"s_waitcnt vmcnt(0)\ns_branch {lab('c%d'%e)}"); MAIN()
        m0v[0]=None
    def E1(e,p,l,prep=None):
        def g(sim): ld(sim,"g0",4,'G0','aG1',sN); ld(sim,"g1",4,'G1','aG1',sN,1024)
        def c(fail):
            waitfor("g0"); mf(R('D'),R('Sel'),R('G0'),"0"); chk(q4('G0')); waitfor("g1"); mf(R('D'),R('Sel'),R('G1'),R('D')); chk(q4('G1'),False); fin(fail)
        edge(e,p,g,c,0,0,l,prep)
    CQ=hex(f2u(128**-0.5*1.4426950408889634))
    def layer(l,pe1,pe2,pe3,spr):
        j=l>>1; B=sLb[j]; curl[0]=l
        if l: E1(3*l-1,pe1,l,lambda:zero("T0","T1","T2","T3"))
        if spr: tgt[0]=spr[0]
        stamp(1)
        cvtD(); wrA('xWQ')
        slot(); bar()
        if l: A(f"ds_read_b128 {R('Ag')}, {x('rG')} offset:{XQ}")
        A(f"ds_read_b128 {R('A0')}, {x('rA')} offset:{XQ}\nds_read_b128 {R('A1')}, {x('rA')} offset:{XQ+AS}")
        slot()
        if l:
            A("s_waitcnt lgkmcnt(2)"); mf(R('Tg'),R('Ag'),R('Ag'),"0")
            ex=["","",
                f"v_add_f32 {x('st')}, {x('Tg')}, {x('Tg',1)}\nv_add_f32 {x('st',1)}, {x('Tg',2)}, {x('Tg',3)}",
                f"v_cndmask_b32 {x('st')}, {x('st')}, {x('st',1)}, {sp(mCC)}",
                f"v_add_f32_dpp {x('st')}, {x('st')}, {x('st')} quad_perm:[1,0,3,2] {DP}",
                f"v_add_f32_dpp {x('st')}, {x('st')}, {x('st')} quad_perm:[2,3,0,1] {DP}",
                f"v_add_f32_dpp {x('st')}, {x('st')}, {x('st')} row_half_mirror {DP}\n"+rs('tA','T0')[0],
                rs('tB','T1')[0]+"\n"+rs('tA','T0')[1]]
        else: ex=[""]*6+[rs('tA','T0')[0],rs('tB','T1')[0]+"\n"+rs('tA','T0')[1]]
        A("s_waitcnt lgkmcnt(1)")
        wmm(0,ex)
        A(rs('tB','T1')[1])
        if l: A(f"s_mov_b64 exec, {sp(mS2)}\nglobal_store_dword {x('aPS2')}, {x('st')}, {sp(B)} {LOC()}\ns_mov_b64 exec, -1"); vm("P")
        swapadd("tA","tB")
        A(rs('tC','T2')[0]+"\n"+rs('tD','T3')[0]+"\n"+rs('tC','T2')[1]+"\n"+rs('tD','T3')[1])
        A("s_mov_b32 exec_hi, 0")
        swapadd("tC","tD")
        A(f"v_cvt_pk_bf16_f32 {x('t0')}, {x('tA')}, {x('tC')}\nglobal_store_dword {x('aP2')}, {x('t0')}, {sp(B)} {LOC()}"); vm("P")
        A("s_mov_b32 exec_hi, -1")
        stamp(2)
        A(f"ds_write_b128 {x('xFw')}, {R('D' if l else 'X4')}")
        A(f"s_add_u32 s57, s{sTag}, {l+1}\nv_mov_b32 {x('dbv')}, s57")
        def g(sim):
            gE2(sim,'aG2',B,B)
            if l: ld(sim,"g4",4,'S','aS2',B)
        def c(fail):
            cE2()
            if l: waitfor("g4"); chk(q4('S')[:3],False)
            fin(fail)
        def prep():
            zero("T0","T1","T2","T3","L0","L1")
            if l: A(f"v_mov_b64 {R('U0',2,2)}, 0\nv_mov_b64 {R('U1',2,2)}, 0")
            else: zero("U0","U1")
        edge(3*l,pe2,g,c,1,3,l,prep,l>0)
        assert ("k",0) in moved
        if spr: tgt[0]=spr[1]
        stamp(4)
        cvtD(); wrA('xWA')
        if l:
            A(f"v_add_f32 {x('st')}, {x('S')}, {x('S',1)}\nv_add_f32_dpp {x('st',1)}, {x('S',2)}, {x('S',2)} row_ror:1 {DP}")
            A(f"v_add_f32_dpp {x('st')}, {x('st')}, {x('st')} row_ror:1 {DP}\nv_add_f32_dpp {x('st',1)}, {x('st',1)}, {x('st',1)} row_ror:2 {DP}")
        vlate=("v",0) not in moved
        if vlate and o["vpos"]==1: wload(31)
        slot(); bar()
        A(f"ds_read_b128 {R('A0')}, {x('rA')} offset:{XA}\nds_read_b128 {R('A1')}, {x('rA')} offset:{XA+AS}")
        nl=0
        if l==0: A(YR); nl+=2
        if vlate and o["vpos"]==1: trV(); nl+=16
        stamp(5)
        if l:
            A(f"v_add_f32_dpp {x('st')}, {x('st')}, {x('st')} row_ror:2 {DP}\nv_add_f32_dpp {x('st',1)}, {x('st',1)}, {x('st',1)} row_ror:4 {DP}")
            A(f"v_add_f32_dpp {x('st')}, {x('st')}, {x('st')} row_ror:4 {DP}\nv_add_f32_dpp {x('st',1)}, {x('st',1)}, {x('st',1)} row_ror:8 {DP}")
            A(f"v_add_f32_dpp {x('st')}, {x('st')}, {x('st')} row_ror:8 {DP}\nv_mul_f32 {x('ab',1)}, {hex(f2u(-1/1024))}, {x('st',1)}")
            for t in range(2): A(f"v_pk_mul_f32 {R('U%d'%t,2)}, {R('kc%d'%t,2)}, {R('ab',2)} op_sel:[0,1] op_sel_hi:[1,1]")
            ex=[f"v_mul_f32 {x('t0')}, {x('ab',1)}, {x('ab',1)}\nv_mul_f32 {x('t1')}, {hex(f2u(1/1024))}, {x('st')}",
                f"v_sub_f32 {x('t1')}, {x('t1')}, {x('t0')}\nv_max_f32 {x('t1')}, 0, {x('t1')}",
                f"v_add_f32 {x('t1')}, {hex(f2u(1e-5))}, {x('t1')}\nv_rsq_f32 {x('t1')}, {x('t1')}",
                f"v_mul_f32 {x('ab')}, {CQ}, {x('t1')}"]
        else: ex=["",f"s_waitcnt lgkmcnt({min(nl-2,15)})\n"+YC[0],YC[1],YC[2]]
        slot()
        for s_ in range(2):
            A(f"s_waitcnt lgkmcnt({min(nl+1-s_,15)})")
            for t in range(2):
                smf(f"U{t}",f"A{s_}",ar(64+(t*2+s_)*8,8)); A(ex[2*s_+t])
            slot()
        A(f"v_pk_add_f32 {R('tA',2)}, {R('U0',2)}, {R('U0',2,2)}\nv_pk_add_f32 {R('tB',2)}, {R('U1',2)}, {R('U1',2,2)}")
        A(f"v_max_f32 {x('mx')}, {x('tA')}, {x('tB')}\nv_max_f32 {x('mx',1)}, {x('tA',1)}, {x('tB',1)}")
        for k in (1,2,4,8): A(f"v_max_f32_dpp {x('mx')}, {x('mx')}, {x('mx')} row_ror:{k} {DP}\nv_max_f32_dpp {x('mx',1)}, {x('mx',1)}, {x('mx',1)} row_ror:{k} {DP}")
        A(f"v_pk_mul_f32 {R('mx',2)}, {R('mx',2)}, {R('ab',2)} op_sel_hi:[1,0]\nv_ceil_f32 {x('mx')}, {x('mx')}\nv_ceil_f32 {x('mx',1)}, {x('mx',1)}")
        for T in ("tA","tB"): A(f"v_pk_fma_f32 {R(T,2)}, {R(T,2)}, {R('ab',2)}, {R('mx',2)} op_sel_hi:[1,0,1] neg_lo:[0,0,1] neg_hi:[0,0,1]")
        A(f"v_exp_f32 {x('tA')}, {x('tA')}\nv_exp_f32 {x('tB')}, {x('tB')}\nv_exp_f32 {x('tA',1)}, {x('tA',1)}\nv_exp_f32 {x('tB',1)}, {x('tB',1)}")
        A(f"v_cvt_pk_bf16_f32 {x('t0')}, {x('tA')}, {x('tB')}\nds_write_b64 {x('mW')}, {R('mx',2)}\nv_cvt_pk_bf16_f32 {x('t1')}, {x('tA',1)}, {x('tB',1)}")
        A(f"ds_write2_b32 {x('pW')}, {x('t0')}, {x('t1')} offset0:0 offset1:4")
        vlate=("v",0) not in moved
        if vlate: wload(31)
        if l==0: marker()
        slot(); bar()
        A(f"ds_read_b128 {R('A0')}, {x('rP')} offset:{XP}\nds_read_b128 {R('W0')}, {x('mR')}\nds_read_b128 {R('W1')}, {x('mR')} offset:16\nds_read_b128 {R('A1')}, {x('rP')} offset:{XP+AS}")
        if vlate: trV()
        stamp(6); slot()
        mxs=[f"v_max3_f32 {x('P4',h)}, {x('W0',h)}, {x('W0',2+h)}, {x('W1',h)}" for h in (0,1)]+[f"v_max_f32 {x('P4',h)}, {x('P4',h)}, {x('W1',2+h)}" for h in (0,1)]
        sub=[f"v_pk_add_f32 {R(W,2,h)}, {R(W,2,h)}, {R('P4',2)} neg_lo:[0,1] neg_hi:[0,1]" for W in ("W0","W1") for h in (0,2)]
        ex_=[f"v_exp_f32 {x(W,h)}, {x(W,h)}" for W in ("W0","W1") for h in range(4)]
        if vlate:
            A("s_waitcnt lgkmcnt(15)"); A("\n".join(mxs+sub+ex_)); smf("L0","A0",R('One',8)); smf("L1","A1",R('One',8)); A("s_waitcnt lgkmcnt(8)")
            smf("T0","A0",ar(96,8)); smf("T1","A0",ar(112,8)); A("s_waitcnt lgkmcnt(0)"); smf("T2","A1",ar(104,8)); smf("T3","A1",ar(120,8))
        else:
            A("s_waitcnt lgkmcnt(3)"); smf("T0","A0",ar(96,8)); A("s_waitcnt lgkmcnt(1)\n"+mxs[0]+"\n"+mxs[1])
            smf("T1","A0",ar(112,8)); A(mxs[2]+"\n"+mxs[3]+"\ns_waitcnt lgkmcnt(0)")
            smf("T2","A1",ar(104,8)); A(sub[0]+"\n"+sub[1])
            smf("T3","A1",ar(120,8)); A(sub[2]+"\n"+sub[3])
            smf("L0","A0",R('One',8)); A(ex_[0]+"\n"+ex_[1])
            smf("L1","A1",R('One',8)); A("\n".join(ex_[2:]))
        def comb(d,Ta,Tb,do=0):
            return [f"v_pk_mul_f32 {R(d,2,do)}, {R(Ta,2)}, {R('W0',2)}",f"v_pk_fma_f32 {R(d,2,do)}, {R(Ta,2,2)}, {R('W0',2,2)}, {R(d,2,do)}",
                    f"v_pk_fma_f32 {R(d,2,do)}, {R(Tb,2)}, {R('W1',2)}, {R(d,2,do)}",f"v_pk_fma_f32 {R(d,2,do)}, {R(Tb,2,2)}, {R('W1',2,2)}, {R(d,2,do)}"]
        for a_,b_ in zip(comb('tA','T0','T2'),comb('tB','T1','T3')): A(a_+"\n"+b_)
        A(f"v_cvt_pk_bf16_f32 {x('t0')}, {x('tA')}, {x('tB')}\nv_cvt_pk_bf16_f32 {x('t1')}, {x('tA',1)}, {x('tB',1)}")
        cl=comb('P4','L0','L1',2)
        assert acked("R") and len(vm2)==2
        A(f"global_store_dword {x('aP3')}, {x('t0')}, {sp(B)} {LOC()}\n{cl[0]}\n{cl[1]}\nglobal_store_dword {x('aP3')}, {x('t1')}, {sp(B)} offset:256 {LOC()}\n{cl[2]}\n{cl[3]}"); vm("P"); vm("P")
        A(f"s_mov_b64 exec, {sp(mS3)}\nglobal_store_dwordx4 {x('aPS3')}, {R('P4')}, {sp(B)} {LOC()}\ns_mov_b64 exec, -1"); vm("P")
        stamp(7)
        if l<3 and RING[l]==0: ring(l)
        def resid():
            A(f"v_add_u32 {x('t2')}, {2*FS}, {x('xFr')}")
            for k,(a_,F,h) in enumerate((('xFr','F0',0),('xFr','F0',2),('t2','F1',0),('t2','F1',2))): A(f"ds_read2_b32 {R(F,2,h)}, {x(a_)} offset0:{(k&1)*FS//4} offset1:{(k&1)*FS//4+4}")
            zero("T0","T1","T2","T3")
            A(f"s_waitcnt lgkmcnt(0)\nv_pk_add_f32 {R('F0',2)}, {R('F0',2)}, {R('F0',2,2)}\nv_pk_add_f32 {R('F1',2)}, {R('F1',2)}, {R('F1',2,2)}\nv_pk_add_f32 {R('F0',2)}, {R('F0',2)}, {R('F1',2)}")
            A(f"v_cvt_pk_bf16_f32 {x('t2')}, {x('F0')}, {x('F0',1)}\nv_lshlrev_b32 {x('xr')}, 16, {x('t2')}\nv_and_b32 {x('xr',1)}, 0xffff0000, {x('t2')}")
            A(f"v_mul_f32 {x('xr')}, s{sXs}, {x('xr')}\nv_mul_f32 {x('xr',1)}, s{sXs}, {x('xr',1)}")
        def g(sim):
            ld(sim,"g2",3,'S','aS3',B); ld(sim,"g0",4,'G0','aG3',B); ld(sim,"g1",4,'G1','aG3',B,2048)
            if sim and l<3 and RING[l]==1: ring(l)
        def c(fail):
            waitfor("g2")
            A(f"v_max_f32_dpp {x('st')}, {x('S')}, {x('S')} quad_perm:[1,0,3,2] {DP}")
            A(f"v_max_u32 {x('chk')}, {x('S')}, {x('S',2)}")
            A(f"v_max_f32_dpp {x('st')}, {x('st')}, {x('st')} quad_perm:[2,3,0,1] {DP}")
            A(f"v_max_f32_dpp {x('st')}, {x('st')}, {x('st')} row_half_mirror {DP}")
            A(f"v_subrev_f32_dpp {x('t0')}, {x('st')}, {x('S')} row_newbcast:0 {DP}")
            A(f"v_exp_f32 {x('t0')}, {x('t0')}")
            waitfor("g0"); chk(q4('G0'),False)
            A(f"v_perm_b32 {x('t1')}, {x('t0')}, {x('t0')}, s{sPerm}\nv_mul_f32 {x('st',1)}, {x('t0')}, {x('S',2)}")
            for e in range(4): A(f"v_and_b32_dpp {x('A0',e)}, {x('t1')}, {x('Msk',e)} row_newbcast:8 {DP}")
            for e in range(2): A(f"v_and_b32_dpp {x('A1',e)}, {x('t1')}, {x('Msk',e)} row_newbcast:9 {DP}")
            mf(R('D'),R('A0'),R('G0'),"0")
            for e in range(2,4): A(f"v_and_b32_dpp {x('A1',e)}, {x('t1')}, {x('Msk',e)} row_newbcast:9 {DP}")
            A(f"v_add_f32_dpp {x('st',1)}, {x('st',1)}, {x('st',1)} quad_perm:[1,0,3,2] {DP}")
            waitfor("g1")
            mf(R('D'),R('A1'),R('G1'),R('D'))
            chk(q4('G1'),False)
            A(f"v_add_f32_dpp {x('st',1)}, {x('st',1)}, {x('st',1)} quad_perm:[2,3,0,1] {DP}")
            A(f"v_cmp_eq_u32 vcc, -1, {x('chk')}")
            A(f"v_add_f32_dpp {x('st',1)}, {x('st',1)}, {x('st',1)} row_half_mirror {DP}")
            A(f"s_cbranch_vccnz {fail}")
        if o.get("rpos",0)==0: resid()
        edge(3*l+1,pe3,g,c,2,8,l,resid if o.get("rpos",0) else None,True)
        assert ("o",3) in moved
        stamp(9)
        A(f"s_mov_b64 exec, 1\nds_write_b64 {x('lW')}, {R('st',2)}")
        if l<3 and RING[l]==2: A(f"s_mov_b64 exec, 3\nglobal_store_dword {x('aDp')}, {x('dbv')}, s[28:29] sc1"); vm("ring")
        A("s_mov_b64 exec, -1")
        cvtD(); wrA('xWO')
        bar()
        A(f"ds_read_b128 {R('A0')}, {x('rA')} offset:{XO}\nds_read_b128 {R('F0')}, {x('lR')}\nds_read_b128 {R('F1')}, {x('lR2')}\nds_read_b128 {R('A1')}, {x('rA')} offset:{XO+AS}")
        stamp(10)
        if l<3 and RING[l]==3: ring(l)
        Ms=[x('F0'),x('F0',2),x('F1'),x('F1',2)]; Ls=[x('F0',1),x('F0',3),x('F1',1),x('F1',3)]
        pa=lambda d,T:f"v_pk_add_f32 {R(d,2)}, {R(T,2)}, {R(T,2,2)}"
        mw=lambda d:[f"v_mul_f32 {x(d)}, {x(d)}, {x('W0')}",f"v_fma_f32 {x(d)}, {x(d,1)}, {x('W0',1)}, {x(d)}"]
        ex=[f"s_waitcnt lgkmcnt(1)\nv_max3_f32 {x('t0')}, {Ms[0]}, {Ms[1]}, {Ms[2]}",
            f"v_max_f32 {x('t0')}, {x('t0')}, {Ms[3]}\nv_sub_f32 {x('W0')}, {Ms[0]}, {x('t0')}",
            f"v_sub_f32 {x('W0',1)}, {Ms[1]}, {x('t0')}\nv_exp_f32 {x('W0')}, {x('W0')}",
            f"v_sub_f32 {x('W0',2)}, {Ms[2]}, {x('t0')}\nv_exp_f32 {x('W0',1)}, {x('W0',1)}",
            f"v_sub_f32 {x('W0',3)}, {Ms[3]}, {x('t0')}\nv_exp_f32 {x('W0',2)}, {x('W0',2)}",
            f"v_mul_f32 {x('t1')}, {x('W0')}, {Ls[0]}\nv_exp_f32 {x('W0',3)}, {x('W0',3)}",
            f"v_fma_f32 {x('t1')}, {x('W0',1)}, {Ls[1]}, {x('t1')}\n"+pa('tA','T0')+"\n"+pa('tB','T1'),
            f"v_fma_f32 {x('t1')}, {x('W0',2)}, {Ls[2]}, {x('t1')}\n"+mw('tA')[0]+"\n"+mw('tB')[0]]
        A("s_waitcnt lgkmcnt(3)")
        wmm(128,ex)
        A(f"v_fma_f32 {x('t1')}, {x('W0',3)}, {Ls[3]}, {x('t1')}\n"+mw('tA')[1]+"\n"+mw('tB')[1]+f"\nv_rcp_f32 {x('t1')}, {x('t1')}")
        swapadd("tA","tB")
        A(pa('tC','T2')+"\n"+pa('tD','T3')+"\n"+mw('tC')[0]+"\n"+mw('tD')[0]+"\n"+mw('tC')[1]+"\n"+mw('tD')[1])
        A(f"v_fma_f32 {x('tA')}, {x('tA')}, {x('t1')}, {x('xr')}")
        swapadd("tC","tD")
        A(f"v_fma_f32 {x('tC')}, {x('tC')}, {x('t1')}, {x('xr',1)}\nv_cvt_pk_bf16_f32 {x('t0')}, {x('tA')}, {x('tC')}\nglobal_store_dword {x('aP1')}, {x('t0')}, {sp(B)} sc1"); vm("P")
        stamp(11)
        if l<3 and RING[l]==4: ring(l)
        flush(l)
    def lnorm():
        waitfor("x")
        H=lambda k:x('G0',k) if k<4 else x('G1',k-4)
        A(f"v_mov_b64 {R('st',2)}, 0")
        for k in range(8): A(f"v_dot2_f32_bf16 {x('st')}, {H(k)}, {H(k)}, {x('st')}\nv_dot2_f32_bf16 {x('st',1)}, {H(k)}, {x('One')}, {x('st',1)}")
        A(f"v_lshlrev_b32 {x('X4')}, 16, {x('c01')}\nv_and_b32 {x('X4',1)}, 0xffff0000, {x('c01')}\nv_lshlrev_b32 {x('X4',2)}, 16, {x('c01',1)}\nv_and_b32 {x('X4',3)}, 0xffff0000, {x('c01',1)}")
        for k in (1,2,4,8): A(f"v_add_f32_dpp {x('st')}, {x('st')}, {x('st')} row_ror:{k} {DP}\nv_add_f32_dpp {x('st',1)}, {x('st',1)}, {x('st',1)} row_ror:{k} {DP}")
        for wd in (16,32):
            A(f"v_mov_b64 {R('mx',2)}, {R('st',2)}\nv_permlane{wd}_swap_b32 {x('mx')}, {x('st')}\nv_permlane{wd}_swap_b32 {x('mx',1)}, {x('st',1)}\nv_pk_add_f32 {R('st',2)}, {R('st',2)}, {R('mx',2)}")
        A(f"v_mul_f32 {x('ab',1)}, {hex(f2u(-1/1024))}, {x('st',1)}\nv_mul_f32 {x('t0')}, {x('ab',1)}, {x('ab',1)}\nv_mul_f32 {x('t1')}, {hex(f2u(1/1024))}, {x('st')}")
        A(f"v_sub_f32 {x('t1')}, {x('t1')}, {x('t0')}\nv_max_f32 {x('t1')}, 0, {x('t1')}\nv_add_f32 {x('t1')}, {hex(f2u(1e-5))}, {x('t1')}\nv_rsq_f32 {x('t1')}, {x('t1')}\nv_mul_f32 {x('t1')}, {hex(f2u(0.25))}, {x('t1')}")
        for k in range(4): A(f"v_add_f32 {x('D',k)}, {x('X4',k)}, {x('ab',1)}\nv_mul_f32 {x('D',k)}, {x('D',k)}, {x('t1')}\nv_mul_f32 {x('X4',k)}, {hex(f2u(0.25))}, {x('X4',k)}")
        A(f"v_mov_b32 {x('ab')}, {CQ}")
        zero("T0","T1","T2","T3")
    if not role:
        prog(o["ap"]); assert ("q",3) in moved
        lane(3)
        tgt[0]=o["aq"]
        layer(0,None,o["a0"],o["a1"],(o["aq"],o["asp"][0]))
        assert ns[0]==48
        prog(o["acs"])
        layer(2,o["a2"],o["a3"],o["a4"],None)
    else:
        prog(o["bp"]); marker()
        lane(3)
        layer(1,o["b1"],o["b2"],o["b3"],o["bsp"])
        assert ns[0]==48
        A(f"v_add_u32 {x('aG1')}, {2*S}, {x('aG1')}")
        layer(3,o["b4"],o["b5"],o["b6"],None)
        A(f"s_and_b32 s57, s{sR}, 3\ns_xor_b32 s57, s57, s{sG}\ns_or_b32 s57, s57, s{sI}\ns_cmp_eq_u32 s57, 0\ns_cbranch_scc0 L_fail")
        A(f"v_add_u32 {x('aG1')}, {S}, {x('aG1')}\ns_lshl_b32 s57, s{sR}, 8\ns_sub_u32 s57, s57, {XF//2}\nv_lshrrev_b32 {x('t3')}, 1, {x('xFw')}\nv_add_u32 {x('t3')}, s57, {x('t3')}\nv_mov_b32 {x('t4')}, {NONCE}\nv_mov_b32 {x('fl')}, s{sTag}")
        E1(11,o["b7"],4)
        stamp(0)
        A(f"ds_write_b128 {x('xFw')}, {R('D')}"); bar()
        if diag: A(f"v_writelane_b32 {x('stamp')}, s76, 60")
        A(f"s_cmp_eq_u32 s{sW}, 0\ns_cbranch_scc0 L_fail")
        for k in range(4): A(f"ds_read_b128 {R('F%d'%k)}, {x('xFw')} offset:{k*FS}")
        A("s_waitcnt lgkmcnt(0)")
        for h in (0,2):
            A(f"v_pk_add_f32 {R('F0',2,h)}, {R('F0',2,h)}, {R('F1',2,h)}\nv_pk_add_f32 {R('F2',2,h)}, {R('F2',2,h)}, {R('F3',2,h)}\nv_pk_add_f32 {R('F0',2,h)}, {R('F0',2,h)}, {R('F2',2,h)}")
        cvtD('F0')
        A(f"s_mov_b32 exec_hi, 0\nglobal_store_dwordx2 {x('t3')}, {R('c01',2)}, s[24:25]")
        A(f"s_cmp_eq_u32 s{sR}, 0\ns_cbranch_scc0 L_fail")
        A(f"s_mov_b64 exec, 1\nglobal_store_dword {x('t4')}, {x('fl')}, s[28:29] sc1")
    A("s_branch L_fail" if diag else "s_endpgm")
    return pre,preo,post,posto
def gen(name=NAME, **kw):
    o=dict(DEF); o.update(kw); diag=o["diag"]
    L=HDR.rstrip("\n").split("\n")
    L.append(f"; @launch grid=(256,1,1) block=(256,1,1) lds={LDSSZ}")
    L+=f'.amdgcn_target "amdgcn-amd-amdhsa--gfx950"\n.text\n.globl {name}_kernel\n.p2align 8\n.type {name}_kernel,@function\n{name}_kernel:'.split("\n")
    L+="s_cmp_ge_u32 s2, 256\ns_cbranch_scc1 L_end\ns_load_dwordx16 s[4:19], s[0:1], 0\ns_load_dwordx8 s[20:27], s[0:1], 64\ns_load_dwordx2 s[28:29], s[0:1], 96\ns_bitcmp1_b32 s2, 0\ns_cbranch_scc1 L_B".split("\n")
    alt=[]
    for role in (0,1):
        pre,preo,post,posto=path(role,0,o); L+=pre+post+preo+posto+[f"L_end{'AB'[role]}:","s_endpgm"]
        pre,preo,post,posto=path(role,1,o); alt+=post+posto
    L+=alt
    L.append("L_fail:")
    if diag:
        L+=("s_mov_b64 exec, -1\ns_memrealtime s[76:77]\ns_memtime s[78:79]\ns_waitcnt lgkmcnt(0)\ns_sub_u32 s78, s78, s74\n"
            f"v_writelane_b32 {x('stamp')}, s76, 61\nv_writelane_b32 {x('stamp')}, s78, 62\nv_writelane_b32 {x('stamp')}, s{sTo}, 63\n"
            f"s_lshl_b32 s57, s2, 10\ns_lshl_b32 s58, s{sW}, 8\ns_add_u32 s57, s57, s58\ns_add_u32 s57, s57, {DIAG}\nv_lshl_add_u32 {x('t0')}, v0, 2, s57\nglobal_store_dword {x('t0')}, {x('stamp')}, s[28:29]").split("\n")
    L+=["L_end:","s_endpgm"]
    L+=f'.section .rodata,"a"\n.p2align 6\n.amdhsa_kernel {name}_kernel\n  .amdhsa_next_free_vgpr 512\n  .amdhsa_next_free_sgpr 102\n  .amdhsa_accum_offset 256\n  .amdhsa_group_segment_fixed_size 0\n  .amdhsa_kernarg_size 104\n  .amdhsa_user_sgpr_count 2\n  .amdhsa_user_sgpr_kernarg_segment_ptr 1\n  .amdhsa_system_sgpr_workgroup_id_x 1\n.end_amdhsa_kernel'.split("\n")
    out,n=fix(L,verbose=("-v" in sys.argv))
    return "\n".join(out)+"\n"
def parse(args):
    kw={}
    for a in args:
        if "=" in a:
            k,val=a.split("=")
            if isinstance(DEF.get(k),str): kw[k]=val
            else: kw[k]=tuple(int(z) for z in val.split(",")) if "," in val else int(val)
    return kw
if __name__=="__main__":
    t=gen(**parse(sys.argv[2:]))
    if "diag=1" in sys.argv: t+="; args: "+" ".join(a for a in sys.argv[2:] if a!="diag=1")+"\n"
    open(sys.argv[1],"w").write(t)
```

```python
import re
TRANS=("v_exp_f32","v_log_f32","v_rcp_f32","v_rsq_f32","v_sqrt_f32","v_sin_f32","v_cos_f32")
def regs(tok):
    tok=tok.strip()
    m=re.fullmatch(r"-?\|?([vas])\[(\d+):(\d+)\]\|?",tok)
    if m: return {(m.group(1),i) for i in range(int(m.group(2)),int(m.group(3))+1)}
    m=re.fullmatch(r"-?\|?([vas])(\d+)\|?",tok)
    if m: return {(m.group(1),int(m.group(2)))}
    if tok=="vcc": return {("s","vcc")}
    if tok=="m0": return {("s","m0")}
    if tok in("exec","exec_lo","exec_hi"): return {("s","exec")}
    return set()
class I:
    def __init__(s,text):
        s.text=text; t=text.split(";")[0].strip(); s.label=None; s.op=None
        s.w=set(); s.r=set(); s.cls=None; s.srcC=set(); s.srcAB=set(); s.data=set(); s.target=None; s.ws=1
        if not t or t.startswith("."): s.cls="none"; s.ws=0; return
        if t.endswith(":"): s.label=t[:-1]; s.cls="label"; s.ws=0; return
        p=t.split(None,1); s.op=p[0]; rest=p[1] if len(p)>1 else ""
        ops=[o.strip() for o in re.split(r",(?![^\[]*\])",rest)] if rest else []
        if ops:
            last=ops[-1].split(None,1); ops[-1]=last[0]; s.mods=last[1] if len(last)>1 else ""
        else: s.mods=""
        op=s.op; R=[regs(o) for o in ops]
        s.dpp = op.endswith("_dpp")
        if op.startswith("v_mfma"):
            s.cls="mfma"; s.w=R[0]; s.srcAB=R[1]|R[2]; s.srcC=R[3]; s.r=s.srcAB|s.srcC
        elif op.startswith("v_smfmac"):
            s.cls="mfma"; s.w=R[0]; s.srcAB=R[1]|R[2]|R[3]; s.srcC=R[0]; s.r=s.srcAB|s.srcC
        elif op.startswith("v_"):
            s.cls="valu"; base=op.replace("_dpp","").replace("_e32","").replace("_e64","")
            s.trans = base in TRANS
            s.w=set(R[0]); s.r=set().union(*R[1:]) if len(R)>1 else set()
            if base.startswith("v_cndmask") and len(ops)==3: s.r|={("s","vcc")}
            if base.startswith(("v_fmac","v_writelane","v_permlane")) or s.dpp: s.r|=R[0]
            if base.startswith("v_permlane"): s.w|=R[1]
            if base.startswith(("v_add_co","v_sub_co","v_addc_co","v_subb_co")): s.w|=R[1]; s.r=set().union(*R[2:])
            s.rl = base.startswith(("v_readlane","v_readfirstlane"))
            s.perm = base.startswith("v_permlane")
            s.lanesel = R[2] if base.startswith(("v_readlane","v_writelane")) else set()
        elif op.startswith(("global_","buffer_")):
            s.cls="vmem"
            if "load_lds" in op: s.r=set().union(*R)|{("s","m0")}; s.dma=True
            elif "load" in op: s.w=R[0]; s.r=set().union(*R[1:])
            else:
                s.r=set().union(*R)
                if op.endswith(("x3","x4")): s.data=R[1]
        elif op.startswith("ds_"):
            s.cls="ds"
            if "read" in op or "permute" in op or "swizzle" in op: s.w=R[0]; s.r=set().union(*R[1:])
            else: s.r=set().union(*R)
        else:
            s.cls="salu"
            if op=="s_nop": s.ws=int(ops[0],0)+1
            elif op.startswith(("s_branch","s_cbranch")): s.target=ops[0]
            elif op.startswith(("s_cmp","s_waitcnt","s_barrier","s_sleep","s_endpgm","s_setprio","s_bitcmp")): s.r=set().union(*R) if R else set()
            else:
                s.w=set(R[0]) if R else set(); s.r=set().union(*R[1:]) if len(R)>1 else set()
                if "saveexec" in op: s.w|={("s","exec")}
def need(p,c):
    n=0
    V=lambda S:{x for x in S if x[0] in "va"}
    Sg=lambda S:{x for x in S if x[0]=="s"}
    if p.cls=="valu":
        if c.cls=="valu":
            if p.op.startswith("v_dot") and V(p.w)&(c.r|c.w) and c.op!=p.op: n=max(n,3)
            if c.dpp and V(p.w)&c.r: n=max(n,2)
            if c.perm and V(p.w)&c.r: n=max(n,2)
            if c.rl and V(p.w)&c.r: n=max(n,1)
            if p.trans and not c.trans and V(p.w)&c.r: n=max(n,1)
            if Sg(p.w)&c.r: n=max(n,2)
            if Sg(p.w)&c.lanesel: n=max(n,4)
        if c.cls=="mfma" and V(p.w)&c.r: n=max(n,2)
        if c.cls=="vmem" and Sg(p.w)&c.r: n=max(n,5)
        if c.cls=="salu" and c.op.startswith("s_load") and Sg(p.w)&c.r: n=max(n,5)
    if p.cls=="mfma":
        if c.cls=="mfma":
            if p.w&c.srcAB: n=max(n,8)
            if p.w&c.srcC and p.w!=c.srcC: n=max(n,6)
            if p.w&c.w and p.w!=c.srcC: n=max(n,6)
        elif c.cls in("valu","vmem","ds"):
            if p.w&(c.r|c.w): n=max(n,8)
        if c.cls=="valu" and p.srcC&c.w: n=max(n,3)
    if p.cls=="vmem" and p.data:
        if c.cls=="valu" and p.data&c.w: n=max(n,2)
        elif p.data&c.w: n=max(n,1)
    if p.cls=="salu" and ("s","m0") in p.w and c.cls=="vmem" and getattr(c,"dma",False): n=max(n,1)
    return n
def fix(lines,verbose=False):
    ins=[I(l) for l in lines]
    lab={x.label:i for i,x in enumerate(ins) if x.label}
    preds={i:[] for i in range(len(ins))}
    for i,x in enumerate(ins):
        if x.target is not None and x.target in lab: preds[lab[x.target]].append(i)
        if i+1<len(ins) and x.op not in("s_branch","s_endpgm"): preds[i+1].append(i)
    extra=[0]*len(ins); changed=True
    while changed:
        changed=False
        for i,c in enumerate(ins):
            if c.cls in("none","label"): continue
            worst=0; stack=[(j,extra[i]) for j in preds[i]]; seen={}
            while stack:
                j,d=stack.pop()
                if d>=8 or seen.get(j,99)<=d: continue
                seen[j]=d; p=ins[j]
                if p.cls not in("none","label"):
                    k=need(p,c)-d
                    if k>worst: worst=k; who=p
                for jj in preds[j]: stack.append((jj,d+p.ws+extra[j]))
            if worst>0:
                if verbose: print("nop",worst,"between",who.text.strip(),"->",c.text.strip())
                extra[i]+=worst; changed=True
    out=[]
    for i,x in enumerate(ins):
        if extra[i]: out.append(f"s_nop {extra[i]-1}")
        out.append(x.text)
    return out, sum(extra)
```

```python
import bc,sys,numpy as np,collections
T=[l.split(";")[0].strip() for l in open(sys.argv[1])]; T=[t for t in T if t]
wd=lambda op:{"dword":1,"dwordx2":2,"dwordx3":3,"dwordx4":4}[op.split("_")[-1]]
N=8<<20
NEG=[t for t in T if t.startswith('global_store_dwordx4')][0].split(',')[1].strip()
import gen5
CHK="v%d,"%gen5.r['chk']
S=0x20000
regs=[("E1",0,4*S),("DB",0x80000,0xC0000),("PRB",0xC0000,0x100000),("FLG",0x1A0000,0x1A8000),("NONCE",0x1A8000,0x1A9000),("E3",0x200000,0x300000)]
for l in range(4):
    b=0x100000+l*S
    regs+=[("E2.%d"%l,b,b+0x10000),("st2.%d"%l,b+0x10000,b+0x14000),("st3.%d"%l,b+0x14000,b+0x18000),("cs.%d"%l,b+0x18000,b+0x20000)]
for vote in ((0,1),(1,-1)):
    C=[]; bc.VOTE=vote; bc.run(sys.argv[1],collect=C)
    rs=np.zeros(N//4,np.int32); pb=np.zeros(N//4,np.int32); rd=np.zeros(N//4,np.int32)
    cov=collections.defaultdict(lambda: collections.Counter())
    for wg,w,pc,op,sl,x,m0,off in C:
        if sl==96:
            idx=(x[:,None]//4+np.arange(wd(op))[None,:]).ravel()
            if "store" in op:
                if NEG in T[pc]: np.add.at(rs,idx,1)
                else: np.add.at(pb,idx,1)
            elif T[pc].split()[1]!=CHK: np.add.at(rd,idx,1)
        elif sl>=0 and "load_lds" in op: cov[sl].update((x//16).tolist())
        elif sl==80: cov[sl].update((x//8).tolist())
    if vote[0]==0:
        for sl,c in cov.items(): print(sl,len(c),collections.Counter(c.values()),hex(min(c)*16),hex(max(c)*16))
    print("vote",vote,"outside:",sum(int((a>0).sum()) for a in (rs,pb,rd))-sum(int((a[lo//4:hi//4]>0).sum()) for a in (rs,pb,rd) for _,lo,hi in regs))
    for n,lo,hi in regs:
        a,b,c=rs[lo//4:hi//4],pb[lo//4:hi//4],rd[lo//4:hi//4]
        print("  %-6s reset %6d pub %6d read %6d | rd!reset %d rd!pub %d pub!rd %d pubmulti %d resetmulti %d pub!reset %d"%(n,(a>0).sum(),(b>0).sum(),(c>0).sum(),((c>0)&(a==0)).sum(),((c>0)&(b==0)).sum(),((b>0)&(c==0)).sum(),(b>1).sum(),(a>1).sum(),((b>0)&(a==0)).sum()))
```

```python
import sys, math, struct
from hz import fix
NAME="interleave_layers__sliding_block_cached__sliding_block_cached__decode"
HDR=open("cdna_kernels/%s.s.ref"%NAME).read().split("; Override launch")[0]
def f2u(x): return struct.unpack("<I",struct.pack("<f",x))[0]
AS=1056
XQ=0; XA=2*AS; XO=4*AS; XP=6*AS; XM=8*AS; XR=XM+128; XV=XR+32; XF=XV+32; FS=528
BUFK=0x2c00; VS=8320; BUFV=BUFK+0x8000; WS=16416; BUFW=BUFV+4*VS; LDSSZ=BUFW+4*WS
assert XF+4*FS<=BUFK and XF%16==0
S=0x20000; DB=0x80000; PRB=0xC0000; MISC=0x100000; ST2=MISC+0x10000; ST3=MISC+0x14000; CS=MISC+0x18000
FLG=0x1A0000; NONCE=0x1A8000; E3=0x200000; DIAG=6<<20
class Regs:
    def __init__(s,n0): s.n=n0; s.d={}
    def __call__(s,name,k=1,al=1):
        s.n=(s.n+al-1)//al*al; s.d[name]=s.n; s.n+=k; return s.d[name]
ORDER=[("q",q) for q in range(16)]+[("k",q) for q in range(8)]+[("v",q) for q in range(8)]+[("o",q) for q in range(16)]
DEF=dict(diag=0, TMO=30000, slp=2, slpl=1, wfl=0, kfl=0, pf=1, force=0, dsl=3, ring=(3,1,1), vpos=2,
         an0=16, ap="U_Z_H0_L24_E_M8_M16", aq=24, br0="", ar0="0",
         a0="N1_F_L26_W21_C_G_B_L32_K", a1="L40_S2_G_B_L48_M40_M48", acs="F_H1_V_Q_X_Y", a2="D_G", a3="S2_G", a4="S2_G",
         asp=(36,48),
         bn0=2, bp="U_N0_N1_Z_O_H0_H1_P12.2_F_P24.8_C_M16_B_Y_Q_P32.8_K_X_M32_P40.8",
         b1="D_G_B_L44", b2="S2_G_B_L48", b3="S2_G_M48", b4="D_G", b5="S2_G", b6="S2_G", b7="A_G",
         bsp=(44,48,48), sk=1)
FL=['nt','','sc1','sc0 sc1','sc1 nt','sc0']
V=Regs(1)
for n in "Sel SelL SelH Msk G0 G1 G2 G3 S D T0 T1 T2 T3 U0 U1 L0 L1 Tg Ag A0 A1 W0 W1 F0 F1 F2 F3 Neg P4 X4 fF".split(): V(n,4,4)
V("One",8,4)
for n in "c01 st ab tA tB tC tD kc0 kc1 xr pa fl mx".split(): V(n,2,2)
for n in ("aG1 aG2 aC2 aS2 aG3 aS3 aP2 aPS2 aP3 aPS3 aP1 aR aWm aF aFl aDp aDc dQ dK dV dO dT dS xWQ xWA xWO xFw xFr rA rG rP pW mW mR lW lR lR2 vW "
          "tT0 tT1 tV tK idx tid n g t0 t1 t2 t3 t4 t5 chk p0 p1 p2 p3 dbv stamp").split(): V(n)
assert V.n<=256
r=V.d
v=lambda i:f"v{i}"
vr=lambda i,k:f"v[{i}:{i+k-1}]"
ar=lambda i,k:f"a[{i}:{i+k-1}]"
sp=lambda i:f"s[{i}:{i+1}]"
R=lambda n,k=4,o=0:vr(r[n]+o,k)
x=lambda n,o=0:v(r[n]+o)
q4=lambda n:list(range(r[n],r[n]+4))
DP="row_mask:0xf bank_mask:0xf"
sW,sG,sM,sR,sI,sI2,sCB,sMode=30,31,32,33,34,35,36,37
sLb=[38,40]; sN=42; sWq,sWv,sXs,sExp=44,45,46,47; mS3,mCC,mS2=48,50,52; sX28,sSide,sPerm=54,55,56
sWk,sRt,sTo,sTag=3,14,15,26

def path(role,mode,o):
    RING=o["ring"] if isinstance(o["ring"],tuple) else (o["ring"],)*3
    X="AB"[role]; diag=o["diag"]; TMO=o["TMO"]
    pre=[]; preo=[]; post=[]; posto=[]
    main=[pre]; ool=[preo]; cur=[pre]; sfx=[X]
    def A_(t):
        for z in t.split("\n"): cur[0].append(z)
    hook=[A_]
    def A(t): hook[0](t)
    def OOL(): cur[0]=ool[0]
    def MAIN(): cur[0]=main[0]
    lab=lambda n:f"L_{n}_{sfx[0]}"
    PTR=[dict(k=6,v=8,q=10,o=12),dict(k=16,v=18,q=20,o=22)][role]
    LOC=lambda: "sc1" if (mode or main[0] is pre) else ""
    Q=[]
    def vm(tag): Q.append(tag)
    def cnt(tag):
        i=max(i for i,t in enumerate(Q) if t==tag); n=len(Q)-1-i; return min(n,63)
    done=[0]
    def waitfor(tag): n=cnt(tag); done[0]=max(done[0],len(Q)-n); A(f"s_waitcnt vmcnt({n})")
    def acked(tag): return tag in Q and max(i for i,t in enumerate(Q) if t==tag)<done[0]
    curl=[0]
    def stamp(k):
        if diag: A(f"s_memrealtime s[{76+2*k}:{77+2*k}]")
    def lane(k):
        if diag: A(f"s_memrealtime s[100:101]\ns_waitcnt lgkmcnt(0)\nv_writelane_b32 {x('stamp')}, s100, {k}")
    def flush(l):
        if not diag: return
        A("s_waitcnt lgkmcnt(0)")
        for k in range(13):
            if l or 0<k<12: A(f"v_writelane_b32 {x('stamp')}, s{76+2*k}, {4+14*l+k}")
        A(f"v_writelane_b32 {x('stamp')}, s{sRt}, {4+14*l+13}\ns_mov_b32 s{sRt}, 0")
    ns=[0]; moved=set(); nbar=[0]; m0v=[None]; wfree=[99]
    def bar():
        A("s_waitcnt lgkmcnt(0)\ns_barrier"); nbar[0]+=1
    def setm0(sreg,val):
        if m0v[0]!=(sreg,val): A(f"s_add_u32 m0, s{sreg}, {val}"); m0v[0]=(sreg,val)
    def dma(kind,q):
        p=PTR[kind]
        if kind in "qo":
            if kind=="o": assert wfree[0]<=nbar[0] or o.get("nochk"), ("W buffer busy",nbar[0])
            setm0(sWq,BUFW+(q>>2)*WS+(q&3)*4104)
            src=x("dQ" if kind=="q" else "dO")
            if q: A(f"v_add_u32 {x('dT')}, {q*(65536 if kind=='q' else 16384)}, {src}"); src=x("dT")
            A(f"global_load_lds_dwordx4 {src}, {sp(p)} {FL[o['wfl']]}")
        else:
            hi=q//4
            if kind=="v": setm0(sWv,BUFV+hi*4096+8*q)
            else: setm0(sWk,BUFK+hi*4096)
            src=x("dK" if kind=="k" else "dV")
            if kind=="k" and q: A(f"v_xor_b32 {x('dT')}, {q*32}, {src}"); src=x("dT")
            if hi: A(f"v_add_u32 {x('dT')}, 4096, {src}"); src=x("dT")
            A(f"global_load_lds_dwordx4 {src}, {sp(p)} offset:{(q%4)*1024} {FL[o['kfl']]}")
        vm(f"{kind}{q}")
    def stream(n):
        while ns[0]<n: dma(*ORDER[ns[0]]); ns[0]+=1
    def wload(i): k,q=ORDER[i]; assert i<ns[0]; waitfor(f"{k}{q}")
    tgt=[0]
    def slot():
        n=min(tgt[0],ns[0]+o["sk"])
        while ns[0]<n:
            k,q=ORDER[ns[0]]
            if k=="o" and wfree[0]>nbar[0]: break
            dma(k,q); ns[0]+=1
    def trW(kind,reg):
        ab=0 if kind=="q" else 128; Sx=reg>>1
        for t in range(4):
            for ub in range(2):
                u=2*(reg&1)+ub
                A(f"ds_read_b64_tr_b16 {ar(ab+(t*2+Sx)*8+2*u,2)}, {x('tT%d'%(t&1))} offset:{reg*WS+ub*2048+8*(t>>1)}")
        moved.add((kind,reg))
        if kind=="q" and reg==3: wfree[0]=nbar[0]+1
    def trV():
        for U in range(2):
            for t in range(2):
                for jh in range(2):
                    for ib in range(2):
                        A(f"ds_read_b64_tr_b16 {ar(96+(t*2+U)*8+2*(2*jh+ib),2)}, {x('tV')} offset:{2*U*VS+jh*4128+ib*512+8*t}")
        moved.add(("v",0))
    def kreads():
        wload(23)
        for s in range(4):
            A(f"v_xor_b32 {x('dT')}, {64*s}, {x('tK')}")
            for t in range(2): A(f"ds_read_b128 {ar(64+(t*4+s)*4,4)}, {x('dT')} offset:{256*t}")
        moved.add(("k",0))
    def move(n):
        gs=[("q",k) for k in range(4) if 4*k+4<=n]+([("v",0)] if n>=32 else [])+[("o",k) for k in range(4) if 36+4*k<=n]
        gs=[g_ for g_ in gs if g_ not in moved]
        if not gs: return
        k,j=gs[-1]; wload({"q":4*j+3,"v":31,"o":35+4*j}[k]); bar()
        for k,j in gs:
            if k=="v": trV()
            else: trW(k,j)
    def mf(d,a,b,c): A(f"v_mfma_f32_16x16x32_bf16 {d}, {a}, {b}, {c}")
    def smf(d,a,b): A(f"v_smfmac_f32_16x16x64_bf16 {R(d)}, {R(a)}, {b}, {x('idx')}")
    def zero(*names):
        for n in names: A(f"v_mov_b64 {R(n,2)}, 0\nv_mov_b64 {R(n,2,2)}, 0")
    def chk(rs,first=True):
        rs=list(rs); c=x("chk")
        if first:
            A(f"v_max3_u32 {c}, v{rs[0]}, v{rs[1]}, v{rs[2]}"); rs=rs[3:]
        while len(rs)>=2: A(f"v_max3_u32 {c}, {c}, v{rs[0]}, v{rs[1]}"); rs=rs[2:]
        if rs: A(f"v_max_u32 {c}, {c}, v{rs[0]}")
    def fin(fail): A(f"v_cmp_eq_u32 vcc, -1, {x('chk')}\ns_cbranch_vccnz {fail}")
    def cvtD(T='D'): A(f"v_cvt_pk_bf16_f32 {x('c01')}, {x(T)}, {x(T,1)}\nv_cvt_pk_bf16_f32 {x('c01',1)}, {x(T,2)}, {x(T,3)}")
    def wrA(a): A(f"ds_write2_b32 {x(a)}, {x('c01')}, {x('c01',1)} offset0:0 offset1:8")
    def sel2(dst,a,b,thr,src="v0"): A(f"v_cmp_le_u32 vcc, {thr}, {src}\nv_cndmask_b32 {dst}, {a}, {b}, vcc")
    if role: A("L_B:")
    if o["pf"]:
        A(f"s_getpc_b64 s[58:59]\nL_pc{X}:\nv_lshlrev_b32 {x('t0')}, 6, v0\nv_min_u32 {x('t0')}, L_end{X}-L_pc{X}, {x('t0')}")
        A(f"v_add_co_u32 {x('pa')}, vcc, s58, {x('t0')}\nv_mov_b32 {x('t0')}, s59\nv_addc_co_u32 {x('pa',1)}, vcc, 0, {x('t0')}, vcc")
        A(f"global_load_dword {x('chk')}, {R('pa',2)}, off"); vm("pf")
    if diag: A("s_memrealtime s[98:99]\ns_memtime s[74:75]")
    A(f"v_lshrrev_b32 {x('t0')}, 6, v0\nv_mov_b32 {x('tid')}, v0\nv_and_b32 v0, 63, v0\nv_and_b32 {x('n')}, 15, v0\nv_readfirstlane_b32 s{sW}, {x('t0')}")
    A(f"s_bfe_u32 s{sG}, s2, 0x20001\ns_lshr_b32 s{sM}, s2, 3\ns_lshr_b32 s{sR}, s2, 5\ns_and_b32 s{sI}, s{sM}, 3\ns_and_b32 s{sI2}, s{sM}, 7\ns_lshr_b32 s{sCB}, s2, 6")
    A(f"v_lshrrev_b32 {x('g')}, 4, v0\nv_lshrrev_b32 {x('t5')}, 5, v0")
    A(f"v_and_b32 {x('t0')}, 31, v0\nv_lshlrev_b32 {x('t4')}, 4, {x('t0')}\nv_lshlrev_b32 {x('t0')}, 6, {x('t5')}\nv_xor_b32 {x('t1')}, {x('t4')}, {x('t0')}")
    A(f"s_and_b32 s60, s{sW}, 1\ns_lshl_b32 s57, s60, 7\nv_xor_b32 {x('t1')}, s57, {x('t1')}")
    A(f"s_lshl_b32 s57, s{sR}, 20\ns_lshl_b32 s58, s{sW}, 14\ns_add_u32 s57, s57, s58\ns_lshl_b32 s58, s{sG}, 11\ns_add_u32 s57, s57, s58\ns_lshl_b32 s58, s{sI}, 9\ns_add_u32 s57, s57, s58")
    if o.get("xi"): A(f"s_xor_b32 s57, s57, {o['xi']*512}")
    A(f"v_lshl_add_u32 {x('dQ')}, {x('t5')}, 13, {x('t1')}\nv_add_u32 {x('dQ')}, s57, {x('dQ')}")
    A(f"s_lshl_b32 s{sWq}, s{sW}, 10\ns_mul_i32 s{sWv}, s{sW}, {VS}\ns_lshl_b32 s{sWk}, s{sW}, 13")
    A(f"s_lshr_b32 s57, s{sG}, 1\ns_lshl_b32 s57, s57, 19\ns_and_b32 s58, s{sG}, 1\ns_lshl_b32 s58, s58, 16\ns_add_u32 s57, s57, s58\ns_add_u32 s62, s57, {E3}")
    A(f"s_lshl_b32 s57, s{sG}, 3\ns_add_u32 s57, s57, s{sI2}\ns_lshl_b32 s57, s57, 8\ns_lshl_b32 s58, s{sCB}, 15\ns_add_u32 s63, s57, s58")
    A(f"s_lshl_b32 s57, s{sG}, 14\ns_add_u32 s64, s57, {MISC}\ns_lshl_b32 s58, s{sR}, 8\ns_lshl_b32 s59, s{sI}, 12\ns_add_u32 s59, s59, s58\ns_add_u32 s65, s64, s59")
    A(f"s_lshl_b32 s66, s{sG}, 12\ns_lshl_b32 s57, s{sG}, 13\ns_add_u32 s69, s57, {CS}\ns_lshl_b32 s59, s{sI}, 11\ns_add_u32 s59, s59, s58\ns_add_u32 s67, s69, s59")
    A(f"s_lshl_b32 s57, s{sM}, 7\ns_add_u32 s68, s66, s57")
    A(f"v_lshlrev_b32 {x('t3')}, 4, {x('n')}")
    A(f"v_lshl_add_u32 {x('t0')}, {x('g')}, 11, {x('t3')}\nv_add_u32 {x('aWm')}, s65, {x('t0')}")
    A(f"v_bfe_u32 {x('t0')}, v0, 3, 1\nv_mul_u32_u24 {x('t0')}, {ST3-ST2-128}, {x('t0')}\ns_add_u32 s57, s68, {ST2}\nv_add3_u32 {x('t0')}, {x('t0')}, s57, {x('t3')}")
    sel2(x('aWm'),x('aWm'),x('t0'),32)
    A(f"v_add_u32 {x('t0')}, s67, {x('t3')}"); sel2(x('aWm'),x('aWm'),x('t0'),48)
    A(f"s_lshl_b32 s57, s{sW}, 15\ns_lshl_b32 s58, s{sM}, 9\ns_add_u32 s57, s57, s58\ns_add_u32 s57, s57, s62\nv_lshl_add_u32 {x('t0')}, {x('t5')}, 14, {x('t4')}\nv_add_u32 {x('t0')}, s57, {x('t0')}")
    A(f"s_movk_i32 s57, 128\ns_movk_i32 s58, 192"); sel2(x('aWm'),x('t0'),x('aWm'),"s57",x('tid'))
    A(f"v_lshl_add_u32 {x('t0')}, {x('g')}, 13, {x('t3')}\nv_add_u32 {x('t0')}, s63, {x('t0')}"); sel2(x('aR'),x('aWm'),x('t0'),"s58",x('tid'))
    for k in (0,2): A(f"v_mov_b64 {R('Neg',2,k)}, -1")
    A(f"v_and_b32 {x('t2')}, 1, {x('g')}\nv_lshl_add_u32 {x('t2')}, {x('t2')}, 3, {x('t3')}")
    if not role: A(f"s_lshl_b32 s57, s{sR}, 8\nv_add_u32 {x('p0')}, s57, {x('t2')}\nv_lshlrev_b32 {x('p1')}, 5, v0")
    A(f"s_getreg_b32 s{sX28}, hwreg(HW_REG_XCC_ID, 0, 4)")
    if o["force"]: A(f"s_lshr_b32 s57, s2, 3\ns_and_b32 s57, s57, {o['force']}\ns_xor_b32 s{sX28}, s{sX28}, s57")
    A(f"s_bfe_u32 s{sSide}, s{sX28}, 0x10002\ns_lshl_b32 s{sX28}, s{sX28}, 28")
    A("s_waitcnt lgkmcnt(0)")
    if diag: A(f"s_memrealtime s[76:77]\nv_mov_b32 {x('stamp')}, 0\ns_waitcnt lgkmcnt(0)\nv_writelane_b32 {x('stamp')}, s98, 0\nv_writelane_b32 {x('stamp')}, s76, 1")
    A("s_add_u32 s28, s28, 0x1fffff\ns_addc_u32 s29, s29, 0\ns_and_b32 s28, s28, 0xffe00000")
    if not role:
        A(f"global_load_dwordx2 {R('c01',2)}, {x('p0')}, s[4:5]"); vm("x")
        A(f"global_load_dwordx4 {R('G0')}, {x('p1')}, s[4:5]\nglobal_load_dwordx4 {R('G1')}, {x('p1')}, s[4:5] offset:16"); vm("x"); vm("x")
    for j in range(2): A(f"s_add_u32 s{sLb[j]}, s28, {(2*j+role)*S}\ns_addc_u32 s{sLb[j]+1}, s29, 0")
    A(f"s_add_u32 s58, s28, {NONCE}\ns_addc_u32 s59, s29, 0\ns_load_dword s{sTag}, s[58:59], 0")
    def reset(j): A(f"global_store_dwordx4 {x('aR')}, {R('Neg')}, {sp(sLb[j])} sc1"); vm("R"); vm2.add(j)
    vm2=set()
    for j in (o["br0"] if role else o["ar0"]): reset(int(j))
    n0=o["bn0"] if role else o["an0"]
    stream(min(n0,16))
    A(f"s_lshl_b32 s57, s{sG}, 24\ns_lshl_b32 s58, s{sM}, 15\ns_add_u32 s57, s57, s58\ns_add_u32 s57, s57, s{sWk}\ns_add_u32 s57, s57, {61440*256}")
    A(f"v_xor_b32 {x('t0')}, {x('n')}, {x('t5')}\nv_lshlrev_b32 {x('t0')}, 4, {x('t0')}\nv_lshl_add_u32 {x('dK')}, {x('g')}, 8, {x('t0')}\nv_add_u32 {x('dK')}, s57, {x('dK')}")
    A(f"v_and_b32 {x('p2')}, 1, {x('g')}\nv_lshlrev_b32 {x('p2')}, 6, {x('p2')}\nv_xor_b32 {x('t0')}, {x('t3')}, {x('p2')}\nv_lshl_add_u32 {x('dV')}, {x('g')}, 8, {x('t0')}\nv_add_u32 {x('dV')}, s57, {x('dV')}")
    stream(min(n0,32))
    A(f"s_lshl_b32 s57, s{sG}, 21\ns_lshl_b32 s58, s{sI2}, 18\ns_add_u32 s57, s57, s58\ns_lshl_b32 s58, s{sW}, 12\ns_add_u32 s57, s57, s58\ns_lshl_b32 s58, s{sCB}, 9\ns_add_u32 s57, s57, s58")
    A(f"v_lshl_add_u32 {x('dO')}, {x('t5')}, 11, {x('t1')}\nv_add_u32 {x('dO')}, s57, {x('dO')}")
    if role: A(f"s_lshl_b32 s57, s2, 2\ns_add_u32 s57, s57, s{sW}\ns_lshr_b32 s58, s57, 6\ns_lshl_b32 s58, s58, 14\ns_and_b32 s57, s57, 63\ns_lshl_b32 s57, s57, 7\ns_add_u32 s57, s57, s58")
    if role: A(f"s_lshl_b32 s58, s60, 13\ns_add_u32 s57, s57, s58\ns_add_u32 s57, s57, {PRB}\ns_xor_b32 s58, s57, 0x2000")
    if role: A(f"s_add_u32 s82, s28, s57\ns_addc_u32 s83, s29, 0\ns_add_u32 s90, s28, s58\ns_addc_u32 s91, s29, 0")
    if role: A(f"s_mov_b32 s84, 0x5bd1e995\ns_not_b32 s85, s84\ns_mov_b64 s[88:89], s[84:85]\ns_xor_b32 s73, s60, s{sSide}\ns_lshl_b32 s73, s73, 1\ns_sub_u32 s73, s73, 1")
    A(f"s_lshl_b32 s57, s2, 7\ns_lshl_b32 s58, s{sW}, 4\ns_add_u32 s57, s57, s58\ns_add_u32 s57, s57, {FLG}\nv_mov_b32 {x('aFl')}, s57")
    def flag():
        waitfor("R")
        A("s_waitcnt lgkmcnt(0)")
        A(f"s_mul_i32 s{sTag}, s{sTag}, 0x9e3779b1\ns_add_u32 s{sTag}, s{sTag}, 0x7f4a7c15\ns_xor_b32 s92, s{sTag}, s{sX28}\nv_mov_b32 {x('fl')}, s92")
        A(f"s_mov_b64 exec, 1\nglobal_store_dword {x('aFl')}, {x('fl')}, s[28:29] sc1\ns_mov_b64 exec, -1"); vm("flag")
        if diag: A("s_memrealtime s[78:79]\ns_waitcnt lgkmcnt(0)")
        if diag: A(f"v_writelane_b32 {x('stamp')}, s78, 2")
        assert len(vm2)==2 or not role
    def probe():
        assert role
        A(f"s_waitcnt lgkmcnt(0)\ns_load_dwordx2 s[86:87], s[82:83], 0\ns_load_dwordx2 s[88:89], s[90:91], 0")
        A(f"v_mov_b32 {x('pa')}, s{sTag}\ns_waitcnt lgkmcnt(2)\ns_cmp_eq_u64 s[88:89], s[84:85]\ns_cselect_b32 s73, s73, 0\nv_mov_b32 {x('pa',1)}, s73")
        A(f"s_mov_b64 exec, 1\nglobal_store_dwordx2 {x('aFl')}, {R('pa',2)}, s[28:29] offset:8 sc1\ns_mov_b64 exec, -1"); vm("vote")
    late=[]; hook[0]=late.append
    A(f"v_lshlrev_b32 {x('t0')}, 4, v0\ns_lshl_b32 s61, s{sW}, 11")
    A(f"s_lshl_b32 s57, s{sR}, 14\ns_add_u32 s57, s57, s61\ns_add_u32 s57, s57, {(1-role)*S}\nv_add_u32 {x('aG1')}, s57, {x('t0')}")
    A(f"s_lshl_b32 s57, s{sW}, 12\ns_add_u32 s57, s57, s64\nv_add_u32 {x('aG2')}, s57, {x('t0')}")
    A(f"s_add_u32 s57, s61, s69\nv_add_u32 {x('aC2')}, s57, {x('t0')}")
    A(f"s_lshr_b32 s58, s{sI2}, 1\ns_and_b32 s59, s{sI2}, 1\ns_lshl_b32 s57, s58, 14\ns_add_u32 s57, s57, s62\ns_lshl_b32 s70, s59, 8\ns_add_u32 s57, s57, s70\ns_lshl_b32 s70, s{sW}, 12\ns_add_u32 s57, s57, s70")
    A(f"v_lshl_add_u32 {x('t0')}, {x('g')}, 9, {x('t3')}\nv_add_u32 {x('aG3')}, s57, {x('t0')}")
    A(f"s_lshl_b32 s58, s58, 4\ns_lshl_b32 s59, s59, 2\ns_add_u32 s57, s58, s59\ns_add_u32 s57, s57, s66\ns_add_u32 s57, s57, s{sWq}\ns_add_u32 s57, s57, {ST3}")
    A(f"v_and_b32 {x('t4')}, 1, v0\nv_lshl_add_u32 {x('p3')}, {x('t4')}, 2, {x('g')}\nv_and_b32 {x('p1')}, 7, v0\nv_and_b32 {x('t0')}, 8, v0\nv_cmp_ne_u32 vcc, 0, {x('t0')}\nv_cndmask_b32 {x('p3')}, {x('p1')}, {x('p3')}, vcc")
    A(f"v_lshl_add_u32 {x('aS3')}, {x('p3')}, 7, s57")
    A(f"s_lshl_b32 s57, s{sW}, 7\ns_add_u32 s57, s57, s66\ns_add_u32 s57, s57, {ST2}\nv_bfe_u32 {x('t0')}, v0, 1, 3\nv_lshlrev_b32 {x('t0')}, 9, {x('t0')}\nv_lshl_add_u32 {x('t0')}, {x('t4')}, 4, {x('t0')}\nv_add_u32 {x('aS2')}, s57, {x('t0')}")
    A(f"s_and_b32 s57, s2, 7\ns_lshl_b32 s58, s{sW}, 3\ns_add_u32 s57, s57, s58\nv_lshl_add_u32 {x('t0')}, {x('p1')}, 5, s57")
    A(f"s_lshl_b32 s57, s{sCB}, 6\ns_lshl_b32 s58, s{sW}, 1\ns_add_u32 s57, s57, s58\ns_add_u32 s57, s57, {1-role}\nv_lshl_add_u32 {x('p3')}, {x('p1')}, 3, s57")
    sel2(x('t0'),x('t0'),x('p3'),32)
    A(f"v_bfe_u32 {x('p3')}, v0, 3, 2\nv_lshlrev_b32 {x('p3')}, 4, {x('p3')}\nv_lshl_add_u32 {x('t0')}, {x('t0')}, 7, {x('p3')}\nv_add_u32 {x('aF')}, {FLG}, {x('t0')}")
    A(f"s_lshl_b32 s57, s{sR}, 14\ns_lshl_b32 s58, s{sI}, 11\ns_add_u32 s57, s57, s58\ns_add_u32 s59, s57, {DB+(1-role)*0x20000}\nv_and_b32 {x('t0')}, 3, v0\nv_lshl_add_u32 {x('aDc')}, {x('t0')}, 9, s59")
    A(f"s_lshl_b32 s58, s{sG}, 9\ns_add_u32 s57, s57, s58\ns_lshl_b32 s58, s{sW}, 7\ns_add_u32 s57, s57, s58\ns_add_u32 s57, s57, {DB+role*0x20000}\nv_lshl_add_u32 {x('aDp')}, {x('t4')}, 13, s57")
    A(f"v_lshl_add_u32 {x('p3')}, {x('n')}, 2, {x('p2')}\ns_lshl_b32 s70, s60, 7\ns_lshr_b32 s71, s{sW}, 1")
    A(f"s_lshl_b32 s57, s71, 11\ns_add_u32 s57, s57, s65\ns_add_u32 s57, s57, s70\nv_add_u32 {x('aP2')}, s57, {x('p3')}")
    A(f"s_lshl_b32 s57, s71, 18\ns_add_u32 s57, s57, s67\ns_add_u32 s57, s57, s70\nv_add_u32 {x('t0')}, s57, {x('p3')}"); sel2(x('aP2'),x('aP2'),x('t0'),32)
    A(f"s_lshl_b32 s57, s71, 14\ns_add_u32 s57, s57, s63\ns_add_u32 s57, s57, s70\nv_lshl_add_u32 {x('t0')}, {x('t5')}, 13, {x('p3')}\nv_add_u32 {x('aP1')}, s57, {x('t0')}")
    A(f"s_lshl_b32 s57, s{sM}, 9\ns_lshl_b32 s58, s{sW}, 6\ns_add_u32 s57, s57, s58\ns_add_u32 s57, s57, s62\nv_lshlrev_b32 {x('t0')}, 2, {x('n')}\nv_lshl_add_u32 {x('t0')}, {x('g')}, 14, {x('t0')}\nv_add_u32 {x('aP3')}, s57, {x('t0')}")
    A(f"s_lshl_b32 s57, s{sW}, 4\ns_add_u32 s58, s57, s68\ns_add_u32 s58, s58, {ST2}\nv_lshl_add_u32 {x('aPS2')}, {x('g')}, 2, s58\ns_add_u32 s58, s68, {ST3}\nv_lshl_add_u32 {x('aPS3')}, {x('g')}, 4, s58")
    A(f"s_lshl_b64 {sp(mS3)}, 1, s57\ns_mov_b32 s{mCC}, 0xcccccccc\ns_mov_b32 s{mCC+1}, 0xcccccccc\ns_mov_b32 s{mS2}, 0x10001\ns_mov_b32 s{mS2+1}, 0x10001")
    A(f"s_and_b32 s57, s{sR}, 1\ns_cmp_eq_u32 s57, s71\ns_cselect_b32 s{sXs}, {hex(f2u(1/16))}, 0")
    A(f"s_mov_b32 s{sPerm}, 0x03020302\ns_mov_b32 s{sTo}, 0\ns_mov_b32 s{sRt}, 0")
    def X12(dst,src,lo):
        A(f"v_lshrrev_b32 {dst}, 1, {src}\nv_mul_u32_u24 {dst}, 12, {dst}\nv_and_b32 {x('dS')}, 1, {src}\nv_lshl_add_u32 {dst}, {x('dS')}, {lo-1}, {dst}")
    X12(x('t0'),x('g'),1); A(f"v_xor_b32 {x('t0')}, {x('t0')}, {x('n')}\nv_lshlrev_b32 {x('t0')}, 4, {x('t0')}\nv_lshl_add_u32 {x('rA')}, {x('g')}, 8, {x('t0')}")
    X12(x('t0'),x('g'),2); A(f"v_xor_b32 {x('t0')}, {x('t0')}, {x('n')}\nv_lshlrev_b32 {x('t0')}, 4, {x('t0')}\nv_lshl_add_u32 {x('rP')}, {x('g')}, 8, {x('t0')}")
    A(f"s_mul_i32 s57, s60, {AS}\nv_add_u32 {x('rG')}, s57, {x('rA')}")
    A(f"v_bfe_u32 {x('p3')}, v0, 1, 2\nv_bfe_u32 {x('p0')}, v0, 3, 1\nv_mul_u32_u24 {x('p0')}, {AS}, {x('p0')}\nv_lshl_add_u32 {x('p0')}, {x('p3')}, 8, {x('p0')}")
    A(f"v_lshl_add_u32 {x('p0')}, {x('t4')}, 3, {x('p0')}\nv_lshrrev_b32 {x('t0')}, 4, {x('p2')}\nv_add_u32 {x('p0')}, {x('p0')}, {x('t0')}")
    X12(x('t0'),x('p3'),1)
    A(f"s_lshl_b32 s57, s71, 2\ns_add_u32 s57, s57, s60\nv_xor_b32 {x('p3')}, s57, {x('t0')}\nv_lshl_add_u32 {x('xWQ')}, {x('p3')}, 4, {x('p0')}")
    A(f"v_lshlrev_b32 {x('dS')}, 3, {x('t5')}\nv_xor_b32 {x('p3')}, {x('p3')}, {x('dS')}\nv_lshl_add_u32 {x('xWO')}, {x('p3')}, 4, {x('p0')}\nv_add_u32 {x('xWO')}, {XO}, {x('xWO')}")
    A(f"s_lshl_b32 s57, s{sW}, 2\nv_add_u32 {x('p3')}, s57, {x('t5')}\nv_xor_b32 {x('p3')}, {x('p3')}, {x('t0')}\nv_lshl_add_u32 {x('xWA')}, {x('p3')}, 4, {x('p0')}\nv_add_u32 {x('xWA')}, {XA}, {x('xWA')}")
    A(f"v_and_b32 {x('t4')}, 3, {x('n')}\nv_lshrrev_b32 {x('p0')}, 2, {x('n')}")
    X12(x('t0'),x('p0'),2)
    A(f"s_lshl_b32 s57, s60, 1\nv_lshl_add_u32 {x('p3')}, {x('g')}, 2, s57\nv_xor_b32 {x('p3')}, {x('p3')}, {x('t0')}\nv_lshlrev_b32 {x('p3')}, 4, {x('p3')}\nv_lshl_add_u32 {x('p3')}, {x('p0')}, 8, {x('p3')}")
    A(f"s_mul_i32 s57, s71, {AS}\ns_add_u32 s57, s57, {XP}\nv_lshl_add_u32 {x('p3')}, {x('t4')}, 2, {x('p3')}\nv_add_u32 {x('pW')}, s57, {x('p3')}")
    A(f"v_lshlrev_b32 {x('mR')}, 5, {x('g')}\nv_add_u32 {x('mR')}, {XM}, {x('mR')}\ns_lshl_b32 s57, s{sW}, 3\nv_add_u32 {x('mW')}, s57, {x('mR')}")
    A(f"s_add_u32 s58, s57, {XR}\nv_mov_b32 {x('lW')}, s58\ns_add_u32 s58, s57, {XV}\nv_mov_b32 {x('vW')}, s58")
    A(f"v_lshrrev_b32 {x('t0')}, 2, {x('p2')}\nv_add_u32 {x('lR')}, {XR}, {x('t0')}\nv_sub_u32 {x('lR2')}, {XR+16}, {x('t0')}")
    A(f"s_mul_i32 s57, s{sW}, {FS}\ns_add_u32 s57, s57, {XF}\nv_lshl_add_u32 {x('xFw')}, {x('t2')}, 1, s57")
    A(f"s_lshl_b32 s57, s60, 8\ns_add_u32 s57, s57, {XF}\nv_lshl_add_u32 {x('t0')}, {x('p2')}, 1, s57\nv_lshl_add_u32 {x('t0')}, {x('p0')}, 5, {x('t0')}\nv_lshl_add_u32 {x('xFr')}, {x('t4')}, 2, {x('t0')}")
    A(f"v_mul_u32_u24 {x('t0')}, 4104, {x('g')}\nv_lshl_add_u32 {x('t0')}, {x('p0')}, 9, {x('t0')}\nv_add_u32 {x('t0')}, {BUFW}, {x('t0')}")
    A(f"s_lshl_b32 s57, s{sW}, 3\nv_add_u32 {x('p3')}, s57, {x('t4')}\nv_lshlrev_b32 {x('dS')}, 2, {x('p0')}\nv_xor_b32 {x('p3')}, {x('p3')}, {x('dS')}\nv_lshl_add_u32 {x('tT0')}, {x('p3')}, 4, {x('t0')}")
    A(f"v_xor_b32 {x('p3')}, 4, {x('p3')}\nv_lshl_add_u32 {x('tT1')}, {x('p3')}, 4, {x('t0')}")
    A(f"v_mul_u32_u24 {x('t0')}, 1032, {x('g')}\nv_lshrrev_b32 {x('dS')}, 1, {x('p0')}\nv_mul_u32_u24 {x('dS')}, {VS}, {x('dS')}\nv_add_u32 {x('t0')}, {x('t0')}, {x('dS')}\nv_and_b32 {x('t3')}, 1, {x('p0')}")
    A(f"v_lshl_add_u32 {x('t0')}, {x('t3')}, 8, {x('t0')}\ns_lshl_b32 s57, s{sW}, 2\nv_add_u32 {x('p3')}, s57, {x('t4')}\nv_lshlrev_b32 {x('dS')}, 2, {x('t3')}\nv_xor_b32 {x('p3')}, {x('p3')}, {x('dS')}")
    A(f"v_lshl_add_u32 {x('t0')}, {x('p3')}, 4, {x('t0')}\nv_add_u32 {x('tV')}, {BUFV}, {x('t0')}")
    A(f"v_xor_b32 {x('t0')}, {x('g')}, {x('n')}\nv_lshlrev_b32 {x('t0')}, 4, {x('t0')}\nv_lshl_add_u32 {x('t0')}, {x('n')}, 9, {x('t0')}\ns_add_u32 s57, s{sWk}, {BUFK}\nv_add_u32 {x('tK')}, s57, {x('t0')}")
    A(f"v_lshlrev_b32 {x('t3')}, 4, {x('t3')}\nv_mov_b32 {x('t1')}, 0xffff\nv_lshlrev_b32 {x('t1')}, {x('t3')}, {x('t1')}")
    for e in range(4): A(f"v_cmp_eq_u32 vcc, {e}, {x('t4')}\nv_cndmask_b32 {x('Msk',e)}, 0, {x('t1')}, vcc\nv_and_b32 {x('Sel',e)}, 0x3f803f80, {x('Msk',e)}")
    A(f"v_cmp_gt_u32 vcc, 8, {x('n')}")
    for e in range(4): A(f"v_cndmask_b32 {x('SelL',e)}, 0, {x('Sel',e)}, vcc\nv_sub_u32 {x('SelH',e)}, {x('Sel',e)}, {x('SelL',e)}")
    for e in range(8): A(f"v_mov_b32 {x('One',e)}, 0x3f803f80")
    A(f"v_mov_b32 {x('idx')}, 0x44444444\nv_mov_b32 {x('t0')}, 0xeeeeeeee\nv_cndmask_b32 {x('idx')}, {x('idx')}, {x('t0')}, {sp(mCC)}")
    A(f"v_and_b32 {x('t0')}, 13, {x('n')}\nv_cmp_eq_u32 vcc, 8, {x('t0')}")
    for e in range(4): A(f"v_cndmask_b32 {x('Tg',e)}, 0, {x('One')}, vcc")
    A(f"ds_write_b128 {x('rA')}, {R('Tg')} offset:{XQ}\nds_write_b128 {x('rA')}, {R('Tg')} offset:{XQ+AS}")
    hook[0]=A_
    def setup(n):
        while late and n>0: t=late.pop(0); A(t); n-=t.count('\n')+1
    def retry(name,e,loc=False):
        A(f"{name}:\ns_sleep {o['slpl'] if loc else o['slp']}\ns_add_u32 s{sTo}, s{sTo}, 1")
        if diag: A(f"s_add_u32 s{sRt}, s{sRt}, {1<<(8*e)}")
        A(f"s_cmp_lt_u32 s{sTo}, {TMO}\ns_cbranch_scc0 L_fail")
    def loadF(): A(f"global_load_dwordx4 {R('fF')}, {x('aF')}, s[28:29] sc1"); vm("F")
    ALLF=role and "D" not in o["b1"]
    def checkF(wait=True):
        waitfor("F")
        if wait:
            A(f"{lab('fc')}:\nv_xor_b32 {x('t0')}, s{sTag}, {x('fF')}\nv_and_b32 {x('t1')}, 0xfffffff, {x('t0')}"+("" if ALLF else "\ns_mov_b32 exec_hi, 0")+f"\nv_cmp_ne_u32 vcc, 0, {x('t1')}\ns_mov_b32 exec_hi, -1\ns_cbranch_vccnz {lab('fr')}")
            OOL(); retry(lab('fr'),3); A(f"global_load_dwordx4 {R('fF')}, {x('aF')}, s[28:29] sc1\ns_waitcnt vmcnt(0)\ns_branch {lab('fc')}"); MAIN()
        else: A(f"v_xor_b32 {x('t0')}, s{sTag}, {x('fF')}")
        A(f"v_cmp_ne_u32 s[60:61], s{sX28}, {x('t0')}\nv_cmp_eq_u32 vcc, s{sTag}, {x('fF',2)}\nv_cndmask_b32 {x('t1')}, 0, {x('fF',3)}, vcc")
        A(f"v_cmp_lt_i32 s[58:59], 0, {x('t1')}\nv_cmp_gt_i32 vcc, 0, {x('t1')}\nv_mov_b32 {x('pa')}, s60")
        A(f"s_nop 1\ns_bcnt1_i32_b64 s58, s[58:59]\ns_bcnt1_i32_b64 s59, vcc\ns_sub_u32 s58, s58, s59\nv_mov_b32 {x('pa',1)}, s58\nds_write_b64 {x('vW')}, {R('pa',2)}")
        m0v[0]=None
    YR=f"v_mov_b32 {x('t2')}, {XV}\nds_read_b128 {R('F0')}, {x('t2')}\nds_read_b128 {R('F1')}, {x('t2')} offset:16"
    YC=[f"v_or3_b32 {x('t2')}, {x('F0')}, {x('F0',2)}, {x('F1')}\nv_add3_u32 {x('t3')}, {x('F0',1)}, {x('F0',3)}, {x('F1',1)}",
        f"v_or_b32 {x('t2')}, {x('t2')}, {x('F1',2)}\nv_add_u32 {x('t3')}, {x('t3')}, {x('F1',3)}",
        f"v_readfirstlane_b32 s{sMode}, {x('t2')}\nv_readfirstlane_b32 s72, {x('t3')}"]
    def near():
        if diag: A(f"s_and_b32 s57, s72, 0xffff\ns_cmp_lg_u32 s{sMode}, 0\ns_cselect_b32 s58, 0x10000, 0\ns_or_b32 s57, s57, s58\nv_writelane_b32 {x('stamp')}, s57, 4")
        A(f"s_cmp_gt_i32 s72, 0\ns_cselect_b32 s57, 1, 0\ns_xor_b32 s57, s57, s{sSide}\ns_lshl_b32 s57, s57, 13\ns_add_u32 s{sN}, s28, s57\ns_addc_u32 s{sN+1}, s29, 0")
    def marker():
        A(f"s_cmp_lg_u32 s{sMode}, 0\ns_cbranch_scc1 L_post_{X}1")
        main[0]=post; ool[0]=posto; cur[0]=post; sfx[0]=f"{X}{mode}"; A(f"L_post_{X}{mode}:"); m0v[0]=None
    def ld(sim,tag,w,dst,addr,base,off=0):
        A(f"global_load_dwordx{w} {R(dst,w)}, {x(addr)}, {sp(base)}"+(f" offset:{off}" if off else "")+" sc1")
        if sim: vm(tag)
    def doorbell(l):
        A(f"s_add_u32 s{sExp}, s{sTag}, {l}\ns_cmp_eq_u32 s{sW}, 0\ns_cbranch_scc0 {lab('db%d'%l)}\ns_mov_b64 exec, 15")
        for k in range(4): A(f"global_load_dword {x('p%d'%k)}, {x('aDc')}, {sp(sN)} offset:{128*k} sc1\ns_sleep {o['dsl']}")
        A(f"{lab('dp%d'%l)}:")
        for k in range(4):
            A(f"s_waitcnt vmcnt(3)\nv_cmp_ne_u32 vcc, s{sExp}, {x('p%d'%k)}\ns_cbranch_vccz {lab('dd%d'%l)}")
            A(f"global_load_dword {x('p%d'%k)}, {x('aDc')}, {sp(sN)} offset:{128*k} sc1\ns_sleep {o['dsl']}")
        A(f"s_add_u32 s{sTo}, s{sTo}, 1\ns_cmp_lt_u32 s{sTo}, {TMO}\ns_cbranch_scc1 {lab('dp%d'%l)}\ns_branch L_fail")
        A(f"{lab('dd%d'%l)}:\ns_mov_b64 exec, -1\n{lab('db%d'%l)}:\ns_barrier"); nbar[0]+=1
        stamp(12); m0v[0]=None
    def ring(l): A(f"s_mov_b64 exec, 3\nglobal_store_dword {x('aDp')}, {x('dbv')}, s[28:29] sc1\ns_mov_b64 exec, -1"); vm("ring")
    def swapadd(a,b): A(f"v_permlane16_swap_b32 {x(a)}, {x(b)}\nv_add_f32 {x(a)}, {x(a)}, {x(b)}")
    rs=lambda d,T:[f"v_pk_add_f32 {R(d,2)}, {R(T,2)}, {R(T,2,2)}",f"v_add_f32 {x(d)}, {x(d)}, {x(d,1)}"]
    WO=[(0,0),(1,0),(0,1),(1,1),(2,0),(3,0),(2,1),(3,1)]
    def wmm(base,ex,w1=0):
        for k,(t,s_) in enumerate(WO):
            if k==2: A(f"s_waitcnt lgkmcnt({w1})")
            smf(f"T{t}",f"A{s_}",ar(base+(t*2+s_)*8,8))
            if ex[k]: A(ex[k])
            if k in (1,3,5): slot()
    def gE2(sim,a,b0,b1):
        for j in range(4): ld(sim,f"g{j}",4,f"G{j}",a,b0 if j<2 else b1,1024*j if b0==b1 else 1024*(j&1))
    def cE2():
        for j in range(4):
            waitfor(f"g{j}"); mf(R('D'),R('SelL' if j<2 else 'SelH'),R(f"G{j}"),R('D') if j else "0"); chk(q4(f"G{j}"),j==0)
    def cspub():
        assert ("q",3) in moved
        zero("T0","T1","T2","T3")
        A(f"ds_read_b128 {R('A0')}, {x('rA')} offset:{XQ}\nds_read_b128 {R('A1')}, {x('rA')} offset:{XQ+AS}\ns_waitcnt lgkmcnt(0)")
        wmm(0,[""]*8)
        for d,T in zip(("tA","tB","tC","tD"),("T0","T1","T2","T3")): A("\n".join(rs(d,T)))
        swapadd("tA","tB"); swapadd("tC","tD")
        A(f"v_cvt_pk_bf16_f32 {x('t0')}, {x('tA')}, {x('tC')}\ns_mov_b32 exec_lo, 0\nglobal_store_dword {x('aP2')}, {x('t0')}, {sp(sLb[0])} {LOC()}\ns_mov_b32 exec_lo, -1"); vm("P")
    kg=[0]; early=[0]
    def kcs0(): gE2(True,'aC2',sLb[0],sLb[1]); kg[0]=1
    def kcs():
        assert ("k",0) in moved
        if not kg[0]: kcs0()
        zero("U0","U1")
        A(f"{lab('cc')}:"); cE2(); fin(lab('cr'))
        OOL(); retry(lab('cr'),3); gE2(False,'aC2',sLb[0],sLb[1]); A(f"s_waitcnt vmcnt(0)\ns_branch {lab('cc')}"); MAIN()
        cvtD(); wrA('xWA'); bar()
        A(f"ds_read_b128 {R('A0')}, {x('rA')} offset:{XA}\nds_read_b128 {R('A1')}, {x('rA')} offset:{XA+AS}\ns_waitcnt lgkmcnt(0)")
        for s_ in range(2):
            for t in range(2): smf(f"U{t}",f"A{s_}",ar(64+(t*2+s_)*8,8))
        for t in range(2): A(f"v_pk_add_f32 {R('kc%d'%t,2)}, {R('U%d'%t,2)}, {R('U%d'%t,2,2)}")
        lane(16); m0v[0]=None
    def prog(p,gather=None,st=None,l=None):
        for tk in p.split("_"):
            if not tk: continue
            c,a=tk[0],tk[1:]
            if c not in "ULPWZNSTHO": assert not late,tk
            if c=="L": stream(int(a))
            elif c=="P":
                n,D=map(int,a.split("."))
                while ns[0]<n:
                    if ns[0]>=D: wload(ns[0]-D)
                    stream(ns[0]+1)
            elif c=="W": wload(int(a))
            elif c=="A": waitfor("P")
            elif c=="S": A(f"s_sleep {a}")
            elif c=="M": move(int(a))
            elif c=="K": kreads()
            elif c=="B": bar()
            elif c=="F": loadF()
            elif c=="C": checkF()
            elif c=="U": setup(int(a or 9999))
            elif c=="x": kcs0()
            elif c=="V": checkF(False)
            elif c=="N": reset(int(a))
            elif c=="E": lnorm()
            elif c=="Z": flag()
            elif c=="O": probe()
            elif c=="H": assert acked("R") and int(a) in vm2; A(f"global_load_dword {x('chk')}, {x('aWm')}, {sp(sLb[int(a)])} sc1"); vm("H")
            elif c=="Y": A(YR+"\ns_waitcnt lgkmcnt(0)\n"+"\n".join(YC)); near()
            elif c=="y":
                marker()
                if mode and early[0]: A(f"s_mov_b32 exec_hi, 0\nglobal_store_dword {x('aP2')}, {x('t5')}, {sp(sLb[0])} sc1\ns_mov_b32 exec_hi, -1"); vm("P")
            elif c=="Q": cspub()
            elif c=="X": kcs()
            elif c=="D": doorbell(l)
            elif c=="R": ring(l)
            elif c=="T": lane(int(a))
            elif c=="G": stamp(st); gather(True)
            else: raise Exception(tk)
    def edge(e,p,gather,check,kind,st,l,prep=None,loc=False):
        m0v[0]=None
        if "_J" in p:
            p1,p2=p.split("_J"); assert not set(p2)&set("CXDGF")
            prog(p1,gather,st,l)
            if prep: prep()
            check(lab('j%d'%e))
            snap=lambda:(list(Q),done[0],ns[0],set(moved),nbar[0],wfree[0])
            def rest(s_): Q[:]=s_[0]; done[0]=s_[1]; ns[0]=s_[2]; moved.clear(); moved.update(s_[3]); nbar[0]=s_[4]; wfree[0]=s_[5]; m0v[0]=None
            s0=snap(); m0v[0]=None; prog(p2,gather,st,l); A(f"{lab('k%d'%e)}:"); s1=snap()
            rest(s0); OOL(); A(f"{lab('j%d'%e)}:")
            if diag: A(f"s_add_u32 s{sRt}, s{sRt}, {1<<(8*kind)}")
            gather(True); prog(p2,gather,st,l)
            A(f"{lab('c%d'%e)}:"); check(lab('r%d'%e)); A(f"s_branch {lab('k%d'%e)}")
            retry(lab('r%d'%e),kind,loc and not mode); gather(False); A(f"s_waitcnt vmcnt(0)\ns_branch {lab('c%d'%e)}"); MAIN()
            rest(s1); return
        prog(p,gather,st,l)
        if prep: prep()
        A(f"{lab('c%d'%e)}:"); check(lab('r%d'%e))
        OOL(); retry(lab('r%d'%e),kind,loc and not mode); gather(False); A(f"s_waitcnt vmcnt(0)\ns_branch {lab('c%d'%e)}"); MAIN()
        m0v[0]=None
    def E1(e,p,l,prep=None):
        def g(sim): ld(sim,"g0",4,'G0','aG1',sN); ld(sim,"g1",4,'G1','aG1',sN,1024)
        def c(fail):
            waitfor("g0"); mf(R('D'),R('Sel'),R('G0'),"0"); chk(q4('G0')); waitfor("g1"); mf(R('D'),R('Sel'),R('G1'),R('D')); chk(q4('G1'),False); fin(fail)
        edge(e,p,g,c,0,0,l,prep)
    CQ=hex(f2u(128**-0.5*1.4426950408889634))
    def layer(l,pe1,pe2,pe3,spr):
        j=l>>1; B=sLb[j]; curl[0]=l
        if l: E1(3*l-1,pe1,l,lambda:zero("T0","T1","T2","T3"))
        if spr: tgt[0]=spr[0]
        stamp(1)
        cvtD(); wrA('xWQ')
        slot(); bar()
        if l: A(f"ds_read_b128 {R('Ag')}, {x('rG')} offset:{XQ}")
        A(f"ds_read_b128 {R('A0')}, {x('rA')} offset:{XQ}\nds_read_b128 {R('A1')}, {x('rA')} offset:{XQ+AS}")
        slot()
        if l:
            A("s_waitcnt lgkmcnt(2)"); mf(R('Tg'),R('Ag'),R('Ag'),"0")
            ex=["","",
                f"v_add_f32 {x('st')}, {x('Tg')}, {x('Tg',1)}\nv_add_f32 {x('st',1)}, {x('Tg',2)}, {x('Tg',3)}",
                f"v_cndmask_b32 {x('st')}, {x('st')}, {x('st',1)}, {sp(mCC)}",
                f"v_add_f32_dpp {x('st')}, {x('st')}, {x('st')} quad_perm:[1,0,3,2] {DP}",
                f"v_add_f32_dpp {x('st')}, {x('st')}, {x('st')} quad_perm:[2,3,0,1] {DP}",
                f"v_add_f32_dpp {x('st')}, {x('st')}, {x('st')} row_half_mirror {DP}\n"+rs('tA','T0')[0],
                rs('tB','T1')[0]+"\n"+rs('tA','T0')[1]]
        else: ex=[""]*6+[rs('tA','T0')[0],rs('tB','T1')[0]+"\n"+rs('tA','T0')[1]]
        A("s_waitcnt lgkmcnt(1)")
        wmm(0,ex)
        A(rs('tB','T1')[1])
        if l: A(f"s_mov_b64 exec, {sp(mS2)}\nglobal_store_dword {x('aPS2')}, {x('st')}, {sp(B)} {LOC()}\ns_mov_b64 exec, -1"); vm("P")
        swapadd("tA","tB")
        A(rs('tC','T2')[0]+"\n"+rs('tD','T3')[0]+"\n"+rs('tC','T2')[1]+"\n"+rs('tD','T3')[1])
        A("s_mov_b32 exec_hi, 0")
        swapadd("tC","tD")
        if l==0 and "y" in pe2:
            early[0]=1; A(f"v_cvt_pk_bf16_f32 {x('t5')}, {x('tA')}, {x('tC')}\nglobal_store_dword {x('aP2')}, {x('t5')}, {sp(B)}"); vm("P")
        else: A(f"v_cvt_pk_bf16_f32 {x('t0')}, {x('tA')}, {x('tC')}\nglobal_store_dword {x('aP2')}, {x('t0')}, {sp(B)} {LOC()}"); vm("P")
        A("s_mov_b32 exec_hi, -1")
        stamp(2)
        A(f"ds_write_b128 {x('xFw')}, {R('D' if l else 'X4')}")
        A(f"s_add_u32 s57, s{sTag}, {l+1}\nv_mov_b32 {x('dbv')}, s57")
        def g(sim):
            gE2(sim,'aG2',B,B)
            if l: ld(sim,"g4",4,'S','aS2',B)
        def c(fail):
            cE2()
            if l: waitfor("g4"); chk(q4('S')[:3],False)
            fin(fail)
        def prep():
            zero("T0","T1","T2","T3","L0","L1")
            if l: A(f"v_mov_b64 {R('U0',2,2)}, 0\nv_mov_b64 {R('U1',2,2)}, 0")
            else: zero("U0","U1")
        edge(3*l,pe2,g,c,1,3,l,prep,l>0 or "y" in pe2)
        assert ("k",0) in moved
        if spr: tgt[0]=spr[1]
        stamp(4)
        cvtD(); wrA('xWA')
        if l:
            A(f"v_add_f32 {x('st')}, {x('S')}, {x('S',1)}\nv_add_f32_dpp {x('st',1)}, {x('S',2)}, {x('S',2)} row_ror:1 {DP}")
            A(f"v_add_f32_dpp {x('st')}, {x('st')}, {x('st')} row_ror:1 {DP}\nv_add_f32_dpp {x('st',1)}, {x('st',1)}, {x('st',1)} row_ror:2 {DP}")
        vlate=("v",0) not in moved
        if vlate and o["vpos"]==1: wload(31)
        slot(); bar()
        A(f"ds_read_b128 {R('A0')}, {x('rA')} offset:{XA}\nds_read_b128 {R('A1')}, {x('rA')} offset:{XA+AS}")
        nl=0
        ym=l==0 and main[0] is pre
        if ym: A(YR); nl+=2
        if vlate and o["vpos"]==1: trV(); nl+=16
        stamp(5)
        if l:
            A(f"v_add_f32_dpp {x('st')}, {x('st')}, {x('st')} row_ror:2 {DP}\nv_add_f32_dpp {x('st',1)}, {x('st',1)}, {x('st',1)} row_ror:4 {DP}")
            A(f"v_add_f32_dpp {x('st')}, {x('st')}, {x('st')} row_ror:4 {DP}\nv_add_f32_dpp {x('st',1)}, {x('st',1)}, {x('st',1)} row_ror:8 {DP}")
            A(f"v_add_f32_dpp {x('st')}, {x('st')}, {x('st')} row_ror:8 {DP}\nv_mul_f32 {x('ab',1)}, {hex(f2u(-1/1024))}, {x('st',1)}")
            for t in range(2): A(f"v_pk_mul_f32 {R('U%d'%t,2)}, {R('kc%d'%t,2)}, {R('ab',2)} op_sel:[0,1] op_sel_hi:[1,1]")
            ex=[f"v_mul_f32 {x('t0')}, {x('ab',1)}, {x('ab',1)}\nv_mul_f32 {x('t1')}, {hex(f2u(1/1024))}, {x('st')}",
                f"v_sub_f32 {x('t1')}, {x('t1')}, {x('t0')}\nv_max_f32 {x('t1')}, 0, {x('t1')}",
                f"v_add_f32 {x('t1')}, {hex(f2u(1e-5))}, {x('t1')}\nv_rsq_f32 {x('t1')}, {x('t1')}",
                f"v_mul_f32 {x('ab')}, {CQ}, {x('t1')}"]
        elif ym: ex=["",f"s_waitcnt lgkmcnt({min(nl-2,15)})\n"+YC[0],YC[1],YC[2]]
        else: ex=[""]*4
        slot()
        for s_ in range(2):
            A(f"s_waitcnt lgkmcnt({min(nl+1-s_,15)})")
            for t in range(2):
                smf(f"U{t}",f"A{s_}",ar(64+(t*2+s_)*8,8))
                if ex[2*s_+t]: A(ex[2*s_+t])
            slot()
        A(f"v_pk_add_f32 {R('tA',2)}, {R('U0',2)}, {R('U0',2,2)}\nv_pk_add_f32 {R('tB',2)}, {R('U1',2)}, {R('U1',2,2)}")
        A(f"v_max_f32 {x('mx')}, {x('tA')}, {x('tB')}\nv_max_f32 {x('mx',1)}, {x('tA',1)}, {x('tB',1)}")
        for k in (1,2,4,8): A(f"v_max_f32_dpp {x('mx')}, {x('mx')}, {x('mx')} row_ror:{k} {DP}\nv_max_f32_dpp {x('mx',1)}, {x('mx',1)}, {x('mx',1)} row_ror:{k} {DP}")
        A(f"v_pk_mul_f32 {R('mx',2)}, {R('mx',2)}, {R('ab',2)} op_sel_hi:[1,0]\nv_ceil_f32 {x('mx')}, {x('mx')}\nv_ceil_f32 {x('mx',1)}, {x('mx',1)}")
        for T in ("tA","tB"): A(f"v_pk_fma_f32 {R(T,2)}, {R(T,2)}, {R('ab',2)}, {R('mx',2)} op_sel_hi:[1,0,1] neg_lo:[0,0,1] neg_hi:[0,0,1]")
        A(f"v_exp_f32 {x('tA')}, {x('tA')}\nv_exp_f32 {x('tB')}, {x('tB')}\nv_exp_f32 {x('tA',1)}, {x('tA',1)}\nv_exp_f32 {x('tB',1)}, {x('tB',1)}")
        A(f"v_cvt_pk_bf16_f32 {x('t0')}, {x('tA')}, {x('tB')}\nds_write_b64 {x('mW')}, {R('mx',2)}\nv_cvt_pk_bf16_f32 {x('t1')}, {x('tA',1)}, {x('tB',1)}")
        A(f"ds_write2_b32 {x('pW')}, {x('t0')}, {x('t1')} offset0:0 offset1:4")
        vlate=("v",0) not in moved
        if vlate: wload(31)
        if ym: marker()
        slot(); bar()
        A(f"ds_read_b128 {R('A0')}, {x('rP')} offset:{XP}\nds_read_b128 {R('W0')}, {x('mR')}\nds_read_b128 {R('W1')}, {x('mR')} offset:16\nds_read_b128 {R('A1')}, {x('rP')} offset:{XP+AS}")
        if vlate: trV()
        stamp(6); slot()
        mxs=[f"v_max3_f32 {x('P4',h)}, {x('W0',h)}, {x('W0',2+h)}, {x('W1',h)}" for h in (0,1)]+[f"v_max_f32 {x('P4',h)}, {x('P4',h)}, {x('W1',2+h)}" for h in (0,1)]
        sub=[f"v_pk_add_f32 {R(W,2,h)}, {R(W,2,h)}, {R('P4',2)} neg_lo:[0,1] neg_hi:[0,1]" for W in ("W0","W1") for h in (0,2)]
        ex_=[f"v_exp_f32 {x(W,h)}, {x(W,h)}" for W in ("W0","W1") for h in range(4)]
        if vlate:
            A("s_waitcnt lgkmcnt(15)"); A("\n".join(mxs+sub+ex_)); smf("L0","A0",R('One',8)); smf("L1","A1",R('One',8)); A("s_waitcnt lgkmcnt(8)")
            smf("T0","A0",ar(96,8)); smf("T1","A0",ar(112,8)); A("s_waitcnt lgkmcnt(0)"); smf("T2","A1",ar(104,8)); smf("T3","A1",ar(120,8))
        else:
            A("s_waitcnt lgkmcnt(3)"); smf("T0","A0",ar(96,8)); A("s_waitcnt lgkmcnt(1)\n"+mxs[0]+"\n"+mxs[1])
            smf("T1","A0",ar(112,8)); A(mxs[2]+"\n"+mxs[3]+"\ns_waitcnt lgkmcnt(0)")
            smf("T2","A1",ar(104,8)); A(sub[0]+"\n"+sub[1])
            smf("T3","A1",ar(120,8)); A(sub[2]+"\n"+sub[3])
            smf("L0","A0",R('One',8)); A(ex_[0]+"\n"+ex_[1])
            smf("L1","A1",R('One',8)); A("\n".join(ex_[2:]))
        def comb(d,Ta,Tb,do=0):
            return [f"v_pk_mul_f32 {R(d,2,do)}, {R(Ta,2)}, {R('W0',2)}",f"v_pk_fma_f32 {R(d,2,do)}, {R(Ta,2,2)}, {R('W0',2,2)}, {R(d,2,do)}",
                    f"v_pk_fma_f32 {R(d,2,do)}, {R(Tb,2)}, {R('W1',2)}, {R(d,2,do)}",f"v_pk_fma_f32 {R(d,2,do)}, {R(Tb,2,2)}, {R('W1',2,2)}, {R(d,2,do)}"]
        for a_,b_ in zip(comb('tA','T0','T2'),comb('tB','T1','T3')): A(a_+"\n"+b_)
        A(f"v_cvt_pk_bf16_f32 {x('t0')}, {x('tA')}, {x('tB')}\nv_cvt_pk_bf16_f32 {x('t1')}, {x('tA',1)}, {x('tB',1)}")
        cl=comb('P4','L0','L1',2)
        assert acked("R") and len(vm2)==2
        A(f"global_store_dword {x('aP3')}, {x('t0')}, {sp(B)} {LOC()}\n{cl[0]}\n{cl[1]}\nglobal_store_dword {x('aP3')}, {x('t1')}, {sp(B)} offset:256 {LOC()}\n{cl[2]}\n{cl[3]}"); vm("P"); vm("P")
        A(f"s_mov_b64 exec, {sp(mS3)}\nglobal_store_dwordx4 {x('aPS3')}, {R('P4')}, {sp(B)} {LOC()}\ns_mov_b64 exec, -1"); vm("P")
        stamp(7)
        if l<3 and RING[l]==0: ring(l)
        def resid():
            A(f"v_add_u32 {x('t2')}, {2*FS}, {x('xFr')}")
            for k,(a_,F,h) in enumerate((('xFr','F0',0),('xFr','F0',2),('t2','F1',0),('t2','F1',2))): A(f"ds_read2_b32 {R(F,2,h)}, {x(a_)} offset0:{(k&1)*FS//4} offset1:{(k&1)*FS//4+4}")
            zero("T0","T1","T2","T3")
            A(f"s_waitcnt lgkmcnt(0)\nv_pk_add_f32 {R('F0',2)}, {R('F0',2)}, {R('F0',2,2)}\nv_pk_add_f32 {R('F1',2)}, {R('F1',2)}, {R('F1',2,2)}\nv_pk_add_f32 {R('F0',2)}, {R('F0',2)}, {R('F1',2)}")
            A(f"v_cvt_pk_bf16_f32 {x('t2')}, {x('F0')}, {x('F0',1)}\nv_lshlrev_b32 {x('xr')}, 16, {x('t2')}\nv_and_b32 {x('xr',1)}, 0xffff0000, {x('t2')}")
            A(f"v_mul_f32 {x('xr')}, s{sXs}, {x('xr')}\nv_mul_f32 {x('xr',1)}, s{sXs}, {x('xr',1)}")
        def g(sim):
            ld(sim,"g2",3,'S','aS3',B); ld(sim,"g0",4,'G0','aG3',B); ld(sim,"g1",4,'G1','aG3',B,2048)
            if sim and l<3 and RING[l]==1: ring(l)
        def c(fail):
            waitfor("g2")
            A(f"v_max_f32_dpp {x('st')}, {x('S')}, {x('S')} quad_perm:[1,0,3,2] {DP}")
            A(f"v_max_u32 {x('chk')}, {x('S')}, {x('S',2)}")
            A(f"v_max_f32_dpp {x('st')}, {x('st')}, {x('st')} quad_perm:[2,3,0,1] {DP}")
            A(f"v_max_f32_dpp {x('st')}, {x('st')}, {x('st')} row_half_mirror {DP}")
            A(f"v_subrev_f32_dpp {x('t0')}, {x('st')}, {x('S')} row_newbcast:0 {DP}")
            A(f"v_exp_f32 {x('t0')}, {x('t0')}")
            waitfor("g0"); chk(q4('G0'),False)
            A(f"v_perm_b32 {x('t1')}, {x('t0')}, {x('t0')}, s{sPerm}\nv_mul_f32 {x('st',1)}, {x('t0')}, {x('S',2)}")
            for e in range(4): A(f"v_and_b32_dpp {x('A0',e)}, {x('t1')}, {x('Msk',e)} row_newbcast:8 {DP}")
            for e in range(2): A(f"v_and_b32_dpp {x('A1',e)}, {x('t1')}, {x('Msk',e)} row_newbcast:9 {DP}")
            mf(R('D'),R('A0'),R('G0'),"0")
            for e in range(2,4): A(f"v_and_b32_dpp {x('A1',e)}, {x('t1')}, {x('Msk',e)} row_newbcast:9 {DP}")
            A(f"v_add_f32_dpp {x('st',1)}, {x('st',1)}, {x('st',1)} quad_perm:[1,0,3,2] {DP}")
            waitfor("g1")
            mf(R('D'),R('A1'),R('G1'),R('D'))
            chk(q4('G1'),False)
            A(f"v_add_f32_dpp {x('st',1)}, {x('st',1)}, {x('st',1)} quad_perm:[2,3,0,1] {DP}")
            A(f"v_cmp_eq_u32 vcc, -1, {x('chk')}")
            A(f"v_add_f32_dpp {x('st',1)}, {x('st',1)}, {x('st',1)} row_half_mirror {DP}")
            A(f"s_cbranch_vccnz {fail}")
        if o.get("rpos",0)==0: resid()
        edge(3*l+1,pe3,g,c,2,8,l,resid if o.get("rpos",0) else None,True)
        assert ("o",3) in moved
        stamp(9)
        A(f"s_mov_b64 exec, 1\nds_write_b64 {x('lW')}, {R('st',2)}")
        if l<3 and RING[l]==2: A(f"s_mov_b64 exec, 3\nglobal_store_dword {x('aDp')}, {x('dbv')}, s[28:29] sc1"); vm("ring")
        A("s_mov_b64 exec, -1")
        cvtD(); wrA('xWO')
        bar()
        A(f"ds_read_b128 {R('A0')}, {x('rA')} offset:{XO}\nds_read_b128 {R('F0')}, {x('lR')}\nds_read_b128 {R('F1')}, {x('lR2')}\nds_read_b128 {R('A1')}, {x('rA')} offset:{XO+AS}")
        stamp(10)
        if l<3 and RING[l]==3: ring(l)
        Ms=[x('F0'),x('F0',2),x('F1'),x('F1',2)]; Ls=[x('F0',1),x('F0',3),x('F1',1),x('F1',3)]
        pa=lambda d,T:f"v_pk_add_f32 {R(d,2)}, {R(T,2)}, {R(T,2,2)}"
        mw=lambda d:[f"v_mul_f32 {x(d)}, {x(d)}, {x('W0')}",f"v_fma_f32 {x(d)}, {x(d,1)}, {x('W0',1)}, {x(d)}"]
        ex=[f"s_waitcnt lgkmcnt(1)\nv_max3_f32 {x('t0')}, {Ms[0]}, {Ms[1]}, {Ms[2]}",
            f"v_max_f32 {x('t0')}, {x('t0')}, {Ms[3]}\nv_sub_f32 {x('W0')}, {Ms[0]}, {x('t0')}",
            f"v_sub_f32 {x('W0',1)}, {Ms[1]}, {x('t0')}\nv_exp_f32 {x('W0')}, {x('W0')}",
            f"v_sub_f32 {x('W0',2)}, {Ms[2]}, {x('t0')}\nv_exp_f32 {x('W0',1)}, {x('W0',1)}",
            f"v_sub_f32 {x('W0',3)}, {Ms[3]}, {x('t0')}\nv_exp_f32 {x('W0',2)}, {x('W0',2)}",
            f"v_mul_f32 {x('t1')}, {x('W0')}, {Ls[0]}\nv_exp_f32 {x('W0',3)}, {x('W0',3)}",
            f"v_fma_f32 {x('t1')}, {x('W0',1)}, {Ls[1]}, {x('t1')}\n"+pa('tA','T0')+"\n"+pa('tB','T1'),
            f"v_fma_f32 {x('t1')}, {x('W0',2)}, {Ls[2]}, {x('t1')}\n"+mw('tA')[0]+"\n"+mw('tB')[0]]
        A("s_waitcnt lgkmcnt(3)")
        wmm(128,ex)
        A(f"v_fma_f32 {x('t1')}, {x('W0',3)}, {Ls[3]}, {x('t1')}\n"+mw('tA')[1]+"\n"+mw('tB')[1]+f"\nv_rcp_f32 {x('t1')}, {x('t1')}")
        swapadd("tA","tB")
        A(pa('tC','T2')+"\n"+pa('tD','T3')+"\n"+mw('tC')[0]+"\n"+mw('tD')[0]+"\n"+mw('tC')[1]+"\n"+mw('tD')[1])
        A(f"v_fma_f32 {x('tA')}, {x('tA')}, {x('t1')}, {x('xr')}")
        swapadd("tC","tD")
        A(f"v_fma_f32 {x('tC')}, {x('tC')}, {x('t1')}, {x('xr',1)}\nv_cvt_pk_bf16_f32 {x('t0')}, {x('tA')}, {x('tC')}\nglobal_store_dword {x('aP1')}, {x('t0')}, {sp(B)} sc1"); vm("P")
        stamp(11)
        if l<3 and RING[l]==4: ring(l)
        flush(l)
    def lnorm():
        waitfor("x")
        H=lambda k:x('G0',k) if k<4 else x('G1',k-4)
        A(f"v_mov_b64 {R('st',2)}, 0")
        for k in range(8): A(f"v_dot2_f32_bf16 {x('st')}, {H(k)}, {H(k)}, {x('st')}\nv_dot2_f32_bf16 {x('st',1)}, {H(k)}, {x('One')}, {x('st',1)}")
        A(f"v_lshlrev_b32 {x('X4')}, 16, {x('c01')}\nv_and_b32 {x('X4',1)}, 0xffff0000, {x('c01')}\nv_lshlrev_b32 {x('X4',2)}, 16, {x('c01',1)}\nv_and_b32 {x('X4',3)}, 0xffff0000, {x('c01',1)}")
        for k in (1,2,4,8): A(f"v_add_f32_dpp {x('st')}, {x('st')}, {x('st')} row_ror:{k} {DP}\nv_add_f32_dpp {x('st',1)}, {x('st',1)}, {x('st',1)} row_ror:{k} {DP}")
        for wd in (16,32):
            A(f"v_mov_b64 {R('mx',2)}, {R('st',2)}\nv_permlane{wd}_swap_b32 {x('mx')}, {x('st')}\nv_permlane{wd}_swap_b32 {x('mx',1)}, {x('st',1)}\nv_pk_add_f32 {R('st',2)}, {R('st',2)}, {R('mx',2)}")
        A(f"v_mul_f32 {x('ab',1)}, {hex(f2u(-1/1024))}, {x('st',1)}\nv_mul_f32 {x('t0')}, {x('ab',1)}, {x('ab',1)}\nv_mul_f32 {x('t1')}, {hex(f2u(1/1024))}, {x('st')}")
        A(f"v_sub_f32 {x('t1')}, {x('t1')}, {x('t0')}\nv_max_f32 {x('t1')}, 0, {x('t1')}\nv_add_f32 {x('t1')}, {hex(f2u(1e-5))}, {x('t1')}\nv_rsq_f32 {x('t1')}, {x('t1')}\nv_mul_f32 {x('t1')}, {hex(f2u(0.25))}, {x('t1')}")
        for k in range(4): A(f"v_add_f32 {x('D',k)}, {x('X4',k)}, {x('ab',1)}\nv_mul_f32 {x('D',k)}, {x('D',k)}, {x('t1')}\nv_mul_f32 {x('X4',k)}, {hex(f2u(0.25))}, {x('X4',k)}")
        A(f"v_mov_b32 {x('ab')}, {CQ}")
        zero("T0","T1","T2","T3")
    if not role:
        prog(o["ap"]); assert ("q",3) in moved
        lane(3)
        tgt[0]=o["aq"]
        layer(0,None,o["a0"],o["a1"],(o["aq"],o["asp"][0]))
        assert ns[0]==48
        prog(o["acs"])
        layer(2,o["a2"],o["a3"],o["a4"],None)
    else:
        prog(o["bp"])
        if main[0] is pre: marker()
        lane(3)
        layer(1,o["b1"],o["b2"],o["b3"],o["bsp"])
        assert ns[0]==48
        A(f"v_add_u32 {x('aG1')}, {2*S}, {x('aG1')}")
        layer(3,o["b4"],o["b5"],o["b6"],None)
        A(f"s_and_b32 s57, s{sR}, 3\ns_xor_b32 s57, s57, s{sG}\ns_or_b32 s57, s57, s{sI}\ns_cmp_eq_u32 s57, 0\ns_cbranch_scc0 L_fail")
        A(f"v_add_u32 {x('aG1')}, {S}, {x('aG1')}\ns_lshl_b32 s57, s{sR}, 8\ns_sub_u32 s57, s57, {XF//2}\nv_lshrrev_b32 {x('t3')}, 1, {x('xFw')}\nv_add_u32 {x('t3')}, s57, {x('t3')}\nv_mov_b32 {x('t4')}, {NONCE}\nv_mov_b32 {x('fl')}, s{sTag}")
        E1(11,o["b7"],4)
        stamp(0)
        A(f"ds_write_b128 {x('xFw')}, {R('D')}"); bar()
        if diag: A(f"v_writelane_b32 {x('stamp')}, s76, 60")
        A(f"s_cmp_eq_u32 s{sW}, 0\ns_cbranch_scc0 L_fail")
        for k in range(4): A(f"ds_read_b128 {R('F%d'%k)}, {x('xFw')} offset:{k*FS}")
        A("s_waitcnt lgkmcnt(0)")
        for h in (0,2):
            A(f"v_pk_add_f32 {R('F0',2,h)}, {R('F0',2,h)}, {R('F1',2,h)}\nv_pk_add_f32 {R('F2',2,h)}, {R('F2',2,h)}, {R('F3',2,h)}\nv_pk_add_f32 {R('F0',2,h)}, {R('F0',2,h)}, {R('F2',2,h)}")
        cvtD('F0')
        A(f"s_mov_b32 exec_hi, 0\nglobal_store_dwordx2 {x('t3')}, {R('c01',2)}, s[24:25]")
        A(f"s_cmp_eq_u32 s{sR}, 0\ns_cbranch_scc0 L_fail")
        A(f"s_mov_b64 exec, 1\nglobal_store_dword {x('t4')}, {x('fl')}, s[28:29] sc1")
    A("s_branch L_fail" if diag else "s_endpgm")
    return pre,preo,post,posto
def gen(name=NAME, **kw):
    o=dict(DEF); o.update(kw); diag=o["diag"]
    L=HDR.rstrip("\n").split("\n")
    L.append(f"; @launch grid=(256,1,1) block=(256,1,1) lds={LDSSZ}")
    L+=f'.amdgcn_target "amdgcn-amd-amdhsa--gfx950"\n.text\n.globl {name}_kernel\n.p2align 8\n.type {name}_kernel,@function\n{name}_kernel:'.split("\n")
    L+="s_cmp_ge_u32 s2, 256\ns_cbranch_scc1 L_end\ns_load_dwordx16 s[4:19], s[0:1], 0\ns_load_dwordx8 s[20:27], s[0:1], 64\ns_load_dwordx2 s[28:29], s[0:1], 96\ns_bitcmp1_b32 s2, 0\ns_cbranch_scc1 L_B".split("\n")
    alt=[]
    for role in (0,1):
        pre,preo,post,posto=path(role,0,o); L+=pre+post+preo+posto+[f"L_end{'AB'[role]}:","s_endpgm"]
        pre,preo,post,posto=path(role,1,o); alt+=post+posto
    L+=alt
    L.append("L_fail:")
    if diag:
        L+=("s_mov_b64 exec, -1\ns_memrealtime s[76:77]\ns_memtime s[78:79]\ns_waitcnt lgkmcnt(0)\ns_sub_u32 s78, s78, s74\n"
            f"v_writelane_b32 {x('stamp')}, s76, 61\nv_writelane_b32 {x('stamp')}, s78, 62\nv_writelane_b32 {x('stamp')}, s{sTo}, 63\n"
            f"s_lshl_b32 s57, s2, 10\ns_lshl_b32 s58, s{sW}, 8\ns_add_u32 s57, s57, s58\ns_add_u32 s57, s57, {DIAG}\nv_lshl_add_u32 {x('t0')}, v0, 2, s57\nglobal_store_dword {x('t0')}, {x('stamp')}, s[28:29]").split("\n")
    L+=["L_end:","s_endpgm"]
    L+=f'.section .rodata,"a"\n.p2align 6\n.amdhsa_kernel {name}_kernel\n  .amdhsa_next_free_vgpr 512\n  .amdhsa_next_free_sgpr 102\n  .amdhsa_accum_offset 256\n  .amdhsa_group_segment_fixed_size 0\n  .amdhsa_kernarg_size 104\n  .amdhsa_user_sgpr_count 2\n  .amdhsa_user_sgpr_kernarg_segment_ptr 1\n  .amdhsa_system_sgpr_workgroup_id_x 1\n.end_amdhsa_kernel'.split("\n")
    out,n=fix(L,verbose=("-v" in sys.argv))
    return "\n".join(out)+"\n"
def parse(args):
    kw={}
    for a in args:
        if "=" in a:
            k,val=a.split("=")
            if isinstance(DEF.get(k),str): kw[k]=val
            else: kw[k]=tuple(int(z) for z in val.split(",")) if "," in val else int(val)
    return kw
if __name__=="__main__":
    t=gen(**parse(sys.argv[2:]))
    if "diag=1" in sys.argv: t+="; args: "+" ".join(a for a in sys.argv[2:] if a!="diag=1")+"\n"
    open(sys.argv[1],"w").write(t)
```

```python
import sys, math, struct
from hz import fix
NAME="interleave_layers__sliding_block_cached__sliding_block_cached__decode"
HDR=open("cdna_kernels/%s.s.ref"%NAME).read().split("; Override launch")[0]
def f2u(x): return struct.unpack("<I",struct.pack("<f",x))[0]
AS=1056
XQ=0; XA=2*AS; XO=4*AS; XP=6*AS; XM=8*AS; XR=XM+128; XV=XR+32; XF=XV+32; FS=528
BUFK=0x2c00; VS=8320; BUFV=BUFK+0x8000; WS=16416; BUFW=BUFV+4*VS; LDSSZ=BUFW+4*WS
assert XF+4*FS<=BUFK and XF%16==0
S=0x20000; DB=0x80000; PRB=0xC0000; MISC=0x100000; ST2=MISC+0x10000; ST3=MISC+0x14000; CS=MISC+0x18000
FLG=0x1A0000; NONCE=0x1A8000; E3=0x200000; DIAG=6<<20
class Regs:
    def __init__(s,n0): s.n=n0; s.d={}
    def __call__(s,name,k=1,al=1):
        s.n=(s.n+al-1)//al*al; s.d[name]=s.n; s.n+=k; return s.d[name]
ORDER=[("q",q) for q in range(16)]+[("k",q) for q in range(8)]+[("v",q) for q in range(8)]+[("o",q) for q in range(16)]
DEF=dict(diag=0, TMO=30000, slp=2, slpl=1, wfl=0, kfl=0, pf=1, force=0, dsl=3, ring=(3,1,1), vpos=2,
         an0=16, ap="U_Z_H0_L24_E_M8_M16", aq=24, br0="", ar0="0",
         a0="N1_F_L26_W21_C_G_B_L32_K", a1="L40_S2_G_B_L48_M40_M48", acs="F_H1_V_Q_X_Y", a2="D_G", a3="S2_G", a4="S2_G",
         asp=(36,48),
         bn0=2, bp="U_N0_N1_Z_O_H0_H1_P12.2_F_P24.8_C_M16_B_Y_Q_P32.8_K_X_M32_P40.8",
         b1="D_G_B_L44", b2="S2_G_B_L48", b3="S2_G_M48", b4="D_G", b5="S2_G", b6="S2_G", b7="A_G",
         bsp=(44,48,48), sk=1)
FL=['nt','','sc1','sc0 sc1','sc1 nt','sc0']
V=Regs(1)
for n in "Sel SelL SelH Msk G0 G1 G2 G3 S D T0 T1 T2 T3 U0 U1 L0 L1 Tg Ag A0 A1 W0 W1 F0 F1 F2 F3 Neg P4 X4 fF".split(): V(n,4,4)
V("One",8,4)
for n in "c01 st ab tA tB tC tD kc0 kc1 xr pa fl mx".split(): V(n,2,2)
for n in ("aG1 aG2 aC2 aS2 aG3 aS3 aP2 aPS2 aP3 aPS3 aP1 aR aWm aF aFl aDp aDc dQ dK dV dO dT dS xWQ xWA xWO xFw xFr rA rG rP pW mW mR lW lR lR2 vW "
          "tT0 tT1 tV tK idx tid n g t0 t1 t2 t3 t4 t5 chk p0 p1 p2 p3 dbv stamp").split(): V(n)
assert V.n<=256
r=V.d
v=lambda i:f"v{i}"
vr=lambda i,k:f"v[{i}:{i+k-1}]"
ar=lambda i,k:f"a[{i}:{i+k-1}]"
sp=lambda i:f"s[{i}:{i+1}]"
R=lambda n,k=4,o=0:vr(r[n]+o,k)
x=lambda n,o=0:v(r[n]+o)
q4=lambda n:list(range(r[n],r[n]+4))
DP="row_mask:0xf bank_mask:0xf"
sW,sG,sM,sR,sI,sI2,sCB,sMode=30,31,32,33,34,35,36,37
sLb=[38,40]; sN=42; sWq,sWv,sXs,sExp=44,45,46,47; mS3,mCC,mS2=48,50,52; sX28,sSide,sPerm=54,55,56
sWk,sRt,sTo,sTag=3,14,15,26

def path(role,mode,o):
    RING=o["ring"] if isinstance(o["ring"],tuple) else (o["ring"],)*3
    X="AB"[role]; diag=o["diag"]; TMO=o["TMO"]
    pre=[]; preo=[]; post=[]; posto=[]
    main=[pre]; ool=[preo]; cur=[pre]; sfx=[X]
    def A_(t):
        for z in t.split("\n"): cur[0].append(z)
    hook=[A_]
    def A(t): hook[0](t)
    def OOL(): cur[0]=ool[0]
    def MAIN(): cur[0]=main[0]
    lab=lambda n:f"L_{n}_{sfx[0]}"
    PTR=[dict(k=6,v=8,q=10,o=12),dict(k=16,v=18,q=20,o=22)][role]
    LOC=lambda: "sc1" if (mode or main[0] is pre) else ""
    Q=[]
    def vm(tag): Q.append(tag)
    def cnt(tag):
        i=max(i for i,t in enumerate(Q) if t==tag); n=len(Q)-1-i; return min(n,63)
    done=[0]
    def waitfor(tag): n=cnt(tag); done[0]=max(done[0],len(Q)-n); A(f"s_waitcnt vmcnt({n})")
    def acked(tag): return tag in Q and max(i for i,t in enumerate(Q) if t==tag)<done[0]
    curl=[0]
    def stamp(k):
        if diag: A(f"s_memrealtime s[{76+2*k}:{77+2*k}]")
    def lane(k):
        if diag: A(f"s_memrealtime s[100:101]\ns_waitcnt lgkmcnt(0)\nv_writelane_b32 {x('stamp')}, s100, {k}")
    def flush(l):
        if not diag: return
        A("s_waitcnt lgkmcnt(0)")
        for k in range(13):
            if l or 0<k<12: A(f"v_writelane_b32 {x('stamp')}, s{76+2*k}, {4+14*l+k}")
        A(f"v_writelane_b32 {x('stamp')}, s{sRt}, {4+14*l+13}\ns_mov_b32 s{sRt}, 0")
    ns=[0]; moved=set(); nbar=[0]; m0v=[None]; wfree=[99]
    def bar():
        A("s_waitcnt lgkmcnt(0)\ns_barrier"); nbar[0]+=1
    def setm0(sreg,val):
        if m0v[0]!=(sreg,val): A(f"s_add_u32 m0, s{sreg}, {val}"); m0v[0]=(sreg,val)
    def dma(kind,q):
        p=PTR[kind]
        if kind in "qo":
            if kind=="o": assert wfree[0]<=nbar[0] or o.get("nochk"), ("W buffer busy",nbar[0])
            setm0(sWq,BUFW+(q>>2)*WS+(q&3)*4104)
            src=x("dQ" if kind=="q" else "dO")
            if q: A(f"v_add_u32 {x('dT')}, {q*(65536 if kind=='q' else 16384)}, {src}"); src=x("dT")
            A(f"global_load_lds_dwordx4 {src}, {sp(p)} {FL[o['wfl']]}")
        else:
            hi=q//4
            if kind=="v": setm0(sWv,BUFV+hi*4096+8*q)
            else: setm0(sWk,BUFK+hi*4096)
            src=x("dK" if kind=="k" else "dV")
            if kind=="k" and q: A(f"v_xor_b32 {x('dT')}, {q*32}, {src}"); src=x("dT")
            if hi: A(f"v_add_u32 {x('dT')}, 4096, {src}"); src=x("dT")
            A(f"global_load_lds_dwordx4 {src}, {sp(p)} offset:{(q%4)*1024} {FL[o['kfl']]}")
        vm(f"{kind}{q}")
    def stream(n):
        while ns[0]<n: dma(*ORDER[ns[0]]); ns[0]+=1
    def wload(i): k,q=ORDER[i]; assert i<ns[0]; waitfor(f"{k}{q}")
    tgt=[0]
    def slot():
        n=min(tgt[0],ns[0]+o["sk"])
        while ns[0]<n:
            k,q=ORDER[ns[0]]
            if k=="o" and wfree[0]>nbar[0]: break
            dma(k,q); ns[0]+=1
    def trW(kind,reg):
        ab=0 if kind=="q" else 128; Sx=reg>>1
        for t in range(4):
            for ub in range(2):
                u=2*(reg&1)+ub
                A(f"ds_read_b64_tr_b16 {ar(ab+(t*2+Sx)*8+2*u,2)}, {x('tT%d'%(t&1))} offset:{reg*WS+ub*2048+8*(t>>1)}")
        moved.add((kind,reg))
        if kind=="q" and reg==3: wfree[0]=nbar[0]+1
    def trV():
        for U in range(2):
            for t in range(2):
                for jh in range(2):
                    for ib in range(2):
                        A(f"ds_read_b64_tr_b16 {ar(96+(t*2+U)*8+2*(2*jh+ib),2)}, {x('tV')} offset:{2*U*VS+jh*4128+ib*512+8*t}")
        moved.add(("v",0))
    def kreads():
        wload(23)
        for s in range(4):
            A(f"v_xor_b32 {x('dT')}, {64*s}, {x('tK')}")
            for t in range(2): A(f"ds_read_b128 {ar(64+(t*4+s)*4,4)}, {x('dT')} offset:{256*t}")
        moved.add(("k",0))
    def move(n):
        gs=[("q",k) for k in range(4) if 4*k+4<=n]+([("v",0)] if n>=32 else [])+[("o",k) for k in range(4) if 36+4*k<=n]
        gs=[g_ for g_ in gs if g_ not in moved]
        if not gs: return
        k,j=gs[-1]; wload({"q":4*j+3,"v":31,"o":35+4*j}[k]); bar()
        for k,j in gs:
            if k=="v": trV()
            else: trW(k,j)
    def mf(d,a,b,c): A(f"v_mfma_f32_16x16x32_bf16 {d}, {a}, {b}, {c}")
    def smf(d,a,b): A(f"v_smfmac_f32_16x16x64_bf16 {R(d)}, {R(a)}, {b}, {x('idx')}")
    def zero(*names):
        for n in names: A(f"v_mov_b64 {R(n,2)}, 0\nv_mov_b64 {R(n,2,2)}, 0")
    def chk(rs,first=True):
        rs=list(rs); c=x("chk")
        if first:
            A(f"v_max3_u32 {c}, v{rs[0]}, v{rs[1]}, v{rs[2]}"); rs=rs[3:]
        while len(rs)>=2: A(f"v_max3_u32 {c}, {c}, v{rs[0]}, v{rs[1]}"); rs=rs[2:]
        if rs: A(f"v_max_u32 {c}, {c}, v{rs[0]}")
    def fin(fail): A(f"v_cmp_eq_u32 vcc, -1, {x('chk')}\ns_cbranch_vccnz {fail}")
    def cvtD(T='D'): A(f"v_cvt_pk_bf16_f32 {x('c01')}, {x(T)}, {x(T,1)}\nv_cvt_pk_bf16_f32 {x('c01',1)}, {x(T,2)}, {x(T,3)}")
    def wrA(a): A(f"ds_write2_b32 {x(a)}, {x('c01')}, {x('c01',1)} offset0:0 offset1:8")
    def sel2(dst,a,b,thr,src="v0"): A(f"v_cmp_le_u32 vcc, {thr}, {src}\nv_cndmask_b32 {dst}, {a}, {b}, vcc")
    if role: A("L_B:")
    if o["pf"]:
        A(f"s_getpc_b64 s[58:59]\nL_pc{X}:\nv_lshlrev_b32 {x('t0')}, 6, v0\nv_min_u32 {x('t0')}, L_end{X}-L_pc{X}, {x('t0')}")
        A(f"v_add_co_u32 {x('pa')}, vcc, s58, {x('t0')}\nv_mov_b32 {x('t0')}, s59\nv_addc_co_u32 {x('pa',1)}, vcc, 0, {x('t0')}, vcc")
        A(f"global_load_dword {x('chk')}, {R('pa',2)}, off"); vm("pf")
    if diag: A("s_memrealtime s[98:99]\ns_memtime s[74:75]")
    A(f"v_lshrrev_b32 {x('t0')}, 6, v0\nv_mov_b32 {x('tid')}, v0\nv_and_b32 v0, 63, v0\nv_and_b32 {x('n')}, 15, v0\nv_readfirstlane_b32 s{sW}, {x('t0')}")
    A(f"s_bfe_u32 s{sG}, s2, 0x20001\ns_lshr_b32 s{sM}, s2, 3\ns_lshr_b32 s{sR}, s2, 5\ns_and_b32 s{sI}, s{sM}, 3\ns_and_b32 s{sI2}, s{sM}, 7\ns_lshr_b32 s{sCB}, s2, 6")
    A(f"v_lshrrev_b32 {x('g')}, 4, v0\nv_lshrrev_b32 {x('t5')}, 5, v0")
    A(f"v_and_b32 {x('t0')}, 31, v0\nv_lshlrev_b32 {x('t4')}, 4, {x('t0')}\nv_lshlrev_b32 {x('t0')}, 6, {x('t5')}\nv_xor_b32 {x('t1')}, {x('t4')}, {x('t0')}")
    A(f"s_and_b32 s60, s{sW}, 1\ns_lshl_b32 s57, s60, 7\nv_xor_b32 {x('t1')}, s57, {x('t1')}")
    A(f"s_lshl_b32 s57, s{sR}, 20\ns_lshl_b32 s58, s{sW}, 14\ns_add_u32 s57, s57, s58\ns_lshl_b32 s58, s{sG}, 11\ns_add_u32 s57, s57, s58\ns_lshl_b32 s58, s{sI}, 9\ns_add_u32 s57, s57, s58")
    if o.get("xi"): A(f"s_xor_b32 s57, s57, {o['xi']*512}")
    A(f"v_lshl_add_u32 {x('dQ')}, {x('t5')}, 13, {x('t1')}\nv_add_u32 {x('dQ')}, s57, {x('dQ')}")
    A(f"s_lshl_b32 s{sWq}, s{sW}, 10\ns_mul_i32 s{sWv}, s{sW}, {VS}\ns_lshl_b32 s{sWk}, s{sW}, 13")
    A(f"s_lshr_b32 s57, s{sG}, 1\ns_lshl_b32 s57, s57, 19\ns_and_b32 s58, s{sG}, 1\ns_lshl_b32 s58, s58, 16\ns_add_u32 s57, s57, s58\ns_add_u32 s62, s57, {E3}")
    A(f"s_lshl_b32 s57, s{sG}, 3\ns_add_u32 s57, s57, s{sI2}\ns_lshl_b32 s57, s57, 8\ns_lshl_b32 s58, s{sCB}, 15\ns_add_u32 s63, s57, s58")
    A(f"s_lshl_b32 s57, s{sG}, 14\ns_add_u32 s64, s57, {MISC}\ns_lshl_b32 s58, s{sR}, 8\ns_lshl_b32 s59, s{sI}, 12\ns_add_u32 s59, s59, s58\ns_add_u32 s65, s64, s59")
    A(f"s_lshl_b32 s66, s{sG}, 12\ns_lshl_b32 s57, s{sG}, 13\ns_add_u32 s69, s57, {CS}\ns_lshl_b32 s59, s{sI}, 11\ns_add_u32 s59, s59, s58\ns_add_u32 s67, s69, s59")
    A(f"s_lshl_b32 s57, s{sM}, 7\ns_add_u32 s68, s66, s57")
    A(f"v_lshlrev_b32 {x('t3')}, 4, {x('n')}")
    A(f"v_lshl_add_u32 {x('t0')}, {x('g')}, 11, {x('t3')}\nv_add_u32 {x('aWm')}, s65, {x('t0')}")
    A(f"v_bfe_u32 {x('t0')}, v0, 3, 1\nv_mul_u32_u24 {x('t0')}, {ST3-ST2-128}, {x('t0')}\ns_add_u32 s57, s68, {ST2}\nv_add3_u32 {x('t0')}, {x('t0')}, s57, {x('t3')}")
    sel2(x('aWm'),x('aWm'),x('t0'),32)
    A(f"v_add_u32 {x('t0')}, s67, {x('t3')}"); sel2(x('aWm'),x('aWm'),x('t0'),48)
    A(f"s_lshl_b32 s57, s{sW}, 15\ns_lshl_b32 s58, s{sM}, 9\ns_add_u32 s57, s57, s58\ns_add_u32 s57, s57, s62\nv_lshl_add_u32 {x('t0')}, {x('t5')}, 14, {x('t4')}\nv_add_u32 {x('t0')}, s57, {x('t0')}")
    A(f"s_movk_i32 s57, 128\ns_movk_i32 s58, 192"); sel2(x('aWm'),x('t0'),x('aWm'),"s57",x('tid'))
    A(f"v_lshl_add_u32 {x('t0')}, {x('g')}, 13, {x('t3')}\nv_add_u32 {x('t0')}, s63, {x('t0')}"); sel2(x('aR'),x('aWm'),x('t0'),"s58",x('tid'))
    for k in (0,2): A(f"v_mov_b64 {R('Neg',2,k)}, -1")
    A(f"v_and_b32 {x('t2')}, 1, {x('g')}\nv_lshl_add_u32 {x('t2')}, {x('t2')}, 3, {x('t3')}")
    if not role: A(f"s_lshl_b32 s57, s{sR}, 8\nv_add_u32 {x('p0')}, s57, {x('t2')}\nv_lshlrev_b32 {x('p1')}, 5, v0")
    A(f"s_getreg_b32 s{sX28}, hwreg(HW_REG_XCC_ID, 0, 4)")
    if o["force"]: A(f"s_lshr_b32 s57, s2, 3\ns_and_b32 s57, s57, {o['force']}\ns_xor_b32 s{sX28}, s{sX28}, s57")
    A(f"s_bfe_u32 s{sSide}, s{sX28}, 0x10002\ns_lshl_b32 s{sX28}, s{sX28}, 28")
    A("s_waitcnt lgkmcnt(0)")
    if diag: A(f"s_memrealtime s[76:77]\nv_mov_b32 {x('stamp')}, 0\ns_waitcnt lgkmcnt(0)\nv_writelane_b32 {x('stamp')}, s98, 0\nv_writelane_b32 {x('stamp')}, s76, 1")
    A("s_add_u32 s28, s28, 0x1fffff\ns_addc_u32 s29, s29, 0\ns_and_b32 s28, s28, 0xffe00000")
    if not role:
        A(f"global_load_dwordx2 {R('c01',2)}, {x('p0')}, s[4:5]"); vm("x")
        A(f"global_load_dwordx4 {R('G0')}, {x('p1')}, s[4:5]\nglobal_load_dwordx4 {R('G1')}, {x('p1')}, s[4:5] offset:16"); vm("x"); vm("x")
    for j in range(2): A(f"s_add_u32 s{sLb[j]}, s28, {(2*j+role)*S}\ns_addc_u32 s{sLb[j]+1}, s29, 0")
    A(f"s_add_u32 s58, s28, {NONCE}\ns_addc_u32 s59, s29, 0\ns_load_dword s{sTag}, s[58:59], 0")
    def reset(j): A(f"global_store_dwordx4 {x('aR')}, {R('Neg')}, {sp(sLb[j])} sc1"); vm("R"); vm2.add(j)
    vm2=set()
    for j in (o["br0"] if role else o["ar0"]): reset(int(j))
    n0=o["bn0"] if role else o["an0"]
    stream(min(n0,16))
    A(f"s_lshl_b32 s57, s{sG}, 24\ns_lshl_b32 s58, s{sM}, 15\ns_add_u32 s57, s57, s58\ns_add_u32 s57, s57, s{sWk}\ns_add_u32 s57, s57, {61440*256}")
    A(f"v_xor_b32 {x('t0')}, {x('n')}, {x('t5')}\nv_lshlrev_b32 {x('t0')}, 4, {x('t0')}\nv_lshl_add_u32 {x('dK')}, {x('g')}, 8, {x('t0')}\nv_add_u32 {x('dK')}, s57, {x('dK')}")
    A(f"v_and_b32 {x('p2')}, 1, {x('g')}\nv_lshlrev_b32 {x('p2')}, 6, {x('p2')}\nv_xor_b32 {x('t0')}, {x('t3')}, {x('p2')}\nv_lshl_add_u32 {x('dV')}, {x('g')}, 8, {x('t0')}\nv_add_u32 {x('dV')}, s57, {x('dV')}")
    stream(min(n0,32))
    A(f"s_lshl_b32 s57, s{sG}, 21\ns_lshl_b32 s58, s{sI2}, 18\ns_add_u32 s57, s57, s58\ns_lshl_b32 s58, s{sW}, 12\ns_add_u32 s57, s57, s58\ns_lshl_b32 s58, s{sCB}, 9\ns_add_u32 s57, s57, s58")
    A(f"v_lshl_add_u32 {x('dO')}, {x('t5')}, 11, {x('t1')}\nv_add_u32 {x('dO')}, s57, {x('dO')}")
    if role: A(f"s_lshl_b32 s57, s2, 2\ns_add_u32 s57, s57, s{sW}\ns_lshr_b32 s58, s57, 6\ns_lshl_b32 s58, s58, 14\ns_and_b32 s57, s57, 63\ns_lshl_b32 s57, s57, 7\ns_add_u32 s57, s57, s58")
    if role: A(f"s_lshl_b32 s58, s60, 13\ns_add_u32 s57, s57, s58\ns_add_u32 s57, s57, {PRB}\ns_xor_b32 s58, s57, 0x2000")
    if role: A(f"s_add_u32 s82, s28, s57\ns_addc_u32 s83, s29, 0\ns_add_u32 s90, s28, s58\ns_addc_u32 s91, s29, 0")
    if role: A(f"s_mov_b32 s84, 0x5bd1e995\ns_not_b32 s85, s84\ns_mov_b64 s[88:89], s[84:85]\ns_xor_b32 s73, s60, s{sSide}\ns_lshl_b32 s73, s73, 1\ns_sub_u32 s73, s73, 1")
    A(f"s_lshl_b32 s57, s2, 7\ns_lshl_b32 s58, s{sW}, 4\ns_add_u32 s57, s57, s58\ns_add_u32 s57, s57, {FLG}\nv_mov_b32 {x('aFl')}, s57")
    def flag():
        waitfor("R")
        A("s_waitcnt lgkmcnt(0)")
        A(f"s_mul_i32 s{sTag}, s{sTag}, 0x9e3779b1\ns_add_u32 s{sTag}, s{sTag}, 0x7f4a7c15\ns_xor_b32 s92, s{sTag}, s{sX28}\nv_mov_b32 {x('fl')}, s92")
        A(f"s_mov_b64 exec, 1\nglobal_store_dword {x('aFl')}, {x('fl')}, s[28:29] sc1\ns_mov_b64 exec, -1"); vm("flag")
        if diag: A("s_memrealtime s[78:79]\ns_waitcnt lgkmcnt(0)")
        if diag: A(f"v_writelane_b32 {x('stamp')}, s78, 2")
        assert len(vm2)==2 or not role
    def probe():
        assert role
        A(f"s_waitcnt lgkmcnt(0)\ns_load_dwordx2 s[86:87], s[82:83], 0\ns_load_dwordx2 s[88:89], s[90:91], 0")
        A(f"v_mov_b32 {x('pa')}, s{sTag}\ns_waitcnt lgkmcnt(2)\ns_cmp_eq_u64 s[88:89], s[84:85]\ns_cselect_b32 s73, s73, 0\nv_mov_b32 {x('pa',1)}, s73")
        A(f"s_mov_b64 exec, 1\nglobal_store_dwordx2 {x('aFl')}, {R('pa',2)}, s[28:29] offset:8 sc1\ns_mov_b64 exec, -1"); vm("vote")
    late=[]; hook[0]=late.append
    A(f"v_lshlrev_b32 {x('t0')}, 4, v0\ns_lshl_b32 s61, s{sW}, 11")
    A(f"s_lshl_b32 s57, s{sR}, 14\ns_add_u32 s57, s57, s61\ns_add_u32 s57, s57, {(1-role)*S}\nv_add_u32 {x('aG1')}, s57, {x('t0')}")
    A(f"s_lshl_b32 s57, s{sW}, 12\ns_add_u32 s57, s57, s64\nv_add_u32 {x('aG2')}, s57, {x('t0')}")
    A(f"s_add_u32 s57, s61, s69\nv_add_u32 {x('aC2')}, s57, {x('t0')}")
    A(f"s_lshr_b32 s58, s{sI2}, 1\ns_and_b32 s59, s{sI2}, 1\ns_lshl_b32 s57, s58, 14\ns_add_u32 s57, s57, s62\ns_lshl_b32 s70, s59, 8\ns_add_u32 s57, s57, s70\ns_lshl_b32 s70, s{sW}, 12\ns_add_u32 s57, s57, s70")
    A(f"v_lshl_add_u32 {x('t0')}, {x('g')}, 9, {x('t3')}\nv_add_u32 {x('aG3')}, s57, {x('t0')}")
    A(f"s_lshl_b32 s58, s58, 4\ns_lshl_b32 s59, s59, 2\ns_add_u32 s57, s58, s59\ns_add_u32 s57, s57, s66\ns_add_u32 s57, s57, s{sWq}\ns_add_u32 s57, s57, {ST3}")
    A(f"v_and_b32 {x('t4')}, 1, v0\nv_lshl_add_u32 {x('p3')}, {x('t4')}, 2, {x('g')}\nv_and_b32 {x('p1')}, 7, v0\nv_and_b32 {x('t0')}, 8, v0\nv_cmp_ne_u32 vcc, 0, {x('t0')}\nv_cndmask_b32 {x('p3')}, {x('p1')}, {x('p3')}, vcc")
    A(f"v_lshl_add_u32 {x('aS3')}, {x('p3')}, 7, s57")
    A(f"s_lshl_b32 s57, s{sW}, 7\ns_add_u32 s57, s57, s66\ns_add_u32 s57, s57, {ST2}\nv_bfe_u32 {x('t0')}, v0, 1, 3\nv_lshlrev_b32 {x('t0')}, 9, {x('t0')}\nv_lshl_add_u32 {x('t0')}, {x('t4')}, 4, {x('t0')}\nv_add_u32 {x('aS2')}, s57, {x('t0')}")
    A(f"s_and_b32 s57, s2, 7\ns_lshl_b32 s58, s{sW}, 3\ns_add_u32 s57, s57, s58\nv_lshl_add_u32 {x('t0')}, {x('p1')}, 5, s57")
    A(f"s_lshl_b32 s57, s{sCB}, 6\ns_lshl_b32 s58, s{sW}, 1\ns_add_u32 s57, s57, s58\ns_add_u32 s57, s57, {1-role}\nv_lshl_add_u32 {x('p3')}, {x('p1')}, 3, s57")
    sel2(x('t0'),x('t0'),x('p3'),32)
    A(f"v_bfe_u32 {x('p3')}, v0, 3, 2\nv_lshlrev_b32 {x('p3')}, 4, {x('p3')}\nv_lshl_add_u32 {x('t0')}, {x('t0')}, 7, {x('p3')}\nv_add_u32 {x('aF')}, {FLG}, {x('t0')}")
    A(f"s_lshl_b32 s57, s{sR}, 14\ns_lshl_b32 s58, s{sI}, 11\ns_add_u32 s57, s57, s58\ns_add_u32 s59, s57, {DB+(1-role)*0x20000}\nv_and_b32 {x('t0')}, 3, v0\nv_lshl_add_u32 {x('aDc')}, {x('t0')}, 9, s59")
    A(f"s_lshl_b32 s58, s{sG}, 9\ns_add_u32 s57, s57, s58\ns_lshl_b32 s58, s{sW}, 7\ns_add_u32 s57, s57, s58\ns_add_u32 s57, s57, {DB+role*0x20000}\nv_lshl_add_u32 {x('aDp')}, {x('t4')}, 13, s57")
    A(f"v_lshl_add_u32 {x('p3')}, {x('n')}, 2, {x('p2')}\ns_lshl_b32 s70, s60, 7\ns_lshr_b32 s71, s{sW}, 1")
    A(f"s_lshl_b32 s57, s71, 11\ns_add_u32 s57, s57, s65\ns_add_u32 s57, s57, s70\nv_add_u32 {x('aP2')}, s57, {x('p3')}")
    A(f"s_lshl_b32 s57, s71, 18\ns_add_u32 s57, s57, s67\ns_add_u32 s57, s57, s70\nv_add_u32 {x('t0')}, s57, {x('p3')}"); sel2(x('aP2'),x('aP2'),x('t0'),32)
    A(f"s_lshl_b32 s57, s71, 14\ns_add_u32 s57, s57, s63\ns_add_u32 s57, s57, s70\nv_lshl_add_u32 {x('t0')}, {x('t5')}, 13, {x('p3')}\nv_add_u32 {x('aP1')}, s57, {x('t0')}")
    A(f"s_lshl_b32 s57, s{sM}, 9\ns_lshl_b32 s58, s{sW}, 6\ns_add_u32 s57, s57, s58\ns_add_u32 s57, s57, s62\nv_lshlrev_b32 {x('t0')}, 2, {x('n')}\nv_lshl_add_u32 {x('t0')}, {x('g')}, 14, {x('t0')}\nv_add_u32 {x('aP3')}, s57, {x('t0')}")
    A(f"s_lshl_b32 s57, s{sW}, 4\ns_add_u32 s58, s57, s68\ns_add_u32 s58, s58, {ST2}\nv_lshl_add_u32 {x('aPS2')}, {x('g')}, 2, s58\ns_add_u32 s58, s68, {ST3}\nv_lshl_add_u32 {x('aPS3')}, {x('g')}, 4, s58")
    A(f"s_lshl_b64 {sp(mS3)}, 1, s57\ns_mov_b32 s{mCC}, 0xcccccccc\ns_mov_b32 s{mCC+1}, 0xcccccccc\ns_mov_b32 s{mS2}, 0x10001\ns_mov_b32 s{mS2+1}, 0x10001")
    A(f"s_and_b32 s57, s{sR}, 1\ns_cmp_eq_u32 s57, s71\ns_cselect_b32 s{sXs}, {hex(f2u(1/16))}, 0")
    A(f"s_mov_b32 s{sPerm}, 0x03020302\ns_mov_b32 s{sTo}, 0\ns_mov_b32 s{sRt}, 0")
    def X12(dst,src,lo):
        A(f"v_lshrrev_b32 {dst}, 1, {src}\nv_mul_u32_u24 {dst}, 12, {dst}\nv_and_b32 {x('dS')}, 1, {src}\nv_lshl_add_u32 {dst}, {x('dS')}, {lo-1}, {dst}")
    X12(x('t0'),x('g'),1); A(f"v_xor_b32 {x('t0')}, {x('t0')}, {x('n')}\nv_lshlrev_b32 {x('t0')}, 4, {x('t0')}\nv_lshl_add_u32 {x('rA')}, {x('g')}, 8, {x('t0')}")
    X12(x('t0'),x('g'),2); A(f"v_xor_b32 {x('t0')}, {x('t0')}, {x('n')}\nv_lshlrev_b32 {x('t0')}, 4, {x('t0')}\nv_lshl_add_u32 {x('rP')}, {x('g')}, 8, {x('t0')}")
    A(f"s_mul_i32 s57, s60, {AS}\nv_add_u32 {x('rG')}, s57, {x('rA')}")
    A(f"v_bfe_u32 {x('p3')}, v0, 1, 2\nv_bfe_u32 {x('p0')}, v0, 3, 1\nv_mul_u32_u24 {x('p0')}, {AS}, {x('p0')}\nv_lshl_add_u32 {x('p0')}, {x('p3')}, 8, {x('p0')}")
    A(f"v_lshl_add_u32 {x('p0')}, {x('t4')}, 3, {x('p0')}\nv_lshrrev_b32 {x('t0')}, 4, {x('p2')}\nv_add_u32 {x('p0')}, {x('p0')}, {x('t0')}")
    X12(x('t0'),x('p3'),1)
    A(f"s_lshl_b32 s57, s71, 2\ns_add_u32 s57, s57, s60\nv_xor_b32 {x('p3')}, s57, {x('t0')}\nv_lshl_add_u32 {x('xWQ')}, {x('p3')}, 4, {x('p0')}")
    A(f"v_lshlrev_b32 {x('dS')}, 3, {x('t5')}\nv_xor_b32 {x('p3')}, {x('p3')}, {x('dS')}\nv_lshl_add_u32 {x('xWO')}, {x('p3')}, 4, {x('p0')}\nv_add_u32 {x('xWO')}, {XO}, {x('xWO')}")
    A(f"s_lshl_b32 s57, s{sW}, 2\nv_add_u32 {x('p3')}, s57, {x('t5')}\nv_xor_b32 {x('p3')}, {x('p3')}, {x('t0')}\nv_lshl_add_u32 {x('xWA')}, {x('p3')}, 4, {x('p0')}\nv_add_u32 {x('xWA')}, {XA}, {x('xWA')}")
    A(f"v_and_b32 {x('t4')}, 3, {x('n')}\nv_lshrrev_b32 {x('p0')}, 2, {x('n')}")
    X12(x('t0'),x('p0'),2)
    A(f"s_lshl_b32 s57, s60, 1\nv_lshl_add_u32 {x('p3')}, {x('g')}, 2, s57\nv_xor_b32 {x('p3')}, {x('p3')}, {x('t0')}\nv_lshlrev_b32 {x('p3')}, 4, {x('p3')}\nv_lshl_add_u32 {x('p3')}, {x('p0')}, 8, {x('p3')}")
    A(f"s_mul_i32 s57, s71, {AS}\ns_add_u32 s57, s57, {XP}\nv_lshl_add_u32 {x('p3')}, {x('t4')}, 2, {x('p3')}\nv_add_u32 {x('pW')}, s57, {x('p3')}")
    A(f"v_lshlrev_b32 {x('mR')}, 5, {x('g')}\nv_add_u32 {x('mR')}, {XM}, {x('mR')}\ns_lshl_b32 s57, s{sW}, 3\nv_add_u32 {x('mW')}, s57, {x('mR')}")
    A(f"s_add_u32 s58, s57, {XR}\nv_mov_b32 {x('lW')}, s58\ns_add_u32 s58, s57, {XV}\nv_mov_b32 {x('vW')}, s58")
    A(f"v_lshrrev_b32 {x('t0')}, 2, {x('p2')}\nv_add_u32 {x('lR')}, {XR}, {x('t0')}\nv_sub_u32 {x('lR2')}, {XR+16}, {x('t0')}")
    A(f"s_mul_i32 s57, s{sW}, {FS}\ns_add_u32 s57, s57, {XF}\nv_lshl_add_u32 {x('xFw')}, {x('t2')}, 1, s57")
    A(f"s_lshl_b32 s57, s60, 8\ns_add_u32 s57, s57, {XF}\nv_lshl_add_u32 {x('t0')}, {x('p2')}, 1, s57\nv_lshl_add_u32 {x('t0')}, {x('p0')}, 5, {x('t0')}\nv_lshl_add_u32 {x('xFr')}, {x('t4')}, 2, {x('t0')}")
    A(f"v_mul_u32_u24 {x('t0')}, 4104, {x('g')}\nv_lshl_add_u32 {x('t0')}, {x('p0')}, 9, {x('t0')}\nv_add_u32 {x('t0')}, {BUFW}, {x('t0')}")
    A(f"s_lshl_b32 s57, s{sW}, 3\nv_add_u32 {x('p3')}, s57, {x('t4')}\nv_lshlrev_b32 {x('dS')}, 2, {x('p0')}\nv_xor_b32 {x('p3')}, {x('p3')}, {x('dS')}\nv_lshl_add_u32 {x('tT0')}, {x('p3')}, 4, {x('t0')}")
    A(f"v_xor_b32 {x('p3')}, 4, {x('p3')}\nv_lshl_add_u32 {x('tT1')}, {x('p3')}, 4, {x('t0')}")
    A(f"v_mul_u32_u24 {x('t0')}, 1032, {x('g')}\nv_lshrrev_b32 {x('dS')}, 1, {x('p0')}\nv_mul_u32_u24 {x('dS')}, {VS}, {x('dS')}\nv_add_u32 {x('t0')}, {x('t0')}, {x('dS')}\nv_and_b32 {x('t3')}, 1, {x('p0')}")
    A(f"v_lshl_add_u32 {x('t0')}, {x('t3')}, 8, {x('t0')}\ns_lshl_b32 s57, s{sW}, 2\nv_add_u32 {x('p3')}, s57, {x('t4')}\nv_lshlrev_b32 {x('dS')}, 2, {x('t3')}\nv_xor_b32 {x('p3')}, {x('p3')}, {x('dS')}")
    A(f"v_lshl_add_u32 {x('t0')}, {x('p3')}, 4, {x('t0')}\nv_add_u32 {x('tV')}, {BUFV}, {x('t0')}")
    A(f"v_xor_b32 {x('t0')}, {x('g')}, {x('n')}\nv_lshlrev_b32 {x('t0')}, 4, {x('t0')}\nv_lshl_add_u32 {x('t0')}, {x('n')}, 9, {x('t0')}\ns_add_u32 s57, s{sWk}, {BUFK}\nv_add_u32 {x('tK')}, s57, {x('t0')}")
    A(f"v_lshlrev_b32 {x('t3')}, 4, {x('t3')}\nv_mov_b32 {x('t1')}, 0xffff\nv_lshlrev_b32 {x('t1')}, {x('t3')}, {x('t1')}")
    for e in range(4): A(f"v_cmp_eq_u32 vcc, {e}, {x('t4')}\nv_cndmask_b32 {x('Msk',e)}, 0, {x('t1')}, vcc\nv_and_b32 {x('Sel',e)}, 0x3f803f80, {x('Msk',e)}")
    A(f"v_cmp_gt_u32 vcc, 8, {x('n')}")
    for e in range(4): A(f"v_cndmask_b32 {x('SelL',e)}, 0, {x('Sel',e)}, vcc\nv_sub_u32 {x('SelH',e)}, {x('Sel',e)}, {x('SelL',e)}")
    for e in range(8): A(f"v_mov_b32 {x('One',e)}, 0x3f803f80")
    A(f"v_mov_b32 {x('idx')}, 0x44444444\nv_mov_b32 {x('t0')}, 0xeeeeeeee\nv_cndmask_b32 {x('idx')}, {x('idx')}, {x('t0')}, {sp(mCC)}")
    A(f"v_and_b32 {x('t0')}, 13, {x('n')}\nv_cmp_eq_u32 vcc, 8, {x('t0')}")
    for e in range(4): A(f"v_cndmask_b32 {x('Tg',e)}, 0, {x('One')}, vcc")
    A(f"ds_write_b128 {x('rA')}, {R('Tg')} offset:{XQ}\nds_write_b128 {x('rA')}, {R('Tg')} offset:{XQ+AS}")
    hook[0]=A_
    def setup(n):
        while late and n>0: t=late.pop(0); A(t); n-=t.count('\n')+1
    def retry(name,e,loc=False):
        A(f"{name}:\ns_sleep {o['slpl'] if loc else o['slp']}\ns_add_u32 s{sTo}, s{sTo}, 1")
        if diag: A(f"s_add_u32 s{sRt}, s{sRt}, {1<<(8*e)}")
        A(f"s_cmp_lt_u32 s{sTo}, {TMO}\ns_cbranch_scc0 L_fail")
    def loadF(): A(f"global_load_dwordx4 {R('fF')}, {x('aF')}, s[28:29] sc1"); vm("F")
    ALLF=role and "D" not in o["b1"]
    def checkF(wait=True):
        waitfor("F")
        if wait:
            A(f"{lab('fc')}:\nv_xor_b32 {x('t0')}, s{sTag}, {x('fF')}\nv_and_b32 {x('t1')}, 0xfffffff, {x('t0')}"+("" if ALLF else "\ns_mov_b32 exec_hi, 0")+f"\nv_cmp_ne_u32 vcc, 0, {x('t1')}\ns_mov_b32 exec_hi, -1\ns_cbranch_vccnz {lab('fr')}")
            OOL(); retry(lab('fr'),3); A(f"global_load_dwordx4 {R('fF')}, {x('aF')}, s[28:29] sc1\ns_waitcnt vmcnt(0)\ns_branch {lab('fc')}"); MAIN()
        else: A(f"v_xor_b32 {x('t0')}, s{sTag}, {x('fF')}")
        A(f"v_cmp_ne_u32 s[60:61], s{sX28}, {x('t0')}\nv_cmp_eq_u32 vcc, s{sTag}, {x('fF',2)}\nv_cndmask_b32 {x('t1')}, 0, {x('fF',3)}, vcc")
        A(f"v_cmp_lt_i32 s[58:59], 0, {x('t1')}\nv_cmp_gt_i32 vcc, 0, {x('t1')}\nv_mov_b32 {x('pa')}, s60")
        A(f"s_nop 1\ns_bcnt1_i32_b64 s58, s[58:59]\ns_bcnt1_i32_b64 s59, vcc\ns_sub_u32 s58, s58, s59\nv_mov_b32 {x('pa',1)}, s58\nds_write_b64 {x('vW')}, {R('pa',2)}")
        m0v[0]=None
    YR=f"v_mov_b32 {x('t2')}, {XV}\nds_read_b128 {R('F0')}, {x('t2')}\nds_read_b128 {R('F1')}, {x('t2')} offset:16"
    YC=[f"v_or3_b32 {x('t2')}, {x('F0')}, {x('F0',2)}, {x('F1')}\nv_add3_u32 {x('t3')}, {x('F0',1)}, {x('F0',3)}, {x('F1',1)}",
        f"v_or_b32 {x('t2')}, {x('t2')}, {x('F1',2)}\nv_add_u32 {x('t3')}, {x('t3')}, {x('F1',3)}",
        f"v_readfirstlane_b32 s{sMode}, {x('t2')}\nv_readfirstlane_b32 s72, {x('t3')}"]
    def near():
        if diag: A(f"s_and_b32 s57, s72, 0xffff\ns_cmp_lg_u32 s{sMode}, 0\ns_cselect_b32 s58, 0x10000, 0\ns_or_b32 s57, s57, s58\nv_writelane_b32 {x('stamp')}, s57, 4")
        A(f"s_cmp_gt_i32 s72, 0\ns_cselect_b32 s57, 1, 0\ns_xor_b32 s57, s57, s{sSide}\ns_lshl_b32 s57, s57, 13\ns_add_u32 s{sN}, s28, s57\ns_addc_u32 s{sN+1}, s29, 0")
    def marker():
        A(f"s_cmp_lg_u32 s{sMode}, 0\ns_cbranch_scc1 L_post_{X}1")
        main[0]=post; ool[0]=posto; cur[0]=post; sfx[0]=f"{X}{mode}"; A(f"L_post_{X}{mode}:"); m0v[0]=None
    def ld(sim,tag,w,dst,addr,base,off=0):
        A(f"global_load_dwordx{w} {R(dst,w)}, {x(addr)}, {sp(base)}"+(f" offset:{off}" if off else "")+" sc1")
        if sim: vm(tag)
    def doorbell(l):
        A(f"s_add_u32 s{sExp}, s{sTag}, {l}\ns_cmp_eq_u32 s{sW}, 0\ns_cbranch_scc0 {lab('db%d'%l)}\ns_mov_b64 exec, 15")
        for k in range(4): A(f"global_load_dword {x('p%d'%k)}, {x('aDc')}, {sp(sN)} offset:{128*k} sc1\ns_sleep {o['dsl']}")
        A(f"{lab('dp%d'%l)}:")
        for k in range(4):
            A(f"s_waitcnt vmcnt(3)\nv_cmp_ne_u32 vcc, s{sExp}, {x('p%d'%k)}\ns_cbranch_vccz {lab('dd%d'%l)}")
            A(f"global_load_dword {x('p%d'%k)}, {x('aDc')}, {sp(sN)} offset:{128*k} sc1\ns_sleep {o['dsl']}")
        A(f"s_add_u32 s{sTo}, s{sTo}, 1\ns_cmp_lt_u32 s{sTo}, {TMO}\ns_cbranch_scc1 {lab('dp%d'%l)}\ns_branch L_fail")
        A(f"{lab('dd%d'%l)}:\ns_mov_b64 exec, -1\n{lab('db%d'%l)}:\ns_barrier"); nbar[0]+=1
        stamp(12); m0v[0]=None
    def ring(l): A(f"s_mov_b64 exec, 3\nglobal_store_dword {x('aDp')}, {x('dbv')}, s[28:29] sc1\ns_mov_b64 exec, -1"); vm("ring")
    def swapadd(a,b): A(f"v_permlane16_swap_b32 {x(a)}, {x(b)}\nv_add_f32 {x(a)}, {x(a)}, {x(b)}")
    rs=lambda d,T:[f"v_pk_add_f32 {R(d,2)}, {R(T,2)}, {R(T,2,2)}",f"v_add_f32 {x(d)}, {x(d)}, {x(d,1)}"]
    WO=[(0,0),(1,0),(0,1),(1,1),(2,0),(3,0),(2,1),(3,1)]
    def wmm(base,ex,w1=0):
        for k,(t,s_) in enumerate(WO):
            if k==2: A(f"s_waitcnt lgkmcnt({w1})")
            smf(f"T{t}",f"A{s_}",ar(base+(t*2+s_)*8,8))
            if ex[k]: A(ex[k])
            if k in (1,3,5): slot()
    def gE2(sim,a,b0,b1):
        for j in range(4): ld(sim,f"g{j}",4,f"G{j}",a,b0 if j<2 else b1,1024*j if b0==b1 else 1024*(j&1))
    def cE2():
        for j in range(4):
            waitfor(f"g{j}"); mf(R('D'),R('SelL' if j<2 else 'SelH'),R(f"G{j}"),R('D') if j else "0"); chk(q4(f"G{j}"),j==0)
    def cspub():
        assert ("q",3) in moved
        zero("T0","T1","T2","T3")
        A(f"ds_read_b128 {R('A0')}, {x('rA')} offset:{XQ}\nds_read_b128 {R('A1')}, {x('rA')} offset:{XQ+AS}\ns_waitcnt lgkmcnt(0)")
        wmm(0,[""]*8)
        for d,T in zip(("tA","tB","tC","tD"),("T0","T1","T2","T3")): A("\n".join(rs(d,T)))
        swapadd("tA","tB"); swapadd("tC","tD")
        A(f"v_cvt_pk_bf16_f32 {x('t0')}, {x('tA')}, {x('tC')}\ns_mov_b32 exec_lo, 0\nglobal_store_dword {x('aP2')}, {x('t0')}, {sp(sLb[0])} {LOC()}\ns_mov_b32 exec_lo, -1"); vm("P")
    kg=[0]; early=[0]
    def kcs0(): gE2(True,'aC2',sLb[0],sLb[1]); kg[0]=1
    def kcs():
        assert ("k",0) in moved
        if not kg[0]: kcs0()
        zero("U0","U1")
        A(f"{lab('cc')}:"); cE2(); fin(lab('cr'))
        OOL(); retry(lab('cr'),3); gE2(False,'aC2',sLb[0],sLb[1]); A(f"s_waitcnt vmcnt(0)\ns_branch {lab('cc')}"); MAIN()
        cvtD(); wrA('xWA'); bar()
        A(f"ds_read_b128 {R('A0')}, {x('rA')} offset:{XA}\nds_read_b128 {R('A1')}, {x('rA')} offset:{XA+AS}\ns_waitcnt lgkmcnt(0)")
        for s_ in range(2):
            for t in range(2): smf(f"U{t}",f"A{s_}",ar(64+(t*2+s_)*8,8))
        for t in range(2): A(f"v_pk_add_f32 {R('kc%d'%t,2)}, {R('U%d'%t,2)}, {R('U%d'%t,2,2)}")
        lane(16); m0v[0]=None
    def prog(p,gather=None,st=None,l=None):
        for tk in p.split("_"):
            if not tk: continue
            c,a=tk[0],tk[1:]
            if c not in "ULPWZNSTHO": assert not late,tk
            if c=="L": stream(int(a))
            elif c=="P":
                n,D=map(int,a.split("."))
                while ns[0]<n:
                    if ns[0]>=D: wload(ns[0]-D)
                    stream(ns[0]+1)
            elif c=="W": wload(int(a))
            elif c=="A": waitfor("P")
            elif c=="S": A(f"s_sleep {a}")
            elif c=="M": move(int(a))
            elif c=="K": kreads()
            elif c=="B": bar()
            elif c=="F": loadF()
            elif c=="C": checkF()
            elif c=="U": setup(int(a or 9999))
            elif c=="x": kcs0()
            elif c=="V": checkF(False)
            elif c=="N": reset(int(a))
            elif c=="E": lnorm()
            elif c=="Z": flag()
            elif c=="O": probe()
            elif c=="H": assert acked("R") and int(a) in vm2; A(f"global_load_dword {x('chk')}, {x('aWm')}, {sp(sLb[int(a)])} sc1"); vm("H")
            elif c=="Y": A(YR+"\ns_waitcnt lgkmcnt(0)\n"+"\n".join(YC)); near()
            elif c=="y":
                marker()
                if mode and early[0]: A(f"s_mov_b32 exec_hi, 0\nglobal_store_dword {x('aP2')}, {x('t5')}, {sp(sLb[0])} sc1\ns_mov_b32 exec_hi, -1"); vm("P")
            elif c=="r":
                A(f"s_add_u32 s57, s{sTag}, 9\nv_mov_b32 {x('fl',1)}, s57\ns_mov_b64 exec, 1\nglobal_store_dword {x('aFl')}, {x('fl',1)}, s[28:29] offset:4 sc1\ns_mov_b64 exec, -1"); vm("bell")
            elif c=="w":
                A(f"s_add_u32 s58, s{sTag}, 9\ns_movk_i32 s57, 400\ns_mov_b64 exec, 1\n{lab('bw')}:\nglobal_load_dword {x('fl',1)}, {x('aFl')}, s[28:29] offset:-124 sc1\ns_sub_u32 s57, s57, 1\ns_waitcnt vmcnt(0)")
                A(f"v_cmp_ne_u32 vcc, s58, {x('fl',1)}\ns_cmp_eq_u32 s57, 0\ns_cbranch_scc1 {lab('bx')}\ns_cbranch_vccnz {lab('bw')}\n{lab('bx')}:\ns_mov_b64 exec, -1"); done[0]=len(Q); m0v[0]=None
            elif c=="Q": cspub()
            elif c=="X": kcs()
            elif c=="D": doorbell(l)
            elif c=="R": ring(l)
            elif c=="T": lane(int(a))
            elif c=="G": stamp(st); gather(True)
            else: raise Exception(tk)
    def edge(e,p,gather,check,kind,st,l,prep=None,loc=False):
        m0v[0]=None
        if "_J" in p:
            p1,p2=p.split("_J"); assert not set(p2)&set("CXDGF")
            prog(p1,gather,st,l)
            if prep: prep()
            check(lab('j%d'%e))
            snap=lambda:(list(Q),done[0],ns[0],set(moved),nbar[0],wfree[0])
            def rest(s_): Q[:]=s_[0]; done[0]=s_[1]; ns[0]=s_[2]; moved.clear(); moved.update(s_[3]); nbar[0]=s_[4]; wfree[0]=s_[5]; m0v[0]=None
            s0=snap(); m0v[0]=None; prog(p2,gather,st,l); A(f"{lab('k%d'%e)}:"); s1=snap()
            rest(s0); OOL(); A(f"{lab('j%d'%e)}:")
            if diag: A(f"s_add_u32 s{sRt}, s{sRt}, {1<<(8*kind)}")
            gather(True); prog(p2,gather,st,l)
            A(f"{lab('c%d'%e)}:"); check(lab('r%d'%e)); A(f"s_branch {lab('k%d'%e)}")
            retry(lab('r%d'%e),kind,loc and not mode); gather(False); A(f"s_waitcnt vmcnt(0)\ns_branch {lab('c%d'%e)}"); MAIN()
            rest(s1); return
        prog(p,gather,st,l)
        if prep: prep()
        A(f"{lab('c%d'%e)}:"); check(lab('r%d'%e))
        OOL(); retry(lab('r%d'%e),kind,loc and not mode); gather(False); A(f"s_waitcnt vmcnt(0)\ns_branch {lab('c%d'%e)}"); MAIN()
        m0v[0]=None
    def E1(e,p,l,prep=None):
        def g(sim): ld(sim,"g0",4,'G0','aG1',sN); ld(sim,"g1",4,'G1','aG1',sN,1024)
        def c(fail):
            waitfor("g0"); mf(R('D'),R('Sel'),R('G0'),"0"); chk(q4('G0')); waitfor("g1"); mf(R('D'),R('Sel'),R('G1'),R('D')); chk(q4('G1'),False); fin(fail)
        edge(e,p,g,c,0,0,l,prep)
    CQ=hex(f2u(128**-0.5*1.4426950408889634))
    def layer(l,pe1,pe2,pe3,spr):
        j=l>>1; B=sLb[j]; curl[0]=l
        if l: E1(3*l-1,pe1,l,lambda:zero("T0","T1","T2","T3"))
        if spr: tgt[0]=spr[0]
        stamp(1)
        cvtD(); wrA('xWQ')
        slot(); bar()
        if l: A(f"ds_read_b128 {R('Ag')}, {x('rG')} offset:{XQ}")
        A(f"ds_read_b128 {R('A0')}, {x('rA')} offset:{XQ}\nds_read_b128 {R('A1')}, {x('rA')} offset:{XQ+AS}")
        slot()
        if l:
            A("s_waitcnt lgkmcnt(2)"); mf(R('Tg'),R('Ag'),R('Ag'),"0")
            ex=["","",
                f"v_add_f32 {x('st')}, {x('Tg')}, {x('Tg',1)}\nv_add_f32 {x('st',1)}, {x('Tg',2)}, {x('Tg',3)}",
                f"v_cndmask_b32 {x('st')}, {x('st')}, {x('st',1)}, {sp(mCC)}",
                f"v_add_f32_dpp {x('st')}, {x('st')}, {x('st')} quad_perm:[1,0,3,2] {DP}",
                f"v_add_f32_dpp {x('st')}, {x('st')}, {x('st')} quad_perm:[2,3,0,1] {DP}",
                f"v_add_f32_dpp {x('st')}, {x('st')}, {x('st')} row_half_mirror {DP}\n"+rs('tA','T0')[0],
                rs('tB','T1')[0]+"\n"+rs('tA','T0')[1]]
        else: ex=[""]*6+[rs('tA','T0')[0],rs('tB','T1')[0]+"\n"+rs('tA','T0')[1]]
        A("s_waitcnt lgkmcnt(1)")
        wmm(0,ex)
        A(rs('tB','T1')[1])
        if l: A(f"s_mov_b64 exec, {sp(mS2)}\nglobal_store_dword {x('aPS2')}, {x('st')}, {sp(B)} {LOC()}\ns_mov_b64 exec, -1"); vm("P")
        swapadd("tA","tB")
        A(rs('tC','T2')[0]+"\n"+rs('tD','T3')[0]+"\n"+rs('tC','T2')[1]+"\n"+rs('tD','T3')[1])
        A("s_mov_b32 exec_hi, 0")
        swapadd("tC","tD")
        if l==0 and "y" in pe2:
            early[0]=1; A(f"v_cvt_pk_bf16_f32 {x('t5')}, {x('tA')}, {x('tC')}\nglobal_store_dword {x('aP2')}, {x('t5')}, {sp(B)}"); vm("P")
        else: A(f"v_cvt_pk_bf16_f32 {x('t0')}, {x('tA')}, {x('tC')}\nglobal_store_dword {x('aP2')}, {x('t0')}, {sp(B)} {LOC()}"); vm("P")
        A("s_mov_b32 exec_hi, -1")
        stamp(2)
        A(f"ds_write_b128 {x('xFw')}, {R('D' if l else 'X4')}")
        A(f"s_add_u32 s57, s{sTag}, {l+1}\nv_mov_b32 {x('dbv')}, s57")
        def g(sim):
            gE2(sim,'aG2',B,B)
            if l: ld(sim,"g4",4,'S','aS2',B)
        def c(fail):
            cE2()
            if l: waitfor("g4"); chk(q4('S')[:3],False)
            fin(fail)
        def prep():
            zero("T0","T1","T2","T3","L0","L1")
            if l: A(f"v_mov_b64 {R('U0',2,2)}, 0\nv_mov_b64 {R('U1',2,2)}, 0")
            else: zero("U0","U1")
        edge(3*l,pe2,g,c,1,3,l,prep,l>0 or "y" in pe2)
        assert ("k",0) in moved
        if spr: tgt[0]=spr[1]
        stamp(4)
        cvtD(); wrA('xWA')
        if l:
            A(f"v_add_f32 {x('st')}, {x('S')}, {x('S',1)}\nv_add_f32_dpp {x('st',1)}, {x('S',2)}, {x('S',2)} row_ror:1 {DP}")
            A(f"v_add_f32_dpp {x('st')}, {x('st')}, {x('st')} row_ror:1 {DP}\nv_add_f32_dpp {x('st',1)}, {x('st',1)}, {x('st',1)} row_ror:2 {DP}")
        vlate=("v",0) not in moved
        if vlate and o["vpos"]==1: wload(31)
        slot(); bar()
        A(f"ds_read_b128 {R('A0')}, {x('rA')} offset:{XA}\nds_read_b128 {R('A1')}, {x('rA')} offset:{XA+AS}")
        nl=0
        ym=l==0 and main[0] is pre
        if ym: A(YR); nl+=2
        if vlate and o["vpos"]==1: trV(); nl+=16
        stamp(5)
        if l:
            A(f"v_add_f32_dpp {x('st')}, {x('st')}, {x('st')} row_ror:2 {DP}\nv_add_f32_dpp {x('st',1)}, {x('st',1)}, {x('st',1)} row_ror:4 {DP}")
            A(f"v_add_f32_dpp {x('st')}, {x('st')}, {x('st')} row_ror:4 {DP}\nv_add_f32_dpp {x('st',1)}, {x('st',1)}, {x('st',1)} row_ror:8 {DP}")
            A(f"v_add_f32_dpp {x('st')}, {x('st')}, {x('st')} row_ror:8 {DP}\nv_mul_f32 {x('ab',1)}, {hex(f2u(-1/1024))}, {x('st',1)}")
            for t in range(2): A(f"v_pk_mul_f32 {R('U%d'%t,2)}, {R('kc%d'%t,2)}, {R('ab',2)} op_sel:[0,1] op_sel_hi:[1,1]")
            ex=[f"v_mul_f32 {x('t0')}, {x('ab',1)}, {x('ab',1)}\nv_mul_f32 {x('t1')}, {hex(f2u(1/1024))}, {x('st')}",
                f"v_sub_f32 {x('t1')}, {x('t1')}, {x('t0')}\nv_max_f32 {x('t1')}, 0, {x('t1')}",
                f"v_add_f32 {x('t1')}, {hex(f2u(1e-5))}, {x('t1')}\nv_rsq_f32 {x('t1')}, {x('t1')}",
                f"v_mul_f32 {x('ab')}, {CQ}, {x('t1')}"]
        elif ym: ex=["",f"s_waitcnt lgkmcnt({min(nl-2,15)})\n"+YC[0],YC[1],YC[2]]
        else: ex=[""]*4
        slot()
        for s_ in range(2):
            A(f"s_waitcnt lgkmcnt({min(nl+1-s_,15)})")
            for t in range(2):
                smf(f"U{t}",f"A{s_}",ar(64+(t*2+s_)*8,8))
                if ex[2*s_+t]: A(ex[2*s_+t])
            slot()
        A(f"v_pk_add_f32 {R('tA',2)}, {R('U0',2)}, {R('U0',2,2)}\nv_pk_add_f32 {R('tB',2)}, {R('U1',2)}, {R('U1',2,2)}")
        A(f"v_max_f32 {x('mx')}, {x('tA')}, {x('tB')}\nv_max_f32 {x('mx',1)}, {x('tA',1)}, {x('tB',1)}")
        for k in (1,2,4,8): A(f"v_max_f32_dpp {x('mx')}, {x('mx')}, {x('mx')} row_ror:{k} {DP}\nv_max_f32_dpp {x('mx',1)}, {x('mx',1)}, {x('mx',1)} row_ror:{k} {DP}")
        A(f"v_pk_mul_f32 {R('mx',2)}, {R('mx',2)}, {R('ab',2)} op_sel_hi:[1,0]\nv_ceil_f32 {x('mx')}, {x('mx')}\nv_ceil_f32 {x('mx',1)}, {x('mx',1)}")
        for T in ("tA","tB"): A(f"v_pk_fma_f32 {R(T,2)}, {R(T,2)}, {R('ab',2)}, {R('mx',2)} op_sel_hi:[1,0,1] neg_lo:[0,0,1] neg_hi:[0,0,1]")
        A(f"v_exp_f32 {x('tA')}, {x('tA')}\nv_exp_f32 {x('tB')}, {x('tB')}\nv_exp_f32 {x('tA',1)}, {x('tA',1)}\nv_exp_f32 {x('tB',1)}, {x('tB',1)}")
        A(f"v_cvt_pk_bf16_f32 {x('t0')}, {x('tA')}, {x('tB')}\nds_write_b64 {x('mW')}, {R('mx',2)}\nv_cvt_pk_bf16_f32 {x('t1')}, {x('tA',1)}, {x('tB',1)}")
        A(f"ds_write2_b32 {x('pW')}, {x('t0')}, {x('t1')} offset0:0 offset1:4")
        vlate=("v",0) not in moved
        if vlate: wload(31)
        if ym: marker()
        slot(); bar()
        A(f"ds_read_b128 {R('A0')}, {x('rP')} offset:{XP}\nds_read_b128 {R('W0')}, {x('mR')}\nds_read_b128 {R('W1')}, {x('mR')} offset:16\nds_read_b128 {R('A1')}, {x('rP')} offset:{XP+AS}")
        if vlate: trV()
        stamp(6); slot()
        mxs=[f"v_max3_f32 {x('P4',h)}, {x('W0',h)}, {x('W0',2+h)}, {x('W1',h)}" for h in (0,1)]+[f"v_max_f32 {x('P4',h)}, {x('P4',h)}, {x('W1',2+h)}" for h in (0,1)]
        sub=[f"v_pk_add_f32 {R(W,2,h)}, {R(W,2,h)}, {R('P4',2)} neg_lo:[0,1] neg_hi:[0,1]" for W in ("W0","W1") for h in (0,2)]
        ex_=[f"v_exp_f32 {x(W,h)}, {x(W,h)}" for W in ("W0","W1") for h in range(4)]
        if vlate:
            A("s_waitcnt lgkmcnt(15)"); A("\n".join(mxs+sub+ex_)); smf("L0","A0",R('One',8)); smf("L1","A1",R('One',8)); A("s_waitcnt lgkmcnt(8)")
            smf("T0","A0",ar(96,8)); smf("T1","A0",ar(112,8)); A("s_waitcnt lgkmcnt(0)"); smf("T2","A1",ar(104,8)); smf("T3","A1",ar(120,8))
        else:
            A("s_waitcnt lgkmcnt(3)"); smf("T0","A0",ar(96,8)); A("s_waitcnt lgkmcnt(1)\n"+mxs[0]+"\n"+mxs[1])
            smf("T1","A0",ar(112,8)); A(mxs[2]+"\n"+mxs[3]+"\ns_waitcnt lgkmcnt(0)")
            smf("T2","A1",ar(104,8)); A(sub[0]+"\n"+sub[1])
            smf("T3","A1",ar(120,8)); A(sub[2]+"\n"+sub[3])
            smf("L0","A0",R('One',8)); A(ex_[0]+"\n"+ex_[1])
            smf("L1","A1",R('One',8)); A("\n".join(ex_[2:]))
        def comb(d,Ta,Tb,do=0):
            return [f"v_pk_mul_f32 {R(d,2,do)}, {R(Ta,2)}, {R('W0',2)}",f"v_pk_fma_f32 {R(d,2,do)}, {R(Ta,2,2)}, {R('W0',2,2)}, {R(d,2,do)}",
                    f"v_pk_fma_f32 {R(d,2,do)}, {R(Tb,2)}, {R('W1',2)}, {R(d,2,do)}",f"v_pk_fma_f32 {R(d,2,do)}, {R(Tb,2,2)}, {R('W1',2,2)}, {R(d,2,do)}"]
        for a_,b_ in zip(comb('tA','T0','T2'),comb('tB','T1','T3')): A(a_+"\n"+b_)
        A(f"v_cvt_pk_bf16_f32 {x('t0')}, {x('tA')}, {x('tB')}\nv_cvt_pk_bf16_f32 {x('t1')}, {x('tA',1)}, {x('tB',1)}")
        cl=comb('P4','L0','L1',2)
        assert acked("R") and len(vm2)==2
        A(f"global_store_dword {x('aP3')}, {x('t0')}, {sp(B)} {LOC()}\n{cl[0]}\n{cl[1]}\nglobal_store_dword {x('aP3')}, {x('t1')}, {sp(B)} offset:256 {LOC()}\n{cl[2]}\n{cl[3]}"); vm("P"); vm("P")
        A(f"s_mov_b64 exec, {sp(mS3)}\nglobal_store_dwordx4 {x('aPS3')}, {R('P4')}, {sp(B)} {LOC()}\ns_mov_b64 exec, -1"); vm("P")
        stamp(7)
        if l<3 and RING[l]==0: ring(l)
        def resid():
            A(f"v_add_u32 {x('t2')}, {2*FS}, {x('xFr')}")
            for k,(a_,F,h) in enumerate((('xFr','F0',0),('xFr','F0',2),('t2','F1',0),('t2','F1',2))): A(f"ds_read2_b32 {R(F,2,h)}, {x(a_)} offset0:{(k&1)*FS//4} offset1:{(k&1)*FS//4+4}")
            zero("T0","T1","T2","T3")
            A(f"s_waitcnt lgkmcnt(0)\nv_pk_add_f32 {R('F0',2)}, {R('F0',2)}, {R('F0',2,2)}\nv_pk_add_f32 {R('F1',2)}, {R('F1',2)}, {R('F1',2,2)}\nv_pk_add_f32 {R('F0',2)}, {R('F0',2)}, {R('F1',2)}")
            A(f"v_cvt_pk_bf16_f32 {x('t2')}, {x('F0')}, {x('F0',1)}\nv_lshlrev_b32 {x('xr')}, 16, {x('t2')}\nv_and_b32 {x('xr',1)}, 0xffff0000, {x('t2')}")
            A(f"v_mul_f32 {x('xr')}, s{sXs}, {x('xr')}\nv_mul_f32 {x('xr',1)}, s{sXs}, {x('xr',1)}")
        def g(sim):
            ld(sim,"g2",3,'S','aS3',B); ld(sim,"g0",4,'G0','aG3',B); ld(sim,"g1",4,'G1','aG3',B,2048)
            if sim and l<3 and RING[l]==1: ring(l)
        def c(fail):
            waitfor("g2")
            A(f"v_max_f32_dpp {x('st')}, {x('S')}, {x('S')} quad_perm:[1,0,3,2] {DP}")
            A(f"v_max_u32 {x('chk')}, {x('S')}, {x('S',2)}")
            A(f"v_max_f32_dpp {x('st')}, {x('st')}, {x('st')} quad_perm:[2,3,0,1] {DP}")
            A(f"v_max_f32_dpp {x('st')}, {x('st')}, {x('st')} row_half_mirror {DP}")
            A(f"v_subrev_f32_dpp {x('t0')}, {x('st')}, {x('S')} row_newbcast:0 {DP}")
            A(f"v_exp_f32 {x('t0')}, {x('t0')}")
            waitfor("g0"); chk(q4('G0'),False)
            A(f"v_perm_b32 {x('t1')}, {x('t0')}, {x('t0')}, s{sPerm}\nv_mul_f32 {x('st',1)}, {x('t0')}, {x('S',2)}")
            for e in range(4): A(f"v_and_b32_dpp {x('A0',e)}, {x('t1')}, {x('Msk',e)} row_newbcast:8 {DP}")
            for e in range(2): A(f"v_and_b32_dpp {x('A1',e)}, {x('t1')}, {x('Msk',e)} row_newbcast:9 {DP}")
            mf(R('D'),R('A0'),R('G0'),"0")
            for e in range(2,4): A(f"v_and_b32_dpp {x('A1',e)}, {x('t1')}, {x('Msk',e)} row_newbcast:9 {DP}")
            A(f"v_add_f32_dpp {x('st',1)}, {x('st',1)}, {x('st',1)} quad_perm:[1,0,3,2] {DP}")
            waitfor("g1")
            mf(R('D'),R('A1'),R('G1'),R('D'))
            chk(q4('G1'),False)
            A(f"v_add_f32_dpp {x('st',1)}, {x('st',1)}, {x('st',1)} quad_perm:[2,3,0,1] {DP}")
            A(f"v_cmp_eq_u32 vcc, -1, {x('chk')}")
            A(f"v_add_f32_dpp {x('st',1)}, {x('st',1)}, {x('st',1)} row_half_mirror {DP}")
            A(f"s_cbranch_vccnz {fail}")
        if o.get("rpos",0)==0: resid()
        edge(3*l+1,pe3,g,c,2,8,l,resid if o.get("rpos",0) else None,True)
        assert ("o",3) in moved
        stamp(9)
        A(f"s_mov_b64 exec, 1\nds_write_b64 {x('lW')}, {R('st',2)}")
        if l<3 and RING[l]==2: A(f"s_mov_b64 exec, 3\nglobal_store_dword {x('aDp')}, {x('dbv')}, s[28:29] sc1"); vm("ring")
        A("s_mov_b64 exec, -1")
        cvtD(); wrA('xWO')
        bar()
        A(f"ds_read_b128 {R('A0')}, {x('rA')} offset:{XO}\nds_read_b128 {R('F0')}, {x('lR')}\nds_read_b128 {R('F1')}, {x('lR2')}\nds_read_b128 {R('A1')}, {x('rA')} offset:{XO+AS}")
        stamp(10)
        if l<3 and RING[l]==3: ring(l)
        Ms=[x('F0'),x('F0',2),x('F1'),x('F1',2)]; Ls=[x('F0',1),x('F0',3),x('F1',1),x('F1',3)]
        pa=lambda d,T:f"v_pk_add_f32 {R(d,2)}, {R(T,2)}, {R(T,2,2)}"
        mw=lambda d:[f"v_mul_f32 {x(d)}, {x(d)}, {x('W0')}",f"v_fma_f32 {x(d)}, {x(d,1)}, {x('W0',1)}, {x(d)}"]
        ex=[f"s_waitcnt lgkmcnt(1)\nv_max3_f32 {x('t0')}, {Ms[0]}, {Ms[1]}, {Ms[2]}",
            f"v_max_f32 {x('t0')}, {x('t0')}, {Ms[3]}\nv_sub_f32 {x('W0')}, {Ms[0]}, {x('t0')}",
            f"v_sub_f32 {x('W0',1)}, {Ms[1]}, {x('t0')}\nv_exp_f32 {x('W0')}, {x('W0')}",
            f"v_sub_f32 {x('W0',2)}, {Ms[2]}, {x('t0')}\nv_exp_f32 {x('W0',1)}, {x('W0',1)}",
            f"v_sub_f32 {x('W0',3)}, {Ms[3]}, {x('t0')}\nv_exp_f32 {x('W0',2)}, {x('W0',2)}",
            f"v_mul_f32 {x('t1')}, {x('W0')}, {Ls[0]}\nv_exp_f32 {x('W0',3)}, {x('W0',3)}",
            f"v_fma_f32 {x('t1')}, {x('W0',1)}, {Ls[1]}, {x('t1')}\n"+pa('tA','T0')+"\n"+pa('tB','T1'),
            f"v_fma_f32 {x('t1')}, {x('W0',2)}, {Ls[2]}, {x('t1')}\n"+mw('tA')[0]+"\n"+mw('tB')[0]]
        A("s_waitcnt lgkmcnt(3)")
        wmm(128,ex)
        A(f"v_fma_f32 {x('t1')}, {x('W0',3)}, {Ls[3]}, {x('t1')}\n"+mw('tA')[1]+"\n"+mw('tB')[1]+f"\nv_rcp_f32 {x('t1')}, {x('t1')}")
        swapadd("tA","tB")
        A(pa('tC','T2')+"\n"+pa('tD','T3')+"\n"+mw('tC')[0]+"\n"+mw('tD')[0]+"\n"+mw('tC')[1]+"\n"+mw('tD')[1])
        A(f"v_fma_f32 {x('tA')}, {x('tA')}, {x('t1')}, {x('xr')}")
        swapadd("tC","tD")
        A(f"v_fma_f32 {x('tC')}, {x('tC')}, {x('t1')}, {x('xr',1)}\nv_cvt_pk_bf16_f32 {x('t0')}, {x('tA')}, {x('tC')}\nglobal_store_dword {x('aP1')}, {x('t0')}, {sp(B)} sc1"); vm("P")
        stamp(11)
        if l<3 and RING[l]==4: ring(l)
        flush(l)
    def lnorm():
        waitfor("x")
        H=lambda k:x('G0',k) if k<4 else x('G1',k-4)
        A(f"v_mov_b64 {R('st',2)}, 0")
        for k in range(8): A(f"v_dot2_f32_bf16 {x('st')}, {H(k)}, {H(k)}, {x('st')}\nv_dot2_f32_bf16 {x('st',1)}, {H(k)}, {x('One')}, {x('st',1)}")
        A(f"v_lshlrev_b32 {x('X4')}, 16, {x('c01')}\nv_and_b32 {x('X4',1)}, 0xffff0000, {x('c01')}\nv_lshlrev_b32 {x('X4',2)}, 16, {x('c01',1)}\nv_and_b32 {x('X4',3)}, 0xffff0000, {x('c01',1)}")
        for k in (1,2,4,8): A(f"v_add_f32_dpp {x('st')}, {x('st')}, {x('st')} row_ror:{k} {DP}\nv_add_f32_dpp {x('st',1)}, {x('st',1)}, {x('st',1)} row_ror:{k} {DP}")
        for wd in (16,32):
            A(f"v_mov_b64 {R('mx',2)}, {R('st',2)}\nv_permlane{wd}_swap_b32 {x('mx')}, {x('st')}\nv_permlane{wd}_swap_b32 {x('mx',1)}, {x('st',1)}\nv_pk_add_f32 {R('st',2)}, {R('st',2)}, {R('mx',2)}")
        A(f"v_mul_f32 {x('ab',1)}, {hex(f2u(-1/1024))}, {x('st',1)}\nv_mul_f32 {x('t0')}, {x('ab',1)}, {x('ab',1)}\nv_mul_f32 {x('t1')}, {hex(f2u(1/1024))}, {x('st')}")
        A(f"v_sub_f32 {x('t1')}, {x('t1')}, {x('t0')}\nv_max_f32 {x('t1')}, 0, {x('t1')}\nv_add_f32 {x('t1')}, {hex(f2u(1e-5))}, {x('t1')}\nv_rsq_f32 {x('t1')}, {x('t1')}\nv_mul_f32 {x('t1')}, {hex(f2u(0.25))}, {x('t1')}")
        for k in range(4): A(f"v_add_f32 {x('D',k)}, {x('X4',k)}, {x('ab',1)}\nv_mul_f32 {x('D',k)}, {x('D',k)}, {x('t1')}\nv_mul_f32 {x('X4',k)}, {hex(f2u(0.25))}, {x('X4',k)}")
        A(f"v_mov_b32 {x('ab')}, {CQ}")
        zero("T0","T1","T2","T3")
    if not role:
        prog(o["ap"]); assert ("q",3) in moved
        lane(3)
        tgt[0]=o["aq"]
        layer(0,None,o["a0"],o["a1"],(o["aq"],o["asp"][0]))
        assert ns[0]==48
        prog(o["acs"])
        layer(2,o["a2"],o["a3"],o["a4"],None)
    else:
        prog(o["bp"])
        if main[0] is pre: marker()
        lane(3)
        layer(1,o["b1"],o["b2"],o["b3"],o["bsp"])
        assert ns[0]==48
        A(f"v_add_u32 {x('aG1')}, {2*S}, {x('aG1')}")
        layer(3,o["b4"],o["b5"],o["b6"],None)
        A(f"s_and_b32 s57, s{sR}, 3\ns_xor_b32 s57, s57, s{sG}\ns_or_b32 s57, s57, s{sI}\ns_cmp_eq_u32 s57, 0\ns_cbranch_scc0 L_fail")
        A(f"v_add_u32 {x('aG1')}, {S}, {x('aG1')}\ns_lshl_b32 s57, s{sR}, 8\ns_sub_u32 s57, s57, {XF//2}\nv_lshrrev_b32 {x('t3')}, 1, {x('xFw')}\nv_add_u32 {x('t3')}, s57, {x('t3')}\nv_mov_b32 {x('t4')}, {NONCE}\nv_mov_b32 {x('fl')}, s{sTag}")
        E1(11,o["b7"],4)
        stamp(0)
        A(f"ds_write_b128 {x('xFw')}, {R('D')}"); bar()
        if diag: A(f"v_writelane_b32 {x('stamp')}, s76, 60")
        A(f"s_cmp_eq_u32 s{sW}, 0\ns_cbranch_scc0 L_fail")
        for k in range(4): A(f"ds_read_b128 {R('F%d'%k)}, {x('xFw')} offset:{k*FS}")
        A("s_waitcnt lgkmcnt(0)")
        for h in (0,2):
            A(f"v_pk_add_f32 {R('F0',2,h)}, {R('F0',2,h)}, {R('F1',2,h)}\nv_pk_add_f32 {R('F2',2,h)}, {R('F2',2,h)}, {R('F3',2,h)}\nv_pk_add_f32 {R('F0',2,h)}, {R('F0',2,h)}, {R('F2',2,h)}")
        cvtD('F0')
        A(f"s_mov_b32 exec_hi, 0\nglobal_store_dwordx2 {x('t3')}, {R('c01',2)}, s[24:25]")
        A(f"s_cmp_eq_u32 s{sR}, 0\ns_cbranch_scc0 L_fail")
        A(f"s_mov_b64 exec, 1\nglobal_store_dword {x('t4')}, {x('fl')}, s[28:29] sc1")
    A("s_branch L_fail" if diag else "s_endpgm")
    return pre,preo,post,posto
def gen(name=NAME, **kw):
    o=dict(DEF); o.update(kw); diag=o["diag"]
    L=HDR.rstrip("\n").split("\n")
    L.append(f"; @launch grid=(256,1,1) block=(256,1,1) lds={LDSSZ}")
    L+=f'.amdgcn_target "amdgcn-amd-amdhsa--gfx950"\n.text\n.globl {name}_kernel\n.p2align 8\n.type {name}_kernel,@function\n{name}_kernel:'.split("\n")
    L+="s_cmp_ge_u32 s2, 256\ns_cbranch_scc1 L_end\ns_load_dwordx16 s[4:19], s[0:1], 0\ns_load_dwordx8 s[20:27], s[0:1], 64\ns_load_dwordx2 s[28:29], s[0:1], 96\ns_bitcmp1_b32 s2, 0\ns_cbranch_scc1 L_B".split("\n")
    alt=[]
    for role in (0,1):
        pre,preo,post,posto=path(role,0,o); L+=pre+post+preo+posto+[f"L_end{'AB'[role]}:","s_endpgm"]
        pre,preo,post,posto=path(role,1,o); alt+=post+posto
    L+=alt
    L.append("L_fail:")
    if diag:
        L+=("s_mov_b64 exec, -1\ns_memrealtime s[76:77]\ns_memtime s[78:79]\ns_waitcnt lgkmcnt(0)\ns_sub_u32 s78, s78, s74\n"
            f"v_writelane_b32 {x('stamp')}, s76, 61\nv_writelane_b32 {x('stamp')}, s78, 62\nv_writelane_b32 {x('stamp')}, s{sTo}, 63\n"
            f"s_lshl_b32 s57, s2, 10\ns_lshl_b32 s58, s{sW}, 8\ns_add_u32 s57, s57, s58\ns_add_u32 s57, s57, {DIAG}\nv_lshl_add_u32 {x('t0')}, v0, 2, s57\nglobal_store_dword {x('t0')}, {x('stamp')}, s[28:29]").split("\n")
    L+=["L_end:","s_endpgm"]
    L+=f'.section .rodata,"a"\n.p2align 6\n.amdhsa_kernel {name}_kernel\n  .amdhsa_next_free_vgpr 512\n  .amdhsa_next_free_sgpr 102\n  .amdhsa_accum_offset 256\n  .amdhsa_group_segment_fixed_size 0\n  .amdhsa_kernarg_size 104\n  .amdhsa_user_sgpr_count 2\n  .amdhsa_user_sgpr_kernarg_segment_ptr 1\n  .amdhsa_system_sgpr_workgroup_id_x 1\n.end_amdhsa_kernel'.split("\n")
    out,n=fix(L,verbose=("-v" in sys.argv))
    return "\n".join(out)+"\n"
def parse(args):
    kw={}
    for a in args:
        if "=" in a:
            k,val=a.split("=")
            if isinstance(DEF.get(k),str): kw[k]=val
            else: kw[k]=tuple(int(z) for z in val.split(",")) if "," in val else int(val)
    return kw
if __name__=="__main__":
    t=gen(**parse(sys.argv[2:]))
    if "diag=1" in sys.argv: t+="; args: "+" ".join(a for a in sys.argv[2:] if a!="diag=1")+"\n"
    open(sys.argv[1],"w").write(t)
```

```python
def A(d,g=38,aq=None,post="G_B_L44_K_M32_T20",a1="S2_G_B_M40_M44_M48_T21",d0=None,d2=None,pre="N1_C"):
    aq=aq or 16+d+3; d0=d0 or d; d2=d2 or d
    return f"an0={d0} ap=U_Z_H0_E_T18_P{8+d}.{d}_M8_P{12+d}.{d}_F_M12_P{16+d}.{d}_M16_T19 aq={aq} a0={pre}_P{g}.{d2}_{post} a1={a1}"
def B(d,d2=None,d3=None):
    d2=d2 or d; d3=d3 or d2
    return (f"bn0={d} bp=U_Z_H0_H1_O_P{8+d}.{d}_T5_M8_P{12+d}.{d}_F_M12_P{16+d}.{d}_M16_T6_L{17+d}_Q_T7_P{min(32,24+d2)}.{d2}_K_T8_C_B_Y_P{32+d3}.{d3}_M32_T9_x_"
            f"P{min(48,40+d3)}.{d3}_M40_L48_X_M44_M48_T10")
BASE="base ring=3,3,3 br0=01 b1=D_G b2=S2_G b3=S2_G bsp=48,48,48 asp=48,48"
def w(L): open("l1.txt","w").write("\n".join([BASE]+L)+"\n")
def A6(d,g,post,asp,a1,aq=None,pre="C_B_Y_y",x="ar0=01",d2=None,fp=12):
    aq=aq or 16+d+3; d2=d2 or d
    return f"an0={d} ap=U_Z_H0_E_T18_P{8+d}.{d}_M8_P{12+d}.{d}_F_M12_P{16+d}.{d}_M16_T19 aq={aq} a0={pre}_P{g}.{d2}_G_{post}_T20 asp={asp},{asp} a1={a1}_T21 "+x
def B3(d,d2,d3,xp=None):
    cp=min(32,max(16+d,13+2*d))
    xp=xp or 32+d3
    return (f"bn0={d} bp=U_Z_H0_H1_O_P{8+d}.{d}_T5_M8_P{12+d}.{d}_F_M12_P{16+d}.{d}_M16_T6_P{cp}.{d}_C_B_Y_y_L{cp+1}_Q_T7_P{min(32,24+d2)}.{d2}_K_T8_P{32+d3}.{d3}_M32_T9_P{xp}.{d3}_x_"
            f"P{min(48,40+d3)}.{d3}_M40_L48_X_M44_M48_T10")
def B4(n0,q,d,d3=None,fp=None):
    d3=d3 or d; n=int(q.split(".")[0]);
    s=f"bn0={n0} bp=U_Z_H0_H1_O_P{q}_T5_F_"
    if n<8+d: s+=f"P{8+d}.{d}_M8_"
    if n<12+d: s+=f"P{12+d}.{d}_M12_"
    s+=f"P{16+d}.{d}_M16_T6_C_B_Y_y_L{min(32,18+d)}_Q_T7_P{24+d}.{d}_K_T8_P{min(48,32+d3)}.{d3}_M32_T9_x_P{min(48,40+d3)}.{d3}_M40_L48_X_M44_M48_T10"
    return s
def B5(n0,d,d3=None,pre=""):
    d3=d3 or d
    s=f"bn0={n0} bp=U_Z_H0_H1_O_{pre}w_T5_F_"
    s+=f"P{8+d}.{d}_M8_C_P{12+d}.{d}_M12_Y_y_"
    s+=f"P{16+d}.{d}_M16_T6_L{min(32,18+d)}_Q_T7_B_P{24+d}.{d}_K_T8_P{min(48,32+d3)}.{d3}_M32_T9_x_P{min(48,40+d3)}.{d3}_M40_L48_X_M44_M48_T10"
    return s
import re
def bell(a,where):
    assert where in a; return a.replace(where,where+"_r",1)
```

```python
import sys,re
from mk import *
import gen5
E=lambda d:f"P48.{d}_G_M40_M44_M48"; E0="S2_G_B_M40_M44_M48"
a=sys.argv[1:]
for n,e in zip(a[::2],a[1::2]):
    s=BASE[4:]+" "+eval(e); s=s if "enc=" in s else re.sub(r"_T\d+","",s)
    open(f"kv/{n}.s","w").write(gen5.gen(**gen5.parse(s.split()))); print(n,s)
```

```python
import sys, math, struct
from hz import fix
NAME="interleave_layers__sliding_block_cached__sliding_block_cached__decode"
HDR=open("cdna_kernels/%s.s.ref"%NAME).read().split("; Override launch")[0]
def f2u(x): return struct.unpack("<I",struct.pack("<f",x))[0]
AS=1056
XQ=0; XA=2*AS; XO=4*AS; XP=6*AS; XM=8*AS; XR=XM+128; XV=XR+32; XF=XV+32; FS=528
BUFK=0x2c00; VS=8320; BUFV=BUFK+0x8000; WS=16416; BUFW=BUFV+4*VS; LDSSZ=BUFW+4*WS
assert XF+4*FS<=BUFK and XF%16==0
S=0x20000; DB=0x80000; PRB=0xC0000; MISC=0x100000; ST2=MISC+0x10000; ST3=MISC+0x14000; CS=MISC+0x18000
FLG=0x1A0000; NONCE=0x1A8000; E3=0x200000; DIAG=6<<20
class Regs:
    def __init__(s,n0): s.n=n0; s.d={}
    def __call__(s,name,k=1,al=1):
        s.n=(s.n+al-1)//al*al; s.d[name]=s.n; s.n+=k; return s.d[name]
ORDER=[("q",q) for q in range(16)]+[("k",q) for q in range(8)]+[("v",q) for q in range(8)]+[("o",q) for q in range(16)]
DEF=dict(diag=0, TMO=30000, slp=2, slpl=1, wfl=0, kfl=0, pf=1, force=0, dsl=3, ring=(3,1,1), vpos=2,
         an0=16, ap="U_Z_H0_L24_E_M8_M16", aq=24, br0="", ar0="0",
         a0="N1_F_L26_W21_C_G_B_L32_K", a1="L40_S2_G_B_L48_M40_M48", acs="F_H1_V_Q_X_Y", a2="D_G", a3="S2_G", a4="S2_G",
         asp=(36,48),
         bn0=2, bp="U_N0_N1_Z_O_H0_H1_P12.2_F_P24.8_C_M16_B_Y_Q_P32.8_K_X_M32_P40.8",
         b1="D_G_B_L44", b2="S2_G_B_L48", b3="S2_G_M48", b4="D_G", b5="S2_G", b6="S2_G", b7="A_G",
         bsp=(44,48,48), sk=1)
FL=['nt','','sc1','sc0 sc1','sc1 nt','sc0']
V=Regs(1)
for n in "Sel SelL SelH Msk G0 G1 G2 G3 S D T0 T1 T2 T3 U0 U1 L0 L1 Tg Ag A0 A1 W0 W1 F0 F1 F2 F3 Neg P4 X4 fF".split(): V(n,4,4)
V("One",8,4)
for n in "c01 st ab tA tB tC tD kc0 kc1 xr pa fl mx".split(): V(n,2,2)
for n in ("aG1 aG2 aC2 aS2 aG3 aS3 aP2 aPS2 aP3 aPS3 aP1 aR aWm aF aFl aDp aDc dQ dK dV dO dT dS xWQ xWA xWO xFw xFr rA rG rP pW mW mR lW lR lR2 vW "
          "tT0 tT1 tV tK idx tid n g t0 t1 t2 t3 t4 t5 chk p0 p1 p2 p3 dbv stamp").split(): V(n)
assert V.n<=256
r=V.d
v=lambda i:f"v{i}"
vr=lambda i,k:f"v[{i}:{i+k-1}]"
ar=lambda i,k:f"a[{i}:{i+k-1}]"
sp=lambda i:f"s[{i}:{i+1}]"
R=lambda n,k=4,o=0:vr(r[n]+o,k)
x=lambda n,o=0:v(r[n]+o)
q4=lambda n:list(range(r[n],r[n]+4))
DP="row_mask:0xf bank_mask:0xf"
sW,sG,sM,sR,sI,sI2,sCB,sMode=30,31,32,33,34,35,36,37
sLb=[38,40]; sN=42; sWq,sWv,sXs,sExp=44,45,46,47; mS3,mCC,mS2=48,50,52; sX28,sSide,sPerm=54,55,56
sWk,sRt,sTo,sTag=3,14,15,26

def path(role,mode,o):
    RING=o["ring"] if isinstance(o["ring"],tuple) else (o["ring"],)*3
    X="AB"[role]; diag=o["diag"]; TMO=o["TMO"]
    pre=[]; preo=[]; post=[]; posto=[]
    main=[pre]; ool=[preo]; cur=[pre]; sfx=[X]
    def A_(t):
        for z in t.split("\n"): cur[0].append(z)
    hook=[A_]
    def A(t): hook[0](t)
    def OOL(): cur[0]=ool[0]
    def MAIN(): cur[0]=main[0]
    lab=lambda n:f"L_{n}_{sfx[0]}"
    PTR=[dict(k=6,v=8,q=10,o=12),dict(k=16,v=18,q=20,o=22)][role]
    LOC=lambda: "sc1" if (mode or main[0] is pre) else ""
    Q=[]
    def vm(tag): Q.append(tag)
    def cnt(tag):
        i=max(i for i,t in enumerate(Q) if t==tag); n=len(Q)-1-i; return min(n,63)
    done=[0]
    def waitfor(tag): n=cnt(tag); done[0]=max(done[0],len(Q)-n); A(f"s_waitcnt vmcnt({n})")
    def acked(tag): return tag in Q and max(i for i,t in enumerate(Q) if t==tag)<done[0]
    curl=[0]
    ENC=o.get("enc",0)
    def stamp(k):
        if ENC and role and ENC==100*curl[0]+k: A("s_memrealtime s[96:97]")
        if diag: A(f"s_memrealtime s[{76+2*k}:{77+2*k}]")
    def lane(k):
        if ENC and role and ENC==1000+k: A("s_memrealtime s[96:97]")
        if diag: A(f"s_memrealtime s[100:101]\ns_waitcnt lgkmcnt(0)\nv_writelane_b32 {x('stamp')}, s100, {k}")
    def flush(l):
        if not diag: return
        A("s_waitcnt lgkmcnt(0)")
        for k in range(13):
            if l or 0<k<12: A(f"v_writelane_b32 {x('stamp')}, s{76+2*k}, {4+14*l+k}")
        A(f"v_writelane_b32 {x('stamp')}, s{sRt}, {4+14*l+13}\ns_mov_b32 s{sRt}, 0")
    ns=[0]; moved=set(); nbar=[0]; m0v=[None]; wfree=[99]
    def bar():
        A("s_waitcnt lgkmcnt(0)\ns_barrier"); nbar[0]+=1
    def setm0(sreg,val):
        if m0v[0]!=(sreg,val): A(f"s_add_u32 m0, s{sreg}, {val}"); m0v[0]=(sreg,val)
    def dma(kind,q):
        p=PTR[kind]
        if kind in "qo":
            if kind=="o": assert wfree[0]<=nbar[0] or o.get("nochk"), ("W buffer busy",nbar[0])
            setm0(sWq,BUFW+(q>>2)*WS+(q&3)*4104)
            src=x("dQ" if kind=="q" else "dO")
            if q: A(f"v_add_u32 {x('dT')}, {q*(65536 if kind=='q' else 16384)}, {src}"); src=x("dT")
            A(f"global_load_lds_dwordx4 {src}, {sp(p)} {FL[o['wfl']]}")
        else:
            hi=q//4
            if kind=="v": setm0(sWv,BUFV+hi*4096+8*q)
            else: setm0(sWk,BUFK+hi*4096)
            src=x("dK" if kind=="k" else "dV")
            if kind=="k" and q: A(f"v_xor_b32 {x('dT')}, {q*32}, {src}"); src=x("dT")
            if hi: A(f"v_add_u32 {x('dT')}, 4096, {src}"); src=x("dT")
            A(f"global_load_lds_dwordx4 {src}, {sp(p)} offset:{(q%4)*1024} {FL[o['kfl']]}")
        vm(f"{kind}{q}")
    def stream(n):
        while ns[0]<n: dma(*ORDER[ns[0]]); ns[0]+=1
    def wload(i): k,q=ORDER[i]; assert i<ns[0]; waitfor(f"{k}{q}")
    tgt=[0]
    def slot():
        n=min(tgt[0],ns[0]+o["sk"])
        while ns[0]<n:
            k,q=ORDER[ns[0]]
            if k=="o" and wfree[0]>nbar[0]: break
            dma(k,q); ns[0]+=1
    def trW(kind,reg):
        ab=0 if kind=="q" else 128; Sx=reg>>1
        for t in range(4):
            for ub in range(2):
                u=2*(reg&1)+ub
                A(f"ds_read_b64_tr_b16 {ar(ab+(t*2+Sx)*8+2*u,2)}, {x('tT%d'%(t&1))} offset:{reg*WS+ub*2048+8*(t>>1)}")
        moved.add((kind,reg))
        if kind=="q" and reg==3: wfree[0]=nbar[0]+1
    def trV():
        for U in range(2):
            for t in range(2):
                for jh in range(2):
                    for ib in range(2):
                        A(f"ds_read_b64_tr_b16 {ar(96+(t*2+U)*8+2*(2*jh+ib),2)}, {x('tV')} offset:{2*U*VS+jh*4128+ib*512+8*t}")
        moved.add(("v",0))
    def kreads():
        wload(23)
        for s in range(4):
            A(f"v_xor_b32 {x('dT')}, {64*s}, {x('tK')}")
            for t in range(2): A(f"ds_read_b128 {ar(64+(t*4+s)*4,4)}, {x('dT')} offset:{256*t}")
        moved.add(("k",0))
    def move(n):
        gs=[("q",k) for k in range(4) if 4*k+4<=n]+([("v",0)] if n>=32 else [])+[("o",k) for k in range(4) if 36+4*k<=n]
        gs=[g_ for g_ in gs if g_ not in moved]
        if not gs: return
        k,j=gs[-1]; wload({"q":4*j+3,"v":31,"o":35+4*j}[k]); bar()
        for k,j in gs:
            if k=="v": trV()
            else: trW(k,j)
    def mf(d,a,b,c): A(f"v_mfma_f32_16x16x32_bf16 {d}, {a}, {b}, {c}")
    def smf(d,a,b): A(f"v_smfmac_f32_16x16x64_bf16 {R(d)}, {R(a)}, {b}, {x('idx')}")
    def zero(*names):
        for n in names: A(f"v_mov_b64 {R(n,2)}, 0\nv_mov_b64 {R(n,2,2)}, 0")
    def chk(rs,first=True):
        rs=list(rs); c=x("chk")
        if first:
            A(f"v_max3_u32 {c}, v{rs[0]}, v{rs[1]}, v{rs[2]}"); rs=rs[3:]
        while len(rs)>=2: A(f"v_max3_u32 {c}, {c}, v{rs[0]}, v{rs[1]}"); rs=rs[2:]
        if rs: A(f"v_max_u32 {c}, {c}, v{rs[0]}")
    def fin(fail): A(f"v_cmp_eq_u32 vcc, -1, {x('chk')}\ns_cbranch_vccnz {fail}")
    def cvtD(T='D'): A(f"v_cvt_pk_bf16_f32 {x('c01')}, {x(T)}, {x(T,1)}\nv_cvt_pk_bf16_f32 {x('c01',1)}, {x(T,2)}, {x(T,3)}")
    def wrA(a): A(f"ds_write2_b32 {x(a)}, {x('c01')}, {x('c01',1)} offset0:0 offset1:8")
    def sel2(dst,a,b,thr,src="v0"): A(f"v_cmp_le_u32 vcc, {thr}, {src}\nv_cndmask_b32 {dst}, {a}, {b}, vcc")
    if role: A("L_B:")
    if o["pf"]:
        A(f"s_getpc_b64 s[58:59]\nL_pc{X}:\nv_lshlrev_b32 {x('t0')}, 6, v0\nv_min_u32 {x('t0')}, L_end{X}-L_pc{X}, {x('t0')}")
        A(f"v_add_co_u32 {x('pa')}, vcc, s58, {x('t0')}\nv_mov_b32 {x('t0')}, s59\nv_addc_co_u32 {x('pa',1)}, vcc, 0, {x('t0')}, vcc")
        A(f"global_load_dword {x('chk')}, {R('pa',2)}, off"); vm("pf")
    if diag: A("s_memrealtime s[98:99]\ns_memtime s[74:75]")
    if ENC: A("s_memrealtime s[98:99]\ns_memrealtime s[96:97]")
    A(f"v_lshrrev_b32 {x('t0')}, 6, v0\nv_mov_b32 {x('tid')}, v0\nv_and_b32 v0, 63, v0\nv_and_b32 {x('n')}, 15, v0\nv_readfirstlane_b32 s{sW}, {x('t0')}")
    A(f"s_bfe_u32 s{sG}, s2, 0x20001\ns_lshr_b32 s{sM}, s2, 3\ns_lshr_b32 s{sR}, s2, 5\ns_and_b32 s{sI}, s{sM}, 3\ns_and_b32 s{sI2}, s{sM}, 7\ns_lshr_b32 s{sCB}, s2, 6")
    A(f"v_lshrrev_b32 {x('g')}, 4, v0\nv_lshrrev_b32 {x('t5')}, 5, v0")
    A(f"v_and_b32 {x('t0')}, 31, v0\nv_lshlrev_b32 {x('t4')}, 4, {x('t0')}\nv_lshlrev_b32 {x('t0')}, 6, {x('t5')}\nv_xor_b32 {x('t1')}, {x('t4')}, {x('t0')}")
    A(f"s_and_b32 s60, s{sW}, 1\ns_lshl_b32 s57, s60, 7\nv_xor_b32 {x('t1')}, s57, {x('t1')}")
    A(f"s_lshl_b32 s57, s{sR}, 20\ns_lshl_b32 s58, s{sW}, 14\ns_add_u32 s57, s57, s58\ns_lshl_b32 s58, s{sG}, 11\ns_add_u32 s57, s57, s58\ns_lshl_b32 s58, s{sI}, 9\ns_add_u32 s57, s57, s58")
    if o.get("xi"): A(f"s_xor_b32 s57, s57, {o['xi']*512}")
    A(f"v_lshl_add_u32 {x('dQ')}, {x('t5')}, 13, {x('t1')}\nv_add_u32 {x('dQ')}, s57, {x('dQ')}")
    A(f"s_lshl_b32 s{sWq}, s{sW}, 10\ns_mul_i32 s{sWv}, s{sW}, {VS}\ns_lshl_b32 s{sWk}, s{sW}, 13")
    A(f"s_lshr_b32 s57, s{sG}, 1\ns_lshl_b32 s57, s57, 19\ns_and_b32 s58, s{sG}, 1\ns_lshl_b32 s58, s58, 16\ns_add_u32 s57, s57, s58\ns_add_u32 s62, s57, {E3}")
    A(f"s_lshl_b32 s57, s{sG}, 3\ns_add_u32 s57, s57, s{sI2}\ns_lshl_b32 s57, s57, 8\ns_lshl_b32 s58, s{sCB}, 15\ns_add_u32 s63, s57, s58")
    A(f"s_lshl_b32 s57, s{sG}, 14\ns_add_u32 s64, s57, {MISC}\ns_lshl_b32 s58, s{sR}, 8\ns_lshl_b32 s59, s{sI}, 12\ns_add_u32 s59, s59, s58\ns_add_u32 s65, s64, s59")
    A(f"s_lshl_b32 s66, s{sG}, 12\ns_lshl_b32 s57, s{sG}, 13\ns_add_u32 s69, s57, {CS}\ns_lshl_b32 s59, s{sI}, 11\ns_add_u32 s59, s59, s58\ns_add_u32 s67, s69, s59")
    A(f"s_lshl_b32 s57, s{sM}, 7\ns_add_u32 s68, s66, s57")
    A(f"v_lshlrev_b32 {x('t3')}, 4, {x('n')}")
    A(f"v_lshl_add_u32 {x('t0')}, {x('g')}, 11, {x('t3')}\nv_add_u32 {x('aWm')}, s65, {x('t0')}")
    A(f"v_bfe_u32 {x('t0')}, v0, 3, 1\nv_mul_u32_u24 {x('t0')}, {ST3-ST2-128}, {x('t0')}\ns_add_u32 s57, s68, {ST2}\nv_add3_u32 {x('t0')}, {x('t0')}, s57, {x('t3')}")
    sel2(x('aWm'),x('aWm'),x('t0'),32)
    A(f"v_add_u32 {x('t0')}, s67, {x('t3')}"); sel2(x('aWm'),x('aWm'),x('t0'),48)
    A(f"s_lshl_b32 s57, s{sW}, 15\ns_lshl_b32 s58, s{sM}, 9\ns_add_u32 s57, s57, s58\ns_add_u32 s57, s57, s62\nv_lshl_add_u32 {x('t0')}, {x('t5')}, 14, {x('t4')}\nv_add_u32 {x('t0')}, s57, {x('t0')}")
    A(f"s_movk_i32 s57, 128\ns_movk_i32 s58, 192"); sel2(x('aWm'),x('t0'),x('aWm'),"s57",x('tid'))
    A(f"v_lshl_add_u32 {x('t0')}, {x('g')}, 13, {x('t3')}\nv_add_u32 {x('t0')}, s63, {x('t0')}"); sel2(x('aR'),x('aWm'),x('t0'),"s58",x('tid'))
    for k in (0,2): A(f"v_mov_b64 {R('Neg',2,k)}, -1")
    A(f"v_and_b32 {x('t2')}, 1, {x('g')}\nv_lshl_add_u32 {x('t2')}, {x('t2')}, 3, {x('t3')}")
    if not role: A(f"s_lshl_b32 s57, s{sR}, 8\nv_add_u32 {x('p0')}, s57, {x('t2')}\nv_lshlrev_b32 {x('p1')}, 5, v0")
    A(f"s_getreg_b32 s{sX28}, hwreg(HW_REG_XCC_ID, 0, 4)")
    if o["force"]: A(f"s_lshr_b32 s57, s2, 3\ns_and_b32 s57, s57, {o['force']}\ns_xor_b32 s{sX28}, s{sX28}, s57")
    A(f"s_bfe_u32 s{sSide}, s{sX28}, 0x10002\ns_lshl_b32 s{sX28}, s{sX28}, 28")
    A("s_waitcnt lgkmcnt(0)")
    if diag: A(f"s_memrealtime s[76:77]\nv_mov_b32 {x('stamp')}, 0\ns_waitcnt lgkmcnt(0)\nv_writelane_b32 {x('stamp')}, s98, 0\nv_writelane_b32 {x('stamp')}, s76, 1")
    if ENC==1001: A("s_memrealtime s[96:97]")
    A("s_add_u32 s28, s28, 0x1fffff\ns_addc_u32 s29, s29, 0\ns_and_b32 s28, s28, 0xffe00000")
    if not role:
        A(f"global_load_dwordx2 {R('c01',2)}, {x('p0')}, s[4:5]"); vm("x")
        A(f"global_load_dwordx4 {R('G0')}, {x('p1')}, s[4:5]\nglobal_load_dwordx4 {R('G1')}, {x('p1')}, s[4:5] offset:16"); vm("x"); vm("x")
    for j in range(2): A(f"s_add_u32 s{sLb[j]}, s28, {(2*j+role)*S}\ns_addc_u32 s{sLb[j]+1}, s29, 0")
    A(f"s_add_u32 s58, s28, {NONCE}\ns_addc_u32 s59, s29, 0\ns_load_dword s{sTag}, s[58:59], 0")
    def reset(j): A(f"global_store_dwordx4 {x('aR')}, {R('Neg')}, {sp(sLb[j])} sc1"); vm("R"); vm2.add(j)
    vm2=set()
    for j in (o["br0"] if role else o["ar0"]): reset(int(j))
    n0=o["bn0"] if role else o["an0"]
    stream(min(n0,16))
    A(f"s_lshl_b32 s57, s{sG}, 24\ns_lshl_b32 s58, s{sM}, 15\ns_add_u32 s57, s57, s58\ns_add_u32 s57, s57, s{sWk}\ns_add_u32 s57, s57, {61440*256}")
    A(f"v_xor_b32 {x('t0')}, {x('n')}, {x('t5')}\nv_lshlrev_b32 {x('t0')}, 4, {x('t0')}\nv_lshl_add_u32 {x('dK')}, {x('g')}, 8, {x('t0')}\nv_add_u32 {x('dK')}, s57, {x('dK')}")
    A(f"v_and_b32 {x('p2')}, 1, {x('g')}\nv_lshlrev_b32 {x('p2')}, 6, {x('p2')}\nv_xor_b32 {x('t0')}, {x('t3')}, {x('p2')}\nv_lshl_add_u32 {x('dV')}, {x('g')}, 8, {x('t0')}\nv_add_u32 {x('dV')}, s57, {x('dV')}")
    stream(min(n0,32))
    A(f"s_lshl_b32 s57, s{sG}, 21\ns_lshl_b32 s58, s{sI2}, 18\ns_add_u32 s57, s57, s58\ns_lshl_b32 s58, s{sW}, 12\ns_add_u32 s57, s57, s58\ns_lshl_b32 s58, s{sCB}, 9\ns_add_u32 s57, s57, s58")
    A(f"v_lshl_add_u32 {x('dO')}, {x('t5')}, 11, {x('t1')}\nv_add_u32 {x('dO')}, s57, {x('dO')}")
    if role: A(f"s_lshl_b32 s57, s2, 2\ns_add_u32 s57, s57, s{sW}\ns_lshr_b32 s58, s57, 6\ns_lshl_b32 s58, s58, 14\ns_and_b32 s57, s57, 63\ns_lshl_b32 s57, s57, 7\ns_add_u32 s57, s57, s58")
    if role: A(f"s_lshl_b32 s58, s60, 13\ns_add_u32 s57, s57, s58\ns_add_u32 s57, s57, {PRB}\ns_xor_b32 s58, s57, 0x2000")
    if role: A(f"s_add_u32 s82, s28, s57\ns_addc_u32 s83, s29, 0\ns_add_u32 s90, s28, s58\ns_addc_u32 s91, s29, 0")
    if role: A(f"s_mov_b32 s84, 0x5bd1e995\ns_not_b32 s85, s84\ns_mov_b64 s[88:89], s[84:85]\ns_xor_b32 s73, s60, s{sSide}\ns_lshl_b32 s73, s73, 1\ns_sub_u32 s73, s73, 1")
    A(f"s_lshl_b32 s57, s2, 7\ns_lshl_b32 s58, s{sW}, 4\ns_add_u32 s57, s57, s58\ns_add_u32 s57, s57, {FLG}\nv_mov_b32 {x('aFl')}, s57")
    def flag():
        waitfor("R")
        A("s_waitcnt lgkmcnt(0)")
        A(f"s_mul_i32 s{sTag}, s{sTag}, 0x9e3779b1\ns_add_u32 s{sTag}, s{sTag}, 0x7f4a7c15\ns_xor_b32 s92, s{sTag}, s{sX28}\nv_mov_b32 {x('fl')}, s92")
        A(f"s_mov_b64 exec, 1\nglobal_store_dword {x('aFl')}, {x('fl')}, s[28:29] sc1\ns_mov_b64 exec, -1"); vm("flag")
        if diag: A("s_memrealtime s[78:79]\ns_waitcnt lgkmcnt(0)")
        if diag: A(f"v_writelane_b32 {x('stamp')}, s78, 2")
        assert len(vm2)==2 or not role
    def probe():
        assert role
        A(f"s_waitcnt lgkmcnt(0)\ns_load_dwordx2 s[86:87], s[82:83], 0\ns_load_dwordx2 s[88:89], s[90:91], 0")
        A(f"v_mov_b32 {x('pa')}, s{sTag}\ns_waitcnt lgkmcnt(2)\ns_cmp_eq_u64 s[88:89], s[84:85]\ns_cselect_b32 s73, s73, 0\nv_mov_b32 {x('pa',1)}, s73")
        A(f"s_mov_b64 exec, 1\nglobal_store_dwordx2 {x('aFl')}, {R('pa',2)}, s[28:29] offset:8 sc1\ns_mov_b64 exec, -1"); vm("vote")
    late=[]; hook[0]=late.append
    A(f"v_lshlrev_b32 {x('t0')}, 4, v0\ns_lshl_b32 s61, s{sW}, 11")
    A(f"s_lshl_b32 s57, s{sR}, 14\ns_add_u32 s57, s57, s61\ns_add_u32 s57, s57, {(1-role)*S}\nv_add_u32 {x('aG1')}, s57, {x('t0')}")
    A(f"s_lshl_b32 s57, s{sW}, 12\ns_add_u32 s57, s57, s64\nv_add_u32 {x('aG2')}, s57, {x('t0')}")
    A(f"s_add_u32 s57, s61, s69\nv_add_u32 {x('aC2')}, s57, {x('t0')}")
    A(f"s_lshr_b32 s58, s{sI2}, 1\ns_and_b32 s59, s{sI2}, 1\ns_lshl_b32 s57, s58, 14\ns_add_u32 s57, s57, s62\ns_lshl_b32 s70, s59, 8\ns_add_u32 s57, s57, s70\ns_lshl_b32 s70, s{sW}, 12\ns_add_u32 s57, s57, s70")
    A(f"v_lshl_add_u32 {x('t0')}, {x('g')}, 9, {x('t3')}\nv_add_u32 {x('aG3')}, s57, {x('t0')}")
    A(f"s_lshl_b32 s58, s58, 4\ns_lshl_b32 s59, s59, 2\ns_add_u32 s57, s58, s59\ns_add_u32 s57, s57, s66\ns_add_u32 s57, s57, s{sWq}\ns_add_u32 s57, s57, {ST3}")
    A(f"v_and_b32 {x('t4')}, 1, v0\nv_lshl_add_u32 {x('p3')}, {x('t4')}, 2, {x('g')}\nv_and_b32 {x('p1')}, 7, v0\nv_and_b32 {x('t0')}, 8, v0\nv_cmp_ne_u32 vcc, 0, {x('t0')}\nv_cndmask_b32 {x('p3')}, {x('p1')}, {x('p3')}, vcc")
    A(f"v_lshl_add_u32 {x('aS3')}, {x('p3')}, 7, s57")
    A(f"s_lshl_b32 s57, s{sW}, 7\ns_add_u32 s57, s57, s66\ns_add_u32 s57, s57, {ST2}\nv_bfe_u32 {x('t0')}, v0, 1, 3\nv_lshlrev_b32 {x('t0')}, 9, {x('t0')}\nv_lshl_add_u32 {x('t0')}, {x('t4')}, 4, {x('t0')}\nv_add_u32 {x('aS2')}, s57, {x('t0')}")
    A(f"s_and_b32 s57, s2, 7\ns_lshl_b32 s58, s{sW}, 3\ns_add_u32 s57, s57, s58\nv_lshl_add_u32 {x('t0')}, {x('p1')}, 5, s57")
    A(f"s_lshl_b32 s57, s{sCB}, 6\ns_lshl_b32 s58, s{sW}, 1\ns_add_u32 s57, s57, s58\ns_add_u32 s57, s57, {1-role}\nv_lshl_add_u32 {x('p3')}, {x('p1')}, 3, s57")
    sel2(x('t0'),x('t0'),x('p3'),32)
    A(f"v_bfe_u32 {x('p3')}, v0, 3, 2\nv_lshlrev_b32 {x('p3')}, 4, {x('p3')}\nv_lshl_add_u32 {x('t0')}, {x('t0')}, 7, {x('p3')}\nv_add_u32 {x('aF')}, {FLG}, {x('t0')}")
    A(f"s_lshl_b32 s57, s{sR}, 14\ns_lshl_b32 s58, s{sI}, 11\ns_add_u32 s57, s57, s58\ns_add_u32 s59, s57, {DB+(1-role)*0x20000}\nv_and_b32 {x('t0')}, 3, v0\nv_lshl_add_u32 {x('aDc')}, {x('t0')}, 9, s59")
    A(f"s_lshl_b32 s58, s{sG}, 9\ns_add_u32 s57, s57, s58\ns_lshl_b32 s58, s{sW}, 7\ns_add_u32 s57, s57, s58\ns_add_u32 s57, s57, {DB+role*0x20000}\nv_lshl_add_u32 {x('aDp')}, {x('t4')}, 13, s57")
    A(f"v_lshl_add_u32 {x('p3')}, {x('n')}, 2, {x('p2')}\ns_lshl_b32 s70, s60, 7\ns_lshr_b32 s71, s{sW}, 1")
    A(f"s_lshl_b32 s57, s71, 11\ns_add_u32 s57, s57, s65\ns_add_u32 s57, s57, s70\nv_add_u32 {x('aP2')}, s57, {x('p3')}")
    A(f"s_lshl_b32 s57, s71, 18\ns_add_u32 s57, s57, s67\ns_add_u32 s57, s57, s70\nv_add_u32 {x('t0')}, s57, {x('p3')}"); sel2(x('aP2'),x('aP2'),x('t0'),32)
    A(f"s_lshl_b32 s57, s71, 14\ns_add_u32 s57, s57, s63\ns_add_u32 s57, s57, s70\nv_lshl_add_u32 {x('t0')}, {x('t5')}, 13, {x('p3')}\nv_add_u32 {x('aP1')}, s57, {x('t0')}")
    A(f"s_lshl_b32 s57, s{sM}, 9\ns_lshl_b32 s58, s{sW}, 6\ns_add_u32 s57, s57, s58\ns_add_u32 s57, s57, s62\nv_lshlrev_b32 {x('t0')}, 2, {x('n')}\nv_lshl_add_u32 {x('t0')}, {x('g')}, 14, {x('t0')}\nv_add_u32 {x('aP3')}, s57, {x('t0')}")
    A(f"s_lshl_b32 s57, s{sW}, 4\ns_add_u32 s58, s57, s68\ns_add_u32 s58, s58, {ST2}\nv_lshl_add_u32 {x('aPS2')}, {x('g')}, 2, s58\ns_add_u32 s58, s68, {ST3}\nv_lshl_add_u32 {x('aPS3')}, {x('g')}, 4, s58")
    A(f"s_lshl_b64 {sp(mS3)}, 1, s57\ns_mov_b32 s{mCC}, 0xcccccccc\ns_mov_b32 s{mCC+1}, 0xcccccccc\ns_mov_b32 s{mS2}, 0x10001\ns_mov_b32 s{mS2+1}, 0x10001")
    A(f"s_and_b32 s57, s{sR}, 1\ns_cmp_eq_u32 s57, s71\ns_cselect_b32 s{sXs}, {hex(f2u(1/16))}, 0")
    A(f"s_mov_b32 s{sPerm}, 0x03020302\ns_mov_b32 s{sTo}, 0\ns_mov_b32 s{sRt}, 0")
    def X12(dst,src,lo):
        A(f"v_lshrrev_b32 {dst}, 1, {src}\nv_mul_u32_u24 {dst}, 12, {dst}\nv_and_b32 {x('dS')}, 1, {src}\nv_lshl_add_u32 {dst}, {x('dS')}, {lo-1}, {dst}")
    X12(x('t0'),x('g'),1); A(f"v_xor_b32 {x('t0')}, {x('t0')}, {x('n')}\nv_lshlrev_b32 {x('t0')}, 4, {x('t0')}\nv_lshl_add_u32 {x('rA')}, {x('g')}, 8, {x('t0')}")
    X12(x('t0'),x('g'),2); A(f"v_xor_b32 {x('t0')}, {x('t0')}, {x('n')}\nv_lshlrev_b32 {x('t0')}, 4, {x('t0')}\nv_lshl_add_u32 {x('rP')}, {x('g')}, 8, {x('t0')}")
    A(f"s_mul_i32 s57, s60, {AS}\nv_add_u32 {x('rG')}, s57, {x('rA')}")
    A(f"v_bfe_u32 {x('p3')}, v0, 1, 2\nv_bfe_u32 {x('p0')}, v0, 3, 1\nv_mul_u32_u24 {x('p0')}, {AS}, {x('p0')}\nv_lshl_add_u32 {x('p0')}, {x('p3')}, 8, {x('p0')}")
    A(f"v_lshl_add_u32 {x('p0')}, {x('t4')}, 3, {x('p0')}\nv_lshrrev_b32 {x('t0')}, 4, {x('p2')}\nv_add_u32 {x('p0')}, {x('p0')}, {x('t0')}")
    X12(x('t0'),x('p3'),1)
    A(f"s_lshl_b32 s57, s71, 2\ns_add_u32 s57, s57, s60\nv_xor_b32 {x('p3')}, s57, {x('t0')}\nv_lshl_add_u32 {x('xWQ')}, {x('p3')}, 4, {x('p0')}")
    A(f"v_lshlrev_b32 {x('dS')}, 3, {x('t5')}\nv_xor_b32 {x('p3')}, {x('p3')}, {x('dS')}\nv_lshl_add_u32 {x('xWO')}, {x('p3')}, 4, {x('p0')}\nv_add_u32 {x('xWO')}, {XO}, {x('xWO')}")
    A(f"s_lshl_b32 s57, s{sW}, 2\nv_add_u32 {x('p3')}, s57, {x('t5')}\nv_xor_b32 {x('p3')}, {x('p3')}, {x('t0')}\nv_lshl_add_u32 {x('xWA')}, {x('p3')}, 4, {x('p0')}\nv_add_u32 {x('xWA')}, {XA}, {x('xWA')}")
    A(f"v_and_b32 {x('t4')}, 3, {x('n')}\nv_lshrrev_b32 {x('p0')}, 2, {x('n')}")
    X12(x('t0'),x('p0'),2)
    A(f"s_lshl_b32 s57, s60, 1\nv_lshl_add_u32 {x('p3')}, {x('g')}, 2, s57\nv_xor_b32 {x('p3')}, {x('p3')}, {x('t0')}\nv_lshlrev_b32 {x('p3')}, 4, {x('p3')}\nv_lshl_add_u32 {x('p3')}, {x('p0')}, 8, {x('p3')}")
    A(f"s_mul_i32 s57, s71, {AS}\ns_add_u32 s57, s57, {XP}\nv_lshl_add_u32 {x('p3')}, {x('t4')}, 2, {x('p3')}\nv_add_u32 {x('pW')}, s57, {x('p3')}")
    A(f"v_lshlrev_b32 {x('mR')}, 5, {x('g')}\nv_add_u32 {x('mR')}, {XM}, {x('mR')}\ns_lshl_b32 s57, s{sW}, 3\nv_add_u32 {x('mW')}, s57, {x('mR')}")
    A(f"s_add_u32 s58, s57, {XR}\nv_mov_b32 {x('lW')}, s58\ns_add_u32 s58, s57, {XV}\nv_mov_b32 {x('vW')}, s58")
    A(f"v_lshrrev_b32 {x('t0')}, 2, {x('p2')}\nv_add_u32 {x('lR')}, {XR}, {x('t0')}\nv_sub_u32 {x('lR2')}, {XR+16}, {x('t0')}")
    A(f"s_mul_i32 s57, s{sW}, {FS}\ns_add_u32 s57, s57, {XF}\nv_lshl_add_u32 {x('xFw')}, {x('t2')}, 1, s57")
    A(f"s_lshl_b32 s57, s60, 8\ns_add_u32 s57, s57, {XF}\nv_lshl_add_u32 {x('t0')}, {x('p2')}, 1, s57\nv_lshl_add_u32 {x('t0')}, {x('p0')}, 5, {x('t0')}\nv_lshl_add_u32 {x('xFr')}, {x('t4')}, 2, {x('t0')}")
    A(f"v_mul_u32_u24 {x('t0')}, 4104, {x('g')}\nv_lshl_add_u32 {x('t0')}, {x('p0')}, 9, {x('t0')}\nv_add_u32 {x('t0')}, {BUFW}, {x('t0')}")
    A(f"s_lshl_b32 s57, s{sW}, 3\nv_add_u32 {x('p3')}, s57, {x('t4')}\nv_lshlrev_b32 {x('dS')}, 2, {x('p0')}\nv_xor_b32 {x('p3')}, {x('p3')}, {x('dS')}\nv_lshl_add_u32 {x('tT0')}, {x('p3')}, 4, {x('t0')}")
    A(f"v_xor_b32 {x('p3')}, 4, {x('p3')}\nv_lshl_add_u32 {x('tT1')}, {x('p3')}, 4, {x('t0')}")
    A(f"v_mul_u32_u24 {x('t0')}, 1032, {x('g')}\nv_lshrrev_b32 {x('dS')}, 1, {x('p0')}\nv_mul_u32_u24 {x('dS')}, {VS}, {x('dS')}\nv_add_u32 {x('t0')}, {x('t0')}, {x('dS')}\nv_and_b32 {x('t3')}, 1, {x('p0')}")
    A(f"v_lshl_add_u32 {x('t0')}, {x('t3')}, 8, {x('t0')}\ns_lshl_b32 s57, s{sW}, 2\nv_add_u32 {x('p3')}, s57, {x('t4')}\nv_lshlrev_b32 {x('dS')}, 2, {x('t3')}\nv_xor_b32 {x('p3')}, {x('p3')}, {x('dS')}")
    A(f"v_lshl_add_u32 {x('t0')}, {x('p3')}, 4, {x('t0')}\nv_add_u32 {x('tV')}, {BUFV}, {x('t0')}")
    A(f"v_xor_b32 {x('t0')}, {x('g')}, {x('n')}\nv_lshlrev_b32 {x('t0')}, 4, {x('t0')}\nv_lshl_add_u32 {x('t0')}, {x('n')}, 9, {x('t0')}\ns_add_u32 s57, s{sWk}, {BUFK}\nv_add_u32 {x('tK')}, s57, {x('t0')}")
    A(f"v_lshlrev_b32 {x('t3')}, 4, {x('t3')}\nv_mov_b32 {x('t1')}, 0xffff\nv_lshlrev_b32 {x('t1')}, {x('t3')}, {x('t1')}")
    for e in range(4): A(f"v_cmp_eq_u32 vcc, {e}, {x('t4')}\nv_cndmask_b32 {x('Msk',e)}, 0, {x('t1')}, vcc\nv_and_b32 {x('Sel',e)}, 0x3f803f80, {x('Msk',e)}")
    A(f"v_cmp_gt_u32 vcc, 8, {x('n')}")
    for e in range(4): A(f"v_cndmask_b32 {x('SelL',e)}, 0, {x('Sel',e)}, vcc\nv_sub_u32 {x('SelH',e)}, {x('Sel',e)}, {x('SelL',e)}")
    for e in range(8): A(f"v_mov_b32 {x('One',e)}, 0x3f803f80")
    A(f"v_mov_b32 {x('idx')}, 0x44444444\nv_mov_b32 {x('t0')}, 0xeeeeeeee\nv_cndmask_b32 {x('idx')}, {x('idx')}, {x('t0')}, {sp(mCC)}")
    A(f"v_and_b32 {x('t0')}, 13, {x('n')}\nv_cmp_eq_u32 vcc, 8, {x('t0')}")
    for e in range(4): A(f"v_cndmask_b32 {x('Tg',e)}, 0, {x('One')}, vcc")
    A(f"ds_write_b128 {x('rA')}, {R('Tg')} offset:{XQ}\nds_write_b128 {x('rA')}, {R('Tg')} offset:{XQ+AS}")
    hook[0]=A_
    def setup(n):
        while late and n>0: t=late.pop(0); A(t); n-=t.count('\n')+1
    def retry(name,e,loc=False):
        A(f"{name}:\ns_sleep {o['slpl'] if loc else o['slp']}\ns_add_u32 s{sTo}, s{sTo}, 1")
        if diag: A(f"s_add_u32 s{sRt}, s{sRt}, {1<<(8*e)}")
        A(f"s_cmp_lt_u32 s{sTo}, {TMO}\ns_cbranch_scc0 L_fail")
    def loadF(): A(f"global_load_dwordx4 {R('fF')}, {x('aF')}, s[28:29] sc1"); vm("F")
    ALLF=role and "D" not in o["b1"]
    def checkF(wait=True):
        waitfor("F")
        if wait:
            A(f"{lab('fc')}:\nv_xor_b32 {x('t0')}, s{sTag}, {x('fF')}\nv_and_b32 {x('t1')}, 0xfffffff, {x('t0')}"+("" if ALLF else "\ns_mov_b32 exec_hi, 0")+f"\nv_cmp_ne_u32 vcc, 0, {x('t1')}\ns_mov_b32 exec_hi, -1\ns_cbranch_vccnz {lab('fr')}")
            OOL(); retry(lab('fr'),3); A(f"global_load_dwordx4 {R('fF')}, {x('aF')}, s[28:29] sc1\ns_waitcnt vmcnt(0)\ns_branch {lab('fc')}"); MAIN()
        else: A(f"v_xor_b32 {x('t0')}, s{sTag}, {x('fF')}")
        A(f"v_cmp_ne_u32 s[60:61], s{sX28}, {x('t0')}\nv_cmp_eq_u32 vcc, s{sTag}, {x('fF',2)}\nv_cndmask_b32 {x('t1')}, 0, {x('fF',3)}, vcc")
        A(f"v_cmp_lt_i32 s[58:59], 0, {x('t1')}\nv_cmp_gt_i32 vcc, 0, {x('t1')}\nv_mov_b32 {x('pa')}, s60")
        A(f"s_nop 1\ns_bcnt1_i32_b64 s58, s[58:59]\ns_bcnt1_i32_b64 s59, vcc\ns_sub_u32 s58, s58, s59\nv_mov_b32 {x('pa',1)}, s58\nds_write_b64 {x('vW')}, {R('pa',2)}")
        m0v[0]=None
    YR=f"v_mov_b32 {x('t2')}, {XV}\nds_read_b128 {R('F0')}, {x('t2')}\nds_read_b128 {R('F1')}, {x('t2')} offset:16"
    YC=[f"v_or3_b32 {x('t2')}, {x('F0')}, {x('F0',2)}, {x('F1')}\nv_add3_u32 {x('t3')}, {x('F0',1)}, {x('F0',3)}, {x('F1',1)}",
        f"v_or_b32 {x('t2')}, {x('t2')}, {x('F1',2)}\nv_add_u32 {x('t3')}, {x('t3')}, {x('F1',3)}",
        f"v_readfirstlane_b32 s{sMode}, {x('t2')}\nv_readfirstlane_b32 s72, {x('t3')}"]
    def near():
        if diag: A(f"s_and_b32 s57, s72, 0xffff\ns_cmp_lg_u32 s{sMode}, 0\ns_cselect_b32 s58, 0x10000, 0\ns_or_b32 s57, s57, s58\nv_writelane_b32 {x('stamp')}, s57, 4")
        A(f"s_cmp_gt_i32 s72, 0\ns_cselect_b32 s57, 1, 0\ns_xor_b32 s57, s57, s{sSide}\ns_lshl_b32 s57, s57, 13\ns_add_u32 s{sN}, s28, s57\ns_addc_u32 s{sN+1}, s29, 0")
    def marker():
        A(f"s_cmp_lg_u32 s{sMode}, 0\ns_cbranch_scc1 L_post_{X}1")
        main[0]=post; ool[0]=posto; cur[0]=post; sfx[0]=f"{X}{mode}"; A(f"L_post_{X}{mode}:"); m0v[0]=None
    def ld(sim,tag,w,dst,addr,base,off=0):
        A(f"global_load_dwordx{w} {R(dst,w)}, {x(addr)}, {sp(base)}"+(f" offset:{off}" if off else "")+" sc1")
        if sim: vm(tag)
    def doorbell(l):
        A(f"s_add_u32 s{sExp}, s{sTag}, {l}\ns_cmp_eq_u32 s{sW}, 0\ns_cbranch_scc0 {lab('db%d'%l)}\ns_mov_b64 exec, 15")
        for k in range(4): A(f"global_load_dword {x('p%d'%k)}, {x('aDc')}, {sp(sN)} offset:{128*k} sc1\ns_sleep {o['dsl']}")
        A(f"{lab('dp%d'%l)}:")
        for k in range(4):
            A(f"s_waitcnt vmcnt(3)\nv_cmp_ne_u32 vcc, s{sExp}, {x('p%d'%k)}\ns_cbranch_vccz {lab('dd%d'%l)}")
            A(f"global_load_dword {x('p%d'%k)}, {x('aDc')}, {sp(sN)} offset:{128*k} sc1\ns_sleep {o['dsl']}")
        A(f"s_add_u32 s{sTo}, s{sTo}, 1\ns_cmp_lt_u32 s{sTo}, {TMO}\ns_cbranch_scc1 {lab('dp%d'%l)}\ns_branch L_fail")
        A(f"{lab('dd%d'%l)}:\ns_mov_b64 exec, -1\n{lab('db%d'%l)}:\ns_barrier"); nbar[0]+=1
        stamp(12); m0v[0]=None
    def ring(l): A(f"s_mov_b64 exec, 3\nglobal_store_dword {x('aDp')}, {x('dbv')}, s[28:29] sc1\ns_mov_b64 exec, -1"); vm("ring")
    def swapadd(a,b): A(f"v_permlane16_swap_b32 {x(a)}, {x(b)}\nv_add_f32 {x(a)}, {x(a)}, {x(b)}")
    rs=lambda d,T:[f"v_pk_add_f32 {R(d,2)}, {R(T,2)}, {R(T,2,2)}",f"v_add_f32 {x(d)}, {x(d)}, {x(d,1)}"]
    WO=[(0,0),(1,0),(0,1),(1,1),(2,0),(3,0),(2,1),(3,1)]
    def wmm(base,ex,w1=0):
        for k,(t,s_) in enumerate(WO):
            if k==2: A(f"s_waitcnt lgkmcnt({w1})")
            smf(f"T{t}",f"A{s_}",ar(base+(t*2+s_)*8,8))
            if ex[k]: A(ex[k])
            if k in (1,3,5): slot()
    def gE2(sim,a,b0,b1):
        for j in range(4): ld(sim,f"g{j}",4,f"G{j}",a,b0 if j<2 else b1,1024*j if b0==b1 else 1024*(j&1))
    def cE2():
        for j in range(4):
            waitfor(f"g{j}"); mf(R('D'),R('SelL' if j<2 else 'SelH'),R(f"G{j}"),R('D') if j else "0"); chk(q4(f"G{j}"),j==0)
    def cspub():
        assert ("q",3) in moved
        zero("T0","T1","T2","T3")
        A(f"ds_read_b128 {R('A0')}, {x('rA')} offset:{XQ}\nds_read_b128 {R('A1')}, {x('rA')} offset:{XQ+AS}\ns_waitcnt lgkmcnt(0)")
        wmm(0,[""]*8)
        for d,T in zip(("tA","tB","tC","tD"),("T0","T1","T2","T3")): A("\n".join(rs(d,T)))
        swapadd("tA","tB"); swapadd("tC","tD")
        A(f"v_cvt_pk_bf16_f32 {x('t0')}, {x('tA')}, {x('tC')}\ns_mov_b32 exec_lo, 0\nglobal_store_dword {x('aP2')}, {x('t0')}, {sp(sLb[0])} {LOC()}\ns_mov_b32 exec_lo, -1"); vm("P")
    kg=[0]; early=[0]
    def kcs0(): gE2(True,'aC2',sLb[0],sLb[1]); kg[0]=1
    def kcs():
        assert ("k",0) in moved
        if not kg[0]: kcs0()
        zero("U0","U1")
        A(f"{lab('cc')}:"); cE2(); fin(lab('cr'))
        OOL(); retry(lab('cr'),3); gE2(False,'aC2',sLb[0],sLb[1]); A(f"s_waitcnt vmcnt(0)\ns_branch {lab('cc')}"); MAIN()
        cvtD(); wrA('xWA'); bar()
        A(f"ds_read_b128 {R('A0')}, {x('rA')} offset:{XA}\nds_read_b128 {R('A1')}, {x('rA')} offset:{XA+AS}\ns_waitcnt lgkmcnt(0)")
        for s_ in range(2):
            for t in range(2): smf(f"U{t}",f"A{s_}",ar(64+(t*2+s_)*8,8))
        for t in range(2): A(f"v_pk_add_f32 {R('kc%d'%t,2)}, {R('U%d'%t,2)}, {R('U%d'%t,2,2)}")
        lane(16); m0v[0]=None
    def prog(p,gather=None,st=None,l=None):
        for tk in p.split("_"):
            if not tk: continue
            c,a=tk[0],tk[1:]
            if c not in "ULPWZNSTHO": assert not late,tk
            if c=="L": stream(int(a))
            elif c=="P":
                n,D=map(int,a.split("."))
                while ns[0]<n:
                    if ns[0]>=D: wload(ns[0]-D)
                    stream(ns[0]+1)
            elif c=="W": wload(int(a))
            elif c=="A": waitfor("P")
            elif c=="S": A(f"s_sleep {a}")
            elif c=="M": move(int(a))
            elif c=="K": kreads()
            elif c=="B": bar()
            elif c=="F": loadF()
            elif c=="C": checkF()
            elif c=="U": setup(int(a or 9999))
            elif c=="x": kcs0()
            elif c=="V": checkF(False)
            elif c=="N": reset(int(a))
            elif c=="E": lnorm()
            elif c=="Z": flag()
            elif c=="O": probe()
            elif c=="H": assert acked("R") and int(a) in vm2; A(f"global_load_dword {x('chk')}, {x('aWm')}, {sp(sLb[int(a)])} sc1"); vm("H")
            elif c=="Y": A(YR+"\ns_waitcnt lgkmcnt(0)\n"+"\n".join(YC)); near()
            elif c=="y":
                marker()
                if mode and early[0]: A(f"s_mov_b32 exec_hi, 0\nglobal_store_dword {x('aP2')}, {x('t5')}, {sp(sLb[0])} sc1\ns_mov_b32 exec_hi, -1"); vm("P")
            elif c=="r":
                A(f"s_add_u32 s57, s{sTag}, 9\nv_mov_b32 {x('fl',1)}, s57\ns_mov_b64 exec, 1\nglobal_store_dword {x('aFl')}, {x('fl',1)}, s[28:29] offset:4 sc1\ns_mov_b64 exec, -1"); vm("bell")
            elif c=="w":
                A(f"s_add_u32 s58, s{sTag}, 9\ns_movk_i32 s57, 400\ns_mov_b64 exec, 1\n{lab('bw')}:\nglobal_load_dword {x('fl',1)}, {x('aFl')}, s[28:29] offset:-124 sc1\ns_sub_u32 s57, s57, 1\ns_waitcnt vmcnt(0)")
                A(f"v_cmp_ne_u32 vcc, s58, {x('fl',1)}\ns_cmp_eq_u32 s57, 0\ns_cbranch_scc1 {lab('bx')}\ns_cbranch_vccnz {lab('bw')}\n{lab('bx')}:\ns_mov_b64 exec, -1"); done[0]=len(Q); m0v[0]=None
            elif c=="Q": cspub()
            elif c=="X": kcs()
            elif c=="D": doorbell(l)
            elif c=="R": ring(l)
            elif c=="T": lane(int(a))
            elif c=="G": stamp(st); gather(True)
            else: raise Exception(tk)
    def edge(e,p,gather,check,kind,st,l,prep=None,loc=False):
        m0v[0]=None
        if "_J" in p:
            p1,p2=p.split("_J"); assert not set(p2)&set("CXDGF")
            prog(p1,gather,st,l)
            if prep: prep()
            check(lab('j%d'%e))
            snap=lambda:(list(Q),done[0],ns[0],set(moved),nbar[0],wfree[0])
            def rest(s_): Q[:]=s_[0]; done[0]=s_[1]; ns[0]=s_[2]; moved.clear(); moved.update(s_[3]); nbar[0]=s_[4]; wfree[0]=s_[5]; m0v[0]=None
            s0=snap(); m0v[0]=None; prog(p2,gather,st,l); A(f"{lab('k%d'%e)}:"); s1=snap()
            rest(s0); OOL(); A(f"{lab('j%d'%e)}:")
            if diag: A(f"s_add_u32 s{sRt}, s{sRt}, {1<<(8*kind)}")
            gather(True); prog(p2,gather,st,l)
            A(f"{lab('c%d'%e)}:"); check(lab('r%d'%e)); A(f"s_branch {lab('k%d'%e)}")
            retry(lab('r%d'%e),kind,loc and not mode); gather(False); A(f"s_waitcnt vmcnt(0)\ns_branch {lab('c%d'%e)}"); MAIN()
            rest(s1); return
        prog(p,gather,st,l)
        if prep: prep()
        A(f"{lab('c%d'%e)}:"); check(lab('r%d'%e))
        OOL(); retry(lab('r%d'%e),kind,loc and not mode); gather(False); A(f"s_waitcnt vmcnt(0)\ns_branch {lab('c%d'%e)}"); MAIN()
        m0v[0]=None
    def E1(e,p,l,prep=None):
        def g(sim): ld(sim,"g0",4,'G0','aG1',sN); ld(sim,"g1",4,'G1','aG1',sN,1024)
        def c(fail):
            waitfor("g0"); mf(R('D'),R('Sel'),R('G0'),"0"); chk(q4('G0')); waitfor("g1"); mf(R('D'),R('Sel'),R('G1'),R('D')); chk(q4('G1'),False); fin(fail)
        edge(e,p,g,c,0,0,l,prep)
    CQ=hex(f2u(128**-0.5*1.4426950408889634))
    def layer(l,pe1,pe2,pe3,spr):
        j=l>>1; B=sLb[j]; curl[0]=l
        if l: E1(3*l-1,pe1,l,lambda:zero("T0","T1","T2","T3"))
        if spr: tgt[0]=spr[0]
        stamp(1)
        cvtD(); wrA('xWQ')
        slot(); bar()
        if l: A(f"ds_read_b128 {R('Ag')}, {x('rG')} offset:{XQ}")
        A(f"ds_read_b128 {R('A0')}, {x('rA')} offset:{XQ}\nds_read_b128 {R('A1')}, {x('rA')} offset:{XQ+AS}")
        slot()
        if l:
            A("s_waitcnt lgkmcnt(2)"); mf(R('Tg'),R('Ag'),R('Ag'),"0")
            ex=["","",
                f"v_add_f32 {x('st')}, {x('Tg')}, {x('Tg',1)}\nv_add_f32 {x('st',1)}, {x('Tg',2)}, {x('Tg',3)}",
                f"v_cndmask_b32 {x('st')}, {x('st')}, {x('st',1)}, {sp(mCC)}",
                f"v_add_f32_dpp {x('st')}, {x('st')}, {x('st')} quad_perm:[1,0,3,2] {DP}",
                f"v_add_f32_dpp {x('st')}, {x('st')}, {x('st')} quad_perm:[2,3,0,1] {DP}",
                f"v_add_f32_dpp {x('st')}, {x('st')}, {x('st')} row_half_mirror {DP}\n"+rs('tA','T0')[0],
                rs('tB','T1')[0]+"\n"+rs('tA','T0')[1]]
        else: ex=[""]*6+[rs('tA','T0')[0],rs('tB','T1')[0]+"\n"+rs('tA','T0')[1]]
        A("s_waitcnt lgkmcnt(1)")
        wmm(0,ex)
        A(rs('tB','T1')[1])
        if l: A(f"s_mov_b64 exec, {sp(mS2)}\nglobal_store_dword {x('aPS2')}, {x('st')}, {sp(B)} {LOC()}\ns_mov_b64 exec, -1"); vm("P")
        swapadd("tA","tB")
        A(rs('tC','T2')[0]+"\n"+rs('tD','T3')[0]+"\n"+rs('tC','T2')[1]+"\n"+rs('tD','T3')[1])
        A("s_mov_b32 exec_hi, 0")
        swapadd("tC","tD")
        if l==0 and "y" in pe2:
            early[0]=1; A(f"v_cvt_pk_bf16_f32 {x('t5')}, {x('tA')}, {x('tC')}\nglobal_store_dword {x('aP2')}, {x('t5')}, {sp(B)}"); vm("P")
        else: A(f"v_cvt_pk_bf16_f32 {x('t0')}, {x('tA')}, {x('tC')}\nglobal_store_dword {x('aP2')}, {x('t0')}, {sp(B)} {LOC()}"); vm("P")
        A("s_mov_b32 exec_hi, -1")
        stamp(2)
        A(f"ds_write_b128 {x('xFw')}, {R('D' if l else 'X4')}")
        A(f"s_add_u32 s57, s{sTag}, {l+1}\nv_mov_b32 {x('dbv')}, s57")
        def g(sim):
            gE2(sim,'aG2',B,B)
            if l: ld(sim,"g4",4,'S','aS2',B)
        def c(fail):
            cE2()
            if l: waitfor("g4"); chk(q4('S')[:3],False)
            fin(fail)
        def prep():
            zero("T0","T1","T2","T3","L0","L1")
            if l: A(f"v_mov_b64 {R('U0',2,2)}, 0\nv_mov_b64 {R('U1',2,2)}, 0")
            else: zero("U0","U1")
        edge(3*l,pe2,g,c,1,3,l,prep,l>0 or "y" in pe2)
        assert ("k",0) in moved
        if spr: tgt[0]=spr[1]
        stamp(4)
        cvtD(); wrA('xWA')
        if l:
            A(f"v_add_f32 {x('st')}, {x('S')}, {x('S',1)}\nv_add_f32_dpp {x('st',1)}, {x('S',2)}, {x('S',2)} row_ror:1 {DP}")
            A(f"v_add_f32_dpp {x('st')}, {x('st')}, {x('st')} row_ror:1 {DP}\nv_add_f32_dpp {x('st',1)}, {x('st',1)}, {x('st',1)} row_ror:2 {DP}")
        vlate=("v",0) not in moved
        if vlate and o["vpos"]==1: wload(31)
        slot(); bar()
        A(f"ds_read_b128 {R('A0')}, {x('rA')} offset:{XA}\nds_read_b128 {R('A1')}, {x('rA')} offset:{XA+AS}")
        nl=0
        ym=l==0 and main[0] is pre
        if ym: A(YR); nl+=2
        if vlate and o["vpos"]==1: trV(); nl+=16
        stamp(5)
        if l:
            A(f"v_add_f32_dpp {x('st')}, {x('st')}, {x('st')} row_ror:2 {DP}\nv_add_f32_dpp {x('st',1)}, {x('st',1)}, {x('st',1)} row_ror:4 {DP}")
            A(f"v_add_f32_dpp {x('st')}, {x('st')}, {x('st')} row_ror:4 {DP}\nv_add_f32_dpp {x('st',1)}, {x('st',1)}, {x('st',1)} row_ror:8 {DP}")
            A(f"v_add_f32_dpp {x('st')}, {x('st')}, {x('st')} row_ror:8 {DP}\nv_mul_f32 {x('ab',1)}, {hex(f2u(-1/1024))}, {x('st',1)}")
            for t in range(2): A(f"v_pk_mul_f32 {R('U%d'%t,2)}, {R('kc%d'%t,2)}, {R('ab',2)} op_sel:[0,1] op_sel_hi:[1,1]")
            ex=[f"v_mul_f32 {x('t0')}, {x('ab',1)}, {x('ab',1)}\nv_mul_f32 {x('t1')}, {hex(f2u(1/1024))}, {x('st')}",
                f"v_sub_f32 {x('t1')}, {x('t1')}, {x('t0')}\nv_max_f32 {x('t1')}, 0, {x('t1')}",
                f"v_add_f32 {x('t1')}, {hex(f2u(1e-5))}, {x('t1')}\nv_rsq_f32 {x('t1')}, {x('t1')}",
                f"v_mul_f32 {x('ab')}, {CQ}, {x('t1')}"]
        elif ym: ex=["",f"s_waitcnt lgkmcnt({min(nl-2,15)})\n"+YC[0],YC[1],YC[2]]
        else: ex=[""]*4
        slot()
        for s_ in range(2):
            A(f"s_waitcnt lgkmcnt({min(nl+1-s_,15)})")
            for t in range(2):
                smf(f"U{t}",f"A{s_}",ar(64+(t*2+s_)*8,8))
                if ex[2*s_+t]: A(ex[2*s_+t])
            slot()
        A(f"v_pk_add_f32 {R('tA',2)}, {R('U0',2)}, {R('U0',2,2)}\nv_pk_add_f32 {R('tB',2)}, {R('U1',2)}, {R('U1',2,2)}")
        A(f"v_max_f32 {x('mx')}, {x('tA')}, {x('tB')}\nv_max_f32 {x('mx',1)}, {x('tA',1)}, {x('tB',1)}")
        for k in (1,2,4,8): A(f"v_max_f32_dpp {x('mx')}, {x('mx')}, {x('mx')} row_ror:{k} {DP}\nv_max_f32_dpp {x('mx',1)}, {x('mx',1)}, {x('mx',1)} row_ror:{k} {DP}")
        A(f"v_pk_mul_f32 {R('mx',2)}, {R('mx',2)}, {R('ab',2)} op_sel_hi:[1,0]\nv_ceil_f32 {x('mx')}, {x('mx')}\nv_ceil_f32 {x('mx',1)}, {x('mx',1)}")
        for T in ("tA","tB"): A(f"v_pk_fma_f32 {R(T,2)}, {R(T,2)}, {R('ab',2)}, {R('mx',2)} op_sel_hi:[1,0,1] neg_lo:[0,0,1] neg_hi:[0,0,1]")
        A(f"v_exp_f32 {x('tA')}, {x('tA')}\nv_exp_f32 {x('tB')}, {x('tB')}\nv_exp_f32 {x('tA',1)}, {x('tA',1)}\nv_exp_f32 {x('tB',1)}, {x('tB',1)}")
        A(f"v_cvt_pk_bf16_f32 {x('t0')}, {x('tA')}, {x('tB')}\nds_write_b64 {x('mW')}, {R('mx',2)}\nv_cvt_pk_bf16_f32 {x('t1')}, {x('tA',1)}, {x('tB',1)}")
        A(f"ds_write2_b32 {x('pW')}, {x('t0')}, {x('t1')} offset0:0 offset1:4")
        vlate=("v",0) not in moved
        if vlate: wload(31)
        if ym: marker()
        slot(); bar()
        A(f"ds_read_b128 {R('A0')}, {x('rP')} offset:{XP}\nds_read_b128 {R('W0')}, {x('mR')}\nds_read_b128 {R('W1')}, {x('mR')} offset:16\nds_read_b128 {R('A1')}, {x('rP')} offset:{XP+AS}")
        if vlate: trV()
        stamp(6); slot()
        mxs=[f"v_max3_f32 {x('P4',h)}, {x('W0',h)}, {x('W0',2+h)}, {x('W1',h)}" for h in (0,1)]+[f"v_max_f32 {x('P4',h)}, {x('P4',h)}, {x('W1',2+h)}" for h in (0,1)]
        sub=[f"v_pk_add_f32 {R(W,2,h)}, {R(W,2,h)}, {R('P4',2)} neg_lo:[0,1] neg_hi:[0,1]" for W in ("W0","W1") for h in (0,2)]
        ex_=[f"v_exp_f32 {x(W,h)}, {x(W,h)}" for W in ("W0","W1") for h in range(4)]
        if vlate:
            A("s_waitcnt lgkmcnt(15)"); A("\n".join(mxs+sub+ex_)); smf("L0","A0",R('One',8)); smf("L1","A1",R('One',8)); A("s_waitcnt lgkmcnt(8)")
            smf("T0","A0",ar(96,8)); smf("T1","A0",ar(112,8)); A("s_waitcnt lgkmcnt(0)"); smf("T2","A1",ar(104,8)); smf("T3","A1",ar(120,8))
        else:
            A("s_waitcnt lgkmcnt(3)"); smf("T0","A0",ar(96,8)); A("s_waitcnt lgkmcnt(1)\n"+mxs[0]+"\n"+mxs[1])
            smf("T1","A0",ar(112,8)); A(mxs[2]+"\n"+mxs[3]+"\ns_waitcnt lgkmcnt(0)")
            smf("T2","A1",ar(104,8)); A(sub[0]+"\n"+sub[1])
            smf("T3","A1",ar(120,8)); A(sub[2]+"\n"+sub[3])
            smf("L0","A0",R('One',8)); A(ex_[0]+"\n"+ex_[1])
            smf("L1","A1",R('One',8)); A("\n".join(ex_[2:]))
        def comb(d,Ta,Tb,do=0):
            return [f"v_pk_mul_f32 {R(d,2,do)}, {R(Ta,2)}, {R('W0',2)}",f"v_pk_fma_f32 {R(d,2,do)}, {R(Ta,2,2)}, {R('W0',2,2)}, {R(d,2,do)}",
                    f"v_pk_fma_f32 {R(d,2,do)}, {R(Tb,2)}, {R('W1',2)}, {R(d,2,do)}",f"v_pk_fma_f32 {R(d,2,do)}, {R(Tb,2,2)}, {R('W1',2,2)}, {R(d,2,do)}"]
        for a_,b_ in zip(comb('tA','T0','T2'),comb('tB','T1','T3')): A(a_+"\n"+b_)
        A(f"v_cvt_pk_bf16_f32 {x('t0')}, {x('tA')}, {x('tB')}\nv_cvt_pk_bf16_f32 {x('t1')}, {x('tA',1)}, {x('tB',1)}")
        cl=comb('P4','L0','L1',2)
        assert acked("R") and len(vm2)==2
        A(f"global_store_dword {x('aP3')}, {x('t0')}, {sp(B)} {LOC()}\n{cl[0]}\n{cl[1]}\nglobal_store_dword {x('aP3')}, {x('t1')}, {sp(B)} offset:256 {LOC()}\n{cl[2]}\n{cl[3]}"); vm("P"); vm("P")
        A(f"s_mov_b64 exec, {sp(mS3)}\nglobal_store_dwordx4 {x('aPS3')}, {R('P4')}, {sp(B)} {LOC()}\ns_mov_b64 exec, -1"); vm("P")
        stamp(7)
        if l<3 and RING[l]==0: ring(l)
        def resid():
            A(f"v_add_u32 {x('t2')}, {2*FS}, {x('xFr')}")
            for k,(a_,F,h) in enumerate((('xFr','F0',0),('xFr','F0',2),('t2','F1',0),('t2','F1',2))): A(f"ds_read2_b32 {R(F,2,h)}, {x(a_)} offset0:{(k&1)*FS//4} offset1:{(k&1)*FS//4+4}")
            zero("T0","T1","T2","T3")
            A(f"s_waitcnt lgkmcnt(0)\nv_pk_add_f32 {R('F0',2)}, {R('F0',2)}, {R('F0',2,2)}\nv_pk_add_f32 {R('F1',2)}, {R('F1',2)}, {R('F1',2,2)}\nv_pk_add_f32 {R('F0',2)}, {R('F0',2)}, {R('F1',2)}")
            A(f"v_cvt_pk_bf16_f32 {x('t2')}, {x('F0')}, {x('F0',1)}\nv_lshlrev_b32 {x('xr')}, 16, {x('t2')}\nv_and_b32 {x('xr',1)}, 0xffff0000, {x('t2')}")
            A(f"v_mul_f32 {x('xr')}, s{sXs}, {x('xr')}\nv_mul_f32 {x('xr',1)}, s{sXs}, {x('xr',1)}")
        def g(sim):
            ld(sim,"g2",3,'S','aS3',B); ld(sim,"g0",4,'G0','aG3',B); ld(sim,"g1",4,'G1','aG3',B,2048)
            if sim and l<3 and RING[l]==1: ring(l)
        def c(fail):
            waitfor("g2")
            A(f"v_max_f32_dpp {x('st')}, {x('S')}, {x('S')} quad_perm:[1,0,3,2] {DP}")
            A(f"v_max_u32 {x('chk')}, {x('S')}, {x('S',2)}")
            A(f"v_max_f32_dpp {x('st')}, {x('st')}, {x('st')} quad_perm:[2,3,0,1] {DP}")
            A(f"v_max_f32_dpp {x('st')}, {x('st')}, {x('st')} row_half_mirror {DP}")
            A(f"v_subrev_f32_dpp {x('t0')}, {x('st')}, {x('S')} row_newbcast:0 {DP}")
            A(f"v_exp_f32 {x('t0')}, {x('t0')}")
            waitfor("g0"); chk(q4('G0'),False)
            A(f"v_perm_b32 {x('t1')}, {x('t0')}, {x('t0')}, s{sPerm}\nv_mul_f32 {x('st',1)}, {x('t0')}, {x('S',2)}")
            for e in range(4): A(f"v_and_b32_dpp {x('A0',e)}, {x('t1')}, {x('Msk',e)} row_newbcast:8 {DP}")
            for e in range(2): A(f"v_and_b32_dpp {x('A1',e)}, {x('t1')}, {x('Msk',e)} row_newbcast:9 {DP}")
            mf(R('D'),R('A0'),R('G0'),"0")
            for e in range(2,4): A(f"v_and_b32_dpp {x('A1',e)}, {x('t1')}, {x('Msk',e)} row_newbcast:9 {DP}")
            A(f"v_add_f32_dpp {x('st',1)}, {x('st',1)}, {x('st',1)} quad_perm:[1,0,3,2] {DP}")
            waitfor("g1")
            mf(R('D'),R('A1'),R('G1'),R('D'))
            chk(q4('G1'),False)
            A(f"v_add_f32_dpp {x('st',1)}, {x('st',1)}, {x('st',1)} quad_perm:[2,3,0,1] {DP}")
            A(f"v_cmp_eq_u32 vcc, -1, {x('chk')}")
            A(f"v_add_f32_dpp {x('st',1)}, {x('st',1)}, {x('st',1)} row_half_mirror {DP}")
            A(f"s_cbranch_vccnz {fail}")
        if o.get("rpos",0)==0: resid()
        edge(3*l+1,pe3,g,c,2,8,l,resid if o.get("rpos",0) else None,True)
        assert ("o",3) in moved
        stamp(9)
        A(f"s_mov_b64 exec, 1\nds_write_b64 {x('lW')}, {R('st',2)}")
        if l<3 and RING[l]==2: A(f"s_mov_b64 exec, 3\nglobal_store_dword {x('aDp')}, {x('dbv')}, s[28:29] sc1"); vm("ring")
        A("s_mov_b64 exec, -1")
        cvtD(); wrA('xWO')
        bar()
        A(f"ds_read_b128 {R('A0')}, {x('rA')} offset:{XO}\nds_read_b128 {R('F0')}, {x('lR')}\nds_read_b128 {R('F1')}, {x('lR2')}\nds_read_b128 {R('A1')}, {x('rA')} offset:{XO+AS}")
        stamp(10)
        if l<3 and RING[l]==3: ring(l)
        Ms=[x('F0'),x('F0',2),x('F1'),x('F1',2)]; Ls=[x('F0',1),x('F0',3),x('F1',1),x('F1',3)]
        pa=lambda d,T:f"v_pk_add_f32 {R(d,2)}, {R(T,2)}, {R(T,2,2)}"
        mw=lambda d:[f"v_mul_f32 {x(d)}, {x(d)}, {x('W0')}",f"v_fma_f32 {x(d)}, {x(d,1)}, {x('W0',1)}, {x(d)}"]
        ex=[f"s_waitcnt lgkmcnt(1)\nv_max3_f32 {x('t0')}, {Ms[0]}, {Ms[1]}, {Ms[2]}",
            f"v_max_f32 {x('t0')}, {x('t0')}, {Ms[3]}\nv_sub_f32 {x('W0')}, {Ms[0]}, {x('t0')}",
            f"v_sub_f32 {x('W0',1)}, {Ms[1]}, {x('t0')}\nv_exp_f32 {x('W0')}, {x('W0')}",
            f"v_sub_f32 {x('W0',2)}, {Ms[2]}, {x('t0')}\nv_exp_f32 {x('W0',1)}, {x('W0',1)}",
            f"v_sub_f32 {x('W0',3)}, {Ms[3]}, {x('t0')}\nv_exp_f32 {x('W0',2)}, {x('W0',2)}",
            f"v_mul_f32 {x('t1')}, {x('W0')}, {Ls[0]}\nv_exp_f32 {x('W0',3)}, {x('W0',3)}",
            f"v_fma_f32 {x('t1')}, {x('W0',1)}, {Ls[1]}, {x('t1')}\n"+pa('tA','T0')+"\n"+pa('tB','T1'),
            f"v_fma_f32 {x('t1')}, {x('W0',2)}, {Ls[2]}, {x('t1')}\n"+mw('tA')[0]+"\n"+mw('tB')[0]]
        A("s_waitcnt lgkmcnt(3)")
        wmm(128,ex)
        A(f"v_fma_f32 {x('t1')}, {x('W0',3)}, {Ls[3]}, {x('t1')}\n"+mw('tA')[1]+"\n"+mw('tB')[1]+f"\nv_rcp_f32 {x('t1')}, {x('t1')}")
        swapadd("tA","tB")
        A(pa('tC','T2')+"\n"+pa('tD','T3')+"\n"+mw('tC')[0]+"\n"+mw('tD')[0]+"\n"+mw('tC')[1]+"\n"+mw('tD')[1])
        A(f"v_fma_f32 {x('tA')}, {x('tA')}, {x('t1')}, {x('xr')}")
        swapadd("tC","tD")
        A(f"v_fma_f32 {x('tC')}, {x('tC')}, {x('t1')}, {x('xr',1)}\nv_cvt_pk_bf16_f32 {x('t0')}, {x('tA')}, {x('tC')}\nglobal_store_dword {x('aP1')}, {x('t0')}, {sp(B)} sc1"); vm("P")
        stamp(11)
        if l<3 and RING[l]==4: ring(l)
        flush(l)
    def lnorm():
        waitfor("x")
        H=lambda k:x('G0',k) if k<4 else x('G1',k-4)
        A(f"v_mov_b64 {R('st',2)}, 0")
        for k in range(8): A(f"v_dot2_f32_bf16 {x('st')}, {H(k)}, {H(k)}, {x('st')}\nv_dot2_f32_bf16 {x('st',1)}, {H(k)}, {x('One')}, {x('st',1)}")
        A(f"v_lshlrev_b32 {x('X4')}, 16, {x('c01')}\nv_and_b32 {x('X4',1)}, 0xffff0000, {x('c01')}\nv_lshlrev_b32 {x('X4',2)}, 16, {x('c01',1)}\nv_and_b32 {x('X4',3)}, 0xffff0000, {x('c01',1)}")
        for k in (1,2,4,8): A(f"v_add_f32_dpp {x('st')}, {x('st')}, {x('st')} row_ror:{k} {DP}\nv_add_f32_dpp {x('st',1)}, {x('st',1)}, {x('st',1)} row_ror:{k} {DP}")
        for wd in (16,32):
            A(f"v_mov_b64 {R('mx',2)}, {R('st',2)}\nv_permlane{wd}_swap_b32 {x('mx')}, {x('st')}\nv_permlane{wd}_swap_b32 {x('mx',1)}, {x('st',1)}\nv_pk_add_f32 {R('st',2)}, {R('st',2)}, {R('mx',2)}")
        A(f"v_mul_f32 {x('ab',1)}, {hex(f2u(-1/1024))}, {x('st',1)}\nv_mul_f32 {x('t0')}, {x('ab',1)}, {x('ab',1)}\nv_mul_f32 {x('t1')}, {hex(f2u(1/1024))}, {x('st')}")
        A(f"v_sub_f32 {x('t1')}, {x('t1')}, {x('t0')}\nv_max_f32 {x('t1')}, 0, {x('t1')}\nv_add_f32 {x('t1')}, {hex(f2u(1e-5))}, {x('t1')}\nv_rsq_f32 {x('t1')}, {x('t1')}\nv_mul_f32 {x('t1')}, {hex(f2u(0.25))}, {x('t1')}")
        for k in range(4): A(f"v_add_f32 {x('D',k)}, {x('X4',k)}, {x('ab',1)}\nv_mul_f32 {x('D',k)}, {x('D',k)}, {x('t1')}\nv_mul_f32 {x('X4',k)}, {hex(f2u(0.25))}, {x('X4',k)}")
        A(f"v_mov_b32 {x('ab')}, {CQ}")
        zero("T0","T1","T2","T3")
    if not role:
        prog(o["ap"]); assert ("q",3) in moved
        lane(3)
        tgt[0]=o["aq"]
        layer(0,None,o["a0"],o["a1"],(o["aq"],o["asp"][0]))
        assert ns[0]==48
        prog(o["acs"])
        layer(2,o["a2"],o["a3"],o["a4"],None)
    else:
        prog(o["bp"])
        if main[0] is pre: marker()
        lane(3)
        layer(1,o["b1"],o["b2"],o["b3"],o["bsp"])
        assert ns[0]==48
        A(f"v_add_u32 {x('aG1')}, {2*S}, {x('aG1')}")
        layer(3,o["b4"],o["b5"],o["b6"],None)
        A(f"s_and_b32 s57, s{sR}, 3\ns_xor_b32 s57, s57, s{sG}\ns_or_b32 s57, s57, s{sI}\ns_cmp_eq_u32 s57, 0\ns_cbranch_scc0 L_fail")
        A(f"v_add_u32 {x('aG1')}, {S}, {x('aG1')}\ns_lshl_b32 s57, s{sR}, 8\ns_sub_u32 s57, s57, {XF//2}\nv_lshrrev_b32 {x('t3')}, 1, {x('xFw')}\nv_add_u32 {x('t3')}, s57, {x('t3')}\nv_mov_b32 {x('t4')}, {NONCE}\nv_mov_b32 {x('fl')}, s{sTag}")
        E1(11,o["b7"],4)
        stamp(0)
        A(f"ds_write_b128 {x('xFw')}, {R('D')}"); bar()
        if diag: A(f"v_writelane_b32 {x('stamp')}, s76, 60")
        A(f"s_cmp_eq_u32 s{sW}, 0\ns_cbranch_scc0 L_fail")
        for k in range(4): A(f"ds_read_b128 {R('F%d'%k)}, {x('xFw')} offset:{k*FS}")
        A("s_waitcnt lgkmcnt(0)")
        for h in (0,2):
            A(f"v_pk_add_f32 {R('F0',2,h)}, {R('F0',2,h)}, {R('F1',2,h)}\nv_pk_add_f32 {R('F2',2,h)}, {R('F2',2,h)}, {R('F3',2,h)}\nv_pk_add_f32 {R('F0',2,h)}, {R('F0',2,h)}, {R('F2',2,h)}")
        cvtD('F0')
        if ENC: A(f"s_memrealtime s[94:95]\ns_waitcnt lgkmcnt(0)\ns_sub_u32 s96, s96, s98\ns_min_u32 s96, s96, 4000\ns_lshl_b32 s96, s96, 2\n{lab('en')}:\ns_memrealtime s[100:101]\ns_waitcnt lgkmcnt(0)\ns_sub_u32 s100, s100, s94\ns_cmp_lt_u32 s100, s96\ns_cbranch_scc1 {lab('en')}")
        A(f"s_mov_b32 exec_hi, 0\nglobal_store_dwordx2 {x('t3')}, {R('c01',2)}, s[24:25]")
        A(f"s_cmp_eq_u32 s{sR}, 0\ns_cbranch_scc0 L_fail")
        A(f"s_mov_b64 exec, 1\nglobal_store_dword {x('t4')}, {x('fl')}, s[28:29] sc1")
    A("s_branch L_fail" if diag else "s_endpgm")
    return pre,preo,post,posto
def gen(name=NAME, **kw):
    o=dict(DEF); o.update(kw); diag=o["diag"]
    L=HDR.rstrip("\n").split("\n")
    L.append(f"; @launch grid=(256,1,1) block=(256,1,1) lds={LDSSZ}")
    L+=f'.amdgcn_target "amdgcn-amd-amdhsa--gfx950"\n.text\n.globl {name}_kernel\n.p2align 8\n.type {name}_kernel,@function\n{name}_kernel:'.split("\n")
    L+="s_cmp_ge_u32 s2, 256\ns_cbranch_scc1 L_end\ns_load_dwordx16 s[4:19], s[0:1], 0\ns_load_dwordx8 s[20:27], s[0:1], 64\ns_load_dwordx2 s[28:29], s[0:1], 96\ns_bitcmp1_b32 s2, 0\ns_cbranch_scc1 L_B".split("\n")
    alt=[]
    for role in (0,1):
        pre,preo,post,posto=path(role,0,o); L+=pre+post+preo+posto+[f"L_end{'AB'[role]}:","s_endpgm"]
        pre,preo,post,posto=path(role,1,o); alt+=post+posto
    L+=alt
    L.append("L_fail:")
    if diag:
        L+=("s_mov_b64 exec, -1\ns_memrealtime s[76:77]\ns_memtime s[78:79]\ns_waitcnt lgkmcnt(0)\ns_sub_u32 s78, s78, s74\n"
            f"v_writelane_b32 {x('stamp')}, s76, 61\nv_writelane_b32 {x('stamp')}, s78, 62\nv_writelane_b32 {x('stamp')}, s{sTo}, 63\n"
            f"s_lshl_b32 s57, s2, 10\ns_lshl_b32 s58, s{sW}, 8\ns_add_u32 s57, s57, s58\ns_add_u32 s57, s57, {DIAG}\nv_lshl_add_u32 {x('t0')}, v0, 2, s57\nglobal_store_dword {x('t0')}, {x('stamp')}, s[28:29]").split("\n")
    L+=["L_end:","s_endpgm"]
    L+=f'.section .rodata,"a"\n.p2align 6\n.amdhsa_kernel {name}_kernel\n  .amdhsa_next_free_vgpr 512\n  .amdhsa_next_free_sgpr 102\n  .amdhsa_accum_offset 256\n  .amdhsa_group_segment_fixed_size 0\n  .amdhsa_kernarg_size 104\n  .amdhsa_user_sgpr_count 2\n  .amdhsa_user_sgpr_kernarg_segment_ptr 1\n  .amdhsa_system_sgpr_workgroup_id_x 1\n.end_amdhsa_kernel'.split("\n")
    out,n=fix(L,verbose=("-v" in sys.argv))
    return "\n".join(out)+"\n"
def parse(args):
    kw={}
    for a in args:
        if "=" in a:
            k,val=a.split("=")
            if isinstance(DEF.get(k),str): kw[k]=val
            else: kw[k]=tuple(int(z) for z in val.split(",")) if "," in val else int(val)
    return kw
if __name__=="__main__":
    t=gen(**parse(sys.argv[2:]))
    if "diag=1" in sys.argv: t+="; args: "+" ".join(a for a in sys.argv[2:] if a!="diag=1")+"\n"
    open(sys.argv[1],"w").write(t)
```

```python
import sys, math, struct
from hz import fix
NAME="interleave_layers__sliding_block_cached__sliding_block_cached__decode"
HDR=open("cdna_kernels/%s.s.ref"%NAME).read().split("; Override launch")[0]
def f2u(x): return struct.unpack("<I",struct.pack("<f",x))[0]
AS=1056
XQ=0; XA=2*AS; XO=4*AS; XP=6*AS; XM=8*AS; XR=XM+128; XV=XR+32; XF=XV+32; FS=528
BUFK=0x2c00; VS=8320; BUFV=BUFK+0x8000; WS=16416; BUFW=BUFV+4*VS; LDSSZ=BUFW+4*WS
assert XF+4*FS<=BUFK and XF%16==0
S=0x20000; DB=0x80000; PRB=0xC0000; MISC=0x100000; ST2=MISC+0x10000; ST3=MISC+0x14000; CS=MISC+0x18000
FLG=0x1A0000; NONCE=0x1A8000; E3=0x200000; DIAG=6<<20
class Regs:
    def __init__(s,n0): s.n=n0; s.d={}
    def __call__(s,name,k=1,al=1):
        s.n=(s.n+al-1)//al*al; s.d[name]=s.n; s.n+=k; return s.d[name]
ORDER=[("q",q) for q in range(16)]+[("k",q) for q in range(8)]+[("v",q) for q in range(8)]+[("o",q) for q in range(16)]
DEF=dict(diag=0, TMO=30000, slp=2, slpl=1, wfl=0, kfl=0, pf=1, force=0, dsl=3, ring=(3,1,1), vpos=2,
         an0=16, ap="U_Z_H0_L24_E_M8_M16", aq=24, br0="", ar0="0",
         a0="N1_F_L26_W21_C_G_B_L32_K", a1="L40_S2_G_B_L48_M40_M48", acs="F_H1_V_Q_X_Y", a2="D_G", a3="S2_G", a4="S2_G",
         asp=(36,48),
         bn0=2, bp="U_N0_N1_Z_O_H0_H1_P12.2_F_P24.8_C_M16_B_Y_Q_P32.8_K_X_M32_P40.8",
         b1="D_G_B_L44", b2="S2_G_B_L48", b3="S2_G_M48", b4="D_G", b5="S2_G", b6="S2_G", b7="A_G",
         bsp=(44,48,48), sk=1)
FL=['nt','','sc1','sc0 sc1','sc1 nt','sc0','sc0 sc1 nt','sc0 nt']
V=Regs(1)
for n in "Sel SelL SelH Msk G0 G1 G2 G3 S D T0 T1 T2 T3 U0 U1 L0 L1 Tg Ag A0 A1 W0 W1 F0 F1 F2 F3 Neg P4 X4 fF".split(): V(n,4,4)
V("One",8,4)
for n in "c01 st ab tA tB tC tD kc0 kc1 xr pa fl mx".split(): V(n,2,2)
for n in ("aG1 aG2 aC2 aS2 aG3 aS3 aP2 aPS2 aP3 aPS3 aP1 aR aWm aF aFl aDp aDc dQ dK dV dO dT dS xWQ xWA xWO xFw xFr rA rG rP pW mW mR lW lR lR2 vW "
          "tT0 tT1 tV tK idx tid n g t0 t1 t2 t3 t4 t5 chk p0 p1 p2 p3 dbv stamp").split(): V(n)
assert V.n<=256
r=V.d
v=lambda i:f"v{i}"
vr=lambda i,k:f"v[{i}:{i+k-1}]"
ar=lambda i,k:f"a[{i}:{i+k-1}]"
sp=lambda i:f"s[{i}:{i+1}]"
R=lambda n,k=4,o=0:vr(r[n]+o,k)
x=lambda n,o=0:v(r[n]+o)
q4=lambda n:list(range(r[n],r[n]+4))
DP="row_mask:0xf bank_mask:0xf"
sW,sG,sM,sR,sI,sI2,sCB,sMode=30,31,32,33,34,35,36,37
sLb=[38,40]; sN=42; sWq,sWv,sXs,sExp=44,45,46,47; mS3,mCC,mS2=48,50,52; sX28,sSide,sPerm=54,55,56
sWk,sRt,sTo,sTag=3,14,15,26

def path(role,mode,o):
    RING=o["ring"] if isinstance(o["ring"],tuple) else (o["ring"],)*3
    X="AB"[role]; diag=o["diag"]; TMO=o["TMO"]
    pre=[]; preo=[]; post=[]; posto=[]
    main=[pre]; ool=[preo]; cur=[pre]; sfx=[X]
    def A_(t):
        for z in t.split("\n"): cur[0].append(z)
    hook=[A_]
    def A(t): hook[0](t)
    def OOL(): cur[0]=ool[0]
    def MAIN(): cur[0]=main[0]
    lab=lambda n:f"L_{n}_{sfx[0]}"
    PTR=[dict(k=6,v=8,q=10,o=12),dict(k=16,v=18,q=20,o=22)][role]
    LOC=lambda: "sc1" if (mode or main[0] is pre) else ""
    Q=[]
    def vm(tag): Q.append(tag)
    def cnt(tag):
        i=max(i for i,t in enumerate(Q) if t==tag); n=len(Q)-1-i; return min(n,63)
    done=[0]
    def waitfor(tag): n=cnt(tag); done[0]=max(done[0],len(Q)-n); A(f"s_waitcnt vmcnt({n})")
    def acked(tag): return tag in Q and max(i for i,t in enumerate(Q) if t==tag)<done[0]
    curl=[0]
    ENC=o.get("enc",0)
    def stamp(k):
        if ENC and role and ENC==100*curl[0]+k: A("s_memrealtime s[96:97]")
        if diag: A(f"s_memrealtime s[{76+2*k}:{77+2*k}]")
    def lane(k):
        if ENC and role and ENC==1000+k: A("s_memrealtime s[96:97]")
        if diag: A(f"s_memrealtime s[100:101]\ns_waitcnt lgkmcnt(0)\nv_writelane_b32 {x('stamp')}, s100, {k}")
    def flush(l):
        if not diag: return
        A("s_waitcnt lgkmcnt(0)")
        for k in range(13):
            if l or 0<k<12: A(f"v_writelane_b32 {x('stamp')}, s{76+2*k}, {4+14*l+k}")
        A(f"v_writelane_b32 {x('stamp')}, s{sRt}, {4+14*l+13}\ns_mov_b32 s{sRt}, 0")
    ns=[0]; moved=set(); nbar=[0]; m0v=[None]; wfree=[99]
    def bar():
        A("s_waitcnt lgkmcnt(0)\ns_barrier"); nbar[0]+=1
    def setm0(sreg,val):
        if m0v[0]!=(sreg,val): A(f"s_add_u32 m0, s{sreg}, {val}"); m0v[0]=(sreg,val)
    def dma(kind,q):
        p=PTR[kind]
        if kind in "qo":
            if kind=="o": assert wfree[0]<=nbar[0] or o.get("nochk"), ("W buffer busy",nbar[0])
            setm0(sWq,BUFW+(q>>2)*WS+(q&3)*4104)
            src=x("dQ" if kind=="q" else "dO")
            if q: A(f"v_add_u32 {x('dT')}, {q*(65536 if kind=='q' else 16384)}, {src}"); src=x("dT")
            A(f"global_load_lds_dwordx4 {src}, {sp(p)} {FL[o['wfl']]}")
        else:
            hi=q//4
            if kind=="v": setm0(sWv,BUFV+hi*4096+8*q)
            else: setm0(sWk,BUFK+hi*4096)
            src=x("dK" if kind=="k" else "dV")
            if kind=="k" and q: A(f"v_xor_b32 {x('dT')}, {q*32}, {src}"); src=x("dT")
            if hi: A(f"v_add_u32 {x('dT')}, 4096, {src}"); src=x("dT")
            A(f"global_load_lds_dwordx4 {src}, {sp(p)} offset:{(q%4)*1024} {FL[o['kfl']]}")
        vm(f"{kind}{q}")
    def stream(n):
        while ns[0]<n: dma(*ORDER[ns[0]]); ns[0]+=1
    def wload(i): k,q=ORDER[i]; assert i<ns[0]; waitfor(f"{k}{q}")
    tgt=[0]
    def slot():
        n=min(tgt[0],ns[0]+(o.get("bsk",1) if role else o["sk"]))
        while ns[0]<n:
            k,q=ORDER[ns[0]]
            if k=="o" and wfree[0]>nbar[0]: break
            dma(k,q); ns[0]+=1
    def trW(kind,reg):
        ab=0 if kind=="q" else 128; Sx=reg>>1
        for t in range(4):
            for ub in range(2):
                u=2*(reg&1)+ub
                A(f"ds_read_b64_tr_b16 {ar(ab+(t*2+Sx)*8+2*u,2)}, {x('tT%d'%(t&1))} offset:{reg*WS+ub*2048+8*(t>>1)}")
        moved.add((kind,reg))
        if kind=="q" and reg==3: wfree[0]=nbar[0]+1
    def trV():
        for U in range(2):
            for t in range(2):
                for jh in range(2):
                    for ib in range(2):
                        A(f"ds_read_b64_tr_b16 {ar(96+(t*2+U)*8+2*(2*jh+ib),2)}, {x('tV')} offset:{2*U*VS+jh*4128+ib*512+8*t}")
        moved.add(("v",0))
    def kreads():
        wload(23)
        for s in range(4):
            A(f"v_xor_b32 {x('dT')}, {64*s}, {x('tK')}")
            for t in range(2): A(f"ds_read_b128 {ar(64+(t*4+s)*4,4)}, {x('dT')} offset:{256*t}")
        moved.add(("k",0))
    def move(n):
        gs=[("q",k) for k in range(4) if 4*k+4<=n]+([("v",0)] if n>=32 else [])+[("o",k) for k in range(4) if 36+4*k<=n]
        gs=[g_ for g_ in gs if g_ not in moved]
        if not gs: return
        k,j=gs[-1]; wload({"q":4*j+3,"v":31,"o":35+4*j}[k]); bar()
        for k,j in gs:
            if k=="v": trV()
            else: trW(k,j)
    def mf(d,a,b,c): A(f"v_mfma_f32_16x16x32_bf16 {d}, {a}, {b}, {c}")
    def smf(d,a,b): A(f"v_smfmac_f32_16x16x64_bf16 {R(d)}, {R(a)}, {b}, {x('idx')}")
    def zero(*names):
        for n in names: A(f"v_mov_b64 {R(n,2)}, 0\nv_mov_b64 {R(n,2,2)}, 0")
    def chk(rs,first=True):
        rs=list(rs); c=x("chk")
        if first:
            A(f"v_max3_u32 {c}, v{rs[0]}, v{rs[1]}, v{rs[2]}"); rs=rs[3:]
        while len(rs)>=2: A(f"v_max3_u32 {c}, {c}, v{rs[0]}, v{rs[1]}"); rs=rs[2:]
        if rs: A(f"v_max_u32 {c}, {c}, v{rs[0]}")
    def fin(fail): A(f"v_cmp_eq_u32 vcc, -1, {x('chk')}\ns_cbranch_vccnz {fail}")
    def cvtD(T='D'): A(f"v_cvt_pk_bf16_f32 {x('c01')}, {x(T)}, {x(T,1)}\nv_cvt_pk_bf16_f32 {x('c01',1)}, {x(T,2)}, {x(T,3)}")
    def wrA(a): A(f"ds_write2_b32 {x(a)}, {x('c01')}, {x('c01',1)} offset0:0 offset1:8")
    def sel2(dst,a,b,thr,src="v0"): A(f"v_cmp_le_u32 vcc, {thr}, {src}\nv_cndmask_b32 {dst}, {a}, {b}, vcc")
    if role: A("L_B:")
    if o["pf"]:
        A(f"s_getpc_b64 s[58:59]\nL_pc{X}:\nv_lshlrev_b32 {x('t0')}, 6, v0\nv_min_u32 {x('t0')}, L_end{X}-L_pc{X}, {x('t0')}")
        A(f"v_add_co_u32 {x('pa')}, vcc, s58, {x('t0')}\nv_mov_b32 {x('t0')}, s59\nv_addc_co_u32 {x('pa',1)}, vcc, 0, {x('t0')}, vcc")
        A(f"global_load_dword {x('chk')}, {R('pa',2)}, off"); vm("pf")
    if diag: A("s_memrealtime s[98:99]\ns_memtime s[74:75]")
    if ENC: A("s_memrealtime s[98:99]\ns_memrealtime s[96:97]")
    A(f"v_lshrrev_b32 {x('t0')}, 6, v0\nv_mov_b32 {x('tid')}, v0\nv_and_b32 v0, 63, v0\nv_and_b32 {x('n')}, 15, v0\nv_readfirstlane_b32 s{sW}, {x('t0')}")
    A(f"s_bfe_u32 s{sG}, s2, 0x20001\ns_lshr_b32 s{sM}, s2, 3\ns_lshr_b32 s{sR}, s2, 5\ns_and_b32 s{sI}, s{sM}, 3\ns_and_b32 s{sI2}, s{sM}, 7\ns_lshr_b32 s{sCB}, s2, 6")
    A(f"v_lshrrev_b32 {x('g')}, 4, v0\nv_lshrrev_b32 {x('t5')}, 5, v0")
    A(f"v_and_b32 {x('t0')}, 31, v0\nv_lshlrev_b32 {x('t4')}, 4, {x('t0')}\nv_lshlrev_b32 {x('t0')}, 6, {x('t5')}\nv_xor_b32 {x('t1')}, {x('t4')}, {x('t0')}")
    A(f"s_and_b32 s60, s{sW}, 1\ns_lshl_b32 s57, s60, 7\nv_xor_b32 {x('t1')}, s57, {x('t1')}")
    A(f"s_lshl_b32 s57, s{sR}, 20\ns_lshl_b32 s58, s{sW}, 14\ns_add_u32 s57, s57, s58\ns_lshl_b32 s58, s{sG}, 11\ns_add_u32 s57, s57, s58\ns_lshl_b32 s58, s{sI}, 9\ns_add_u32 s57, s57, s58")
    if o.get("xi"): A(f"s_xor_b32 s57, s57, {o['xi']*512}")
    A(f"v_lshl_add_u32 {x('dQ')}, {x('t5')}, 13, {x('t1')}\nv_add_u32 {x('dQ')}, s57, {x('dQ')}")
    A(f"s_lshl_b32 s{sWq}, s{sW}, 10\ns_mul_i32 s{sWv}, s{sW}, {VS}\ns_lshl_b32 s{sWk}, s{sW}, 13")
    A(f"s_lshr_b32 s57, s{sG}, 1\ns_lshl_b32 s57, s57, 19\ns_and_b32 s58, s{sG}, 1\ns_lshl_b32 s58, s58, 16\ns_add_u32 s57, s57, s58\ns_add_u32 s62, s57, {E3}")
    A(f"s_lshl_b32 s57, s{sG}, 3\ns_add_u32 s57, s57, s{sI2}\ns_lshl_b32 s57, s57, 8\ns_lshl_b32 s58, s{sCB}, 15\ns_add_u32 s63, s57, s58")
    A(f"s_lshl_b32 s57, s{sG}, 14\ns_add_u32 s64, s57, {MISC}\ns_lshl_b32 s58, s{sR}, 8\ns_lshl_b32 s59, s{sI}, 12\ns_add_u32 s59, s59, s58\ns_add_u32 s65, s64, s59")
    A(f"s_lshl_b32 s66, s{sG}, 12\ns_lshl_b32 s57, s{sG}, 13\ns_add_u32 s69, s57, {CS}\ns_lshl_b32 s59, s{sI}, 11\ns_add_u32 s59, s59, s58\ns_add_u32 s67, s69, s59")
    A(f"s_lshl_b32 s57, s{sM}, 7\ns_add_u32 s68, s66, s57")
    A(f"v_lshlrev_b32 {x('t3')}, 4, {x('n')}")
    A(f"v_lshl_add_u32 {x('t0')}, {x('g')}, 11, {x('t3')}\nv_add_u32 {x('aWm')}, s65, {x('t0')}")
    A(f"v_bfe_u32 {x('t0')}, v0, 3, 1\nv_mul_u32_u24 {x('t0')}, {ST3-ST2-128}, {x('t0')}\ns_add_u32 s57, s68, {ST2}\nv_add3_u32 {x('t0')}, {x('t0')}, s57, {x('t3')}")
    sel2(x('aWm'),x('aWm'),x('t0'),32)
    A(f"v_add_u32 {x('t0')}, s67, {x('t3')}"); sel2(x('aWm'),x('aWm'),x('t0'),48)
    A(f"s_lshl_b32 s57, s{sW}, 15\ns_lshl_b32 s58, s{sM}, 9\ns_add_u32 s57, s57, s58\ns_add_u32 s57, s57, s62\nv_lshl_add_u32 {x('t0')}, {x('t5')}, 14, {x('t4')}\nv_add_u32 {x('t0')}, s57, {x('t0')}")
    A(f"s_movk_i32 s57, 128\ns_movk_i32 s58, 192"); sel2(x('aWm'),x('t0'),x('aWm'),"s57",x('tid'))
    A(f"v_lshl_add_u32 {x('t0')}, {x('g')}, 13, {x('t3')}\nv_add_u32 {x('t0')}, s63, {x('t0')}"); sel2(x('aR'),x('aWm'),x('t0'),"s58",x('tid'))
    for k in (0,2): A(f"v_mov_b64 {R('Neg',2,k)}, -1")
    A(f"v_and_b32 {x('t2')}, 1, {x('g')}\nv_lshl_add_u32 {x('t2')}, {x('t2')}, 3, {x('t3')}")
    if not role: A(f"s_lshl_b32 s57, s{sR}, 8\nv_add_u32 {x('p0')}, s57, {x('t2')}\nv_lshlrev_b32 {x('p1')}, 5, v0")
    A(f"s_getreg_b32 s{sX28}, hwreg(HW_REG_XCC_ID, 0, 4)")
    if o["force"]: A(f"s_lshr_b32 s57, s2, 3\ns_and_b32 s57, s57, {o['force']}\ns_xor_b32 s{sX28}, s{sX28}, s57")
    A(f"s_bfe_u32 s{sSide}, s{sX28}, 0x10002\ns_lshl_b32 s{sX28}, s{sX28}, 28")
    A("s_waitcnt lgkmcnt(0)")
    if diag: A(f"s_memrealtime s[76:77]\nv_mov_b32 {x('stamp')}, 0\ns_waitcnt lgkmcnt(0)\nv_writelane_b32 {x('stamp')}, s98, 0\nv_writelane_b32 {x('stamp')}, s76, 1")
    if ENC==1001: A("s_memrealtime s[96:97]")
    A("s_add_u32 s28, s28, 0x1fffff\ns_addc_u32 s29, s29, 0\ns_and_b32 s28, s28, 0xffe00000")
    if not role:
        A(f"global_load_dwordx2 {R('c01',2)}, {x('p0')}, s[4:5]"); vm("x")
        A(f"global_load_dwordx4 {R('G0')}, {x('p1')}, s[4:5]\nglobal_load_dwordx4 {R('G1')}, {x('p1')}, s[4:5] offset:16"); vm("x"); vm("x")
    for j in range(2): A(f"s_add_u32 s{sLb[j]}, s28, {(2*j+role)*S}\ns_addc_u32 s{sLb[j]+1}, s29, 0")
    A(f"s_add_u32 s58, s28, {NONCE}\ns_addc_u32 s59, s29, 0\ns_load_dword s{sTag}, s[58:59], 0")
    def reset(j): A(f"global_store_dwordx4 {x('aR')}, {R('Neg')}, {sp(sLb[j])} sc1"); vm("R"); vm2.add(j)
    vm2=set()
    for j in (o["br0"] if role else o["ar0"]): reset(int(j))
    n0=o["bn0"] if role else o["an0"]
    stream(min(n0,16))
    A(f"s_lshl_b32 s57, s{sG}, 24\ns_lshl_b32 s58, s{sM}, 15\ns_add_u32 s57, s57, s58\ns_add_u32 s57, s57, s{sWk}\ns_add_u32 s57, s57, {61440*256}")
    A(f"v_xor_b32 {x('t0')}, {x('n')}, {x('t5')}\nv_lshlrev_b32 {x('t0')}, 4, {x('t0')}\nv_lshl_add_u32 {x('dK')}, {x('g')}, 8, {x('t0')}\nv_add_u32 {x('dK')}, s57, {x('dK')}")
    A(f"v_and_b32 {x('p2')}, 1, {x('g')}\nv_lshlrev_b32 {x('p2')}, 6, {x('p2')}\nv_xor_b32 {x('t0')}, {x('t3')}, {x('p2')}\nv_lshl_add_u32 {x('dV')}, {x('g')}, 8, {x('t0')}\nv_add_u32 {x('dV')}, s57, {x('dV')}")
    stream(min(n0,32))
    A(f"s_lshl_b32 s57, s{sG}, 21\ns_lshl_b32 s58, s{sI2}, 18\ns_add_u32 s57, s57, s58\ns_lshl_b32 s58, s{sW}, 12\ns_add_u32 s57, s57, s58\ns_lshl_b32 s58, s{sCB}, 9\ns_add_u32 s57, s57, s58")
    A(f"v_lshl_add_u32 {x('dO')}, {x('t5')}, 11, {x('t1')}\nv_add_u32 {x('dO')}, s57, {x('dO')}")
    if role: A(f"s_lshl_b32 s57, s2, 2\ns_add_u32 s57, s57, s{sW}\ns_lshr_b32 s58, s57, 6\ns_lshl_b32 s58, s58, 14\ns_and_b32 s57, s57, 63\ns_lshl_b32 s57, s57, 7\ns_add_u32 s57, s57, s58")
    if role: A(f"s_lshl_b32 s58, s60, 13\ns_add_u32 s57, s57, s58\ns_add_u32 s57, s57, {PRB}\ns_xor_b32 s58, s57, 0x2000")
    if role: A(f"s_add_u32 s82, s28, s57\ns_addc_u32 s83, s29, 0\ns_add_u32 s90, s28, s58\ns_addc_u32 s91, s29, 0")
    if role: A(f"s_mov_b32 s84, 0x5bd1e995\ns_not_b32 s85, s84\ns_mov_b64 s[88:89], s[84:85]\ns_xor_b32 s73, s60, s{sSide}\ns_lshl_b32 s73, s73, 1\ns_sub_u32 s73, s73, 1")
    A(f"s_lshl_b32 s57, s2, 7\ns_lshl_b32 s58, s{sW}, 4\ns_add_u32 s57, s57, s58\ns_add_u32 s57, s57, {FLG}\nv_mov_b32 {x('aFl')}, s57")
    def flag():
        waitfor("R")
        A("s_waitcnt lgkmcnt(0)")
        A(f"s_mul_i32 s{sTag}, s{sTag}, 0x9e3779b1\ns_add_u32 s{sTag}, s{sTag}, 0x7f4a7c15\ns_xor_b32 s92, s{sTag}, s{sX28}\nv_mov_b32 {x('fl')}, s92")
        A(f"s_mov_b64 exec, 1\nglobal_store_dword {x('aFl')}, {x('fl')}, s[28:29] sc1\ns_mov_b64 exec, -1"); vm("flag")
        if diag: A("s_memrealtime s[78:79]\ns_waitcnt lgkmcnt(0)")
        if diag: A(f"v_writelane_b32 {x('stamp')}, s78, 2")
        assert len(vm2)==2 or not role
    def probe():
        assert role
        A(f"s_waitcnt lgkmcnt(0)\ns_load_dwordx2 s[86:87], s[82:83], 0\ns_load_dwordx2 s[88:89], s[90:91], 0")
        A(f"v_mov_b32 {x('pa')}, s{sTag}\ns_waitcnt lgkmcnt(2)\ns_cmp_eq_u64 s[88:89], s[84:85]\ns_cselect_b32 s73, s73, 0\nv_mov_b32 {x('pa',1)}, s73")
        A(f"s_mov_b64 exec, 1\nglobal_store_dwordx2 {x('aFl')}, {R('pa',2)}, s[28:29] offset:8 sc1\ns_mov_b64 exec, -1"); vm("vote")
    late=[]; hook[0]=late.append
    A(f"v_lshlrev_b32 {x('t0')}, 4, v0\ns_lshl_b32 s61, s{sW}, 11")
    A(f"s_lshl_b32 s57, s{sR}, 14\ns_add_u32 s57, s57, s61\ns_add_u32 s57, s57, {(1-role)*S}\nv_add_u32 {x('aG1')}, s57, {x('t0')}")
    A(f"s_lshl_b32 s57, s{sW}, 12\ns_add_u32 s57, s57, s64\nv_add_u32 {x('aG2')}, s57, {x('t0')}")
    A(f"s_add_u32 s57, s61, s69\nv_add_u32 {x('aC2')}, s57, {x('t0')}")
    A(f"s_lshr_b32 s58, s{sI2}, 1\ns_and_b32 s59, s{sI2}, 1\ns_lshl_b32 s57, s58, 14\ns_add_u32 s57, s57, s62\ns_lshl_b32 s70, s59, 8\ns_add_u32 s57, s57, s70\ns_lshl_b32 s70, s{sW}, 12\ns_add_u32 s57, s57, s70")
    A(f"v_lshl_add_u32 {x('t0')}, {x('g')}, 9, {x('t3')}\nv_add_u32 {x('aG3')}, s57, {x('t0')}")
    A(f"s_lshl_b32 s58, s58, 4\ns_lshl_b32 s59, s59, 2\ns_add_u32 s57, s58, s59\ns_add_u32 s57, s57, s66\ns_add_u32 s57, s57, s{sWq}\ns_add_u32 s57, s57, {ST3}")
    A(f"v_and_b32 {x('t4')}, 1, v0\nv_lshl_add_u32 {x('p3')}, {x('t4')}, 2, {x('g')}\nv_and_b32 {x('p1')}, 7, v0\nv_and_b32 {x('t0')}, 8, v0\nv_cmp_ne_u32 vcc, 0, {x('t0')}\nv_cndmask_b32 {x('p3')}, {x('p1')}, {x('p3')}, vcc")
    A(f"v_lshl_add_u32 {x('aS3')}, {x('p3')}, 7, s57")
    A(f"s_lshl_b32 s57, s{sW}, 7\ns_add_u32 s57, s57, s66\ns_add_u32 s57, s57, {ST2}\nv_bfe_u32 {x('t0')}, v0, 1, 3\nv_lshlrev_b32 {x('t0')}, 9, {x('t0')}\nv_lshl_add_u32 {x('t0')}, {x('t4')}, 4, {x('t0')}\nv_add_u32 {x('aS2')}, s57, {x('t0')}")
    A(f"s_and_b32 s57, s2, 7\ns_lshl_b32 s58, s{sW}, 3\ns_add_u32 s57, s57, s58\nv_lshl_add_u32 {x('t0')}, {x('p1')}, 5, s57")
    A(f"s_lshl_b32 s57, s{sCB}, 6\ns_lshl_b32 s58, s{sW}, 1\ns_add_u32 s57, s57, s58\ns_add_u32 s57, s57, {1-role}\nv_lshl_add_u32 {x('p3')}, {x('p1')}, 3, s57")
    sel2(x('t0'),x('t0'),x('p3'),32)
    A(f"v_bfe_u32 {x('p3')}, v0, 3, 2\nv_lshlrev_b32 {x('p3')}, 4, {x('p3')}\nv_lshl_add_u32 {x('t0')}, {x('t0')}, 7, {x('p3')}\nv_add_u32 {x('aF')}, {FLG}, {x('t0')}")
    A(f"s_lshl_b32 s57, s{sR}, 14\ns_lshl_b32 s58, s{sI}, 11\ns_add_u32 s57, s57, s58\ns_add_u32 s59, s57, {DB+(1-role)*0x20000}\nv_and_b32 {x('t0')}, 3, v0\nv_lshl_add_u32 {x('aDc')}, {x('t0')}, 9, s59")
    DW=o.get("dw",0)
    if DW: A(f"v_lshrrev_b32 {x('t0')}, 2, {x('n')}\nv_lshl_add_u32 {x('aDc')}, {x('t0')}, {2 if DW==1 else 7}, {x('aDc')}")
    A(f"s_lshl_b32 s58, s{sG}, 9\ns_add_u32 s57, s57, s58\ns_lshl_b32 s58, s{sW}, {2 if DW==1 else 7}\ns_add_u32 s57, s57, s58\ns_add_u32 s57, s57, {DB+role*0x20000}\nv_lshl_add_u32 {x('aDp')}, {x('t4')}, 13, s57")
    A(f"v_lshl_add_u32 {x('p3')}, {x('n')}, 2, {x('p2')}\ns_lshl_b32 s70, s60, 7\ns_lshr_b32 s71, s{sW}, 1")
    A(f"s_lshl_b32 s57, s71, 11\ns_add_u32 s57, s57, s65\ns_add_u32 s57, s57, s70\nv_add_u32 {x('aP2')}, s57, {x('p3')}")
    A(f"s_lshl_b32 s57, s71, 18\ns_add_u32 s57, s57, s67\ns_add_u32 s57, s57, s70\nv_add_u32 {x('t0')}, s57, {x('p3')}"); sel2(x('aP2'),x('aP2'),x('t0'),32)
    A(f"s_lshl_b32 s57, s71, 14\ns_add_u32 s57, s57, s63\ns_add_u32 s57, s57, s70\nv_lshl_add_u32 {x('t0')}, {x('t5')}, 13, {x('p3')}\nv_add_u32 {x('aP1')}, s57, {x('t0')}")
    A(f"s_lshl_b32 s57, s{sM}, 9\ns_lshl_b32 s58, s{sW}, 6\ns_add_u32 s57, s57, s58\ns_add_u32 s57, s57, s62\nv_lshlrev_b32 {x('t0')}, 2, {x('n')}\nv_lshl_add_u32 {x('t0')}, {x('g')}, 14, {x('t0')}\nv_add_u32 {x('aP3')}, s57, {x('t0')}")
    A(f"s_lshl_b32 s57, s{sW}, 4\ns_add_u32 s58, s57, s68\ns_add_u32 s58, s58, {ST2}\nv_lshl_add_u32 {x('aPS2')}, {x('g')}, 2, s58\ns_add_u32 s58, s68, {ST3}\nv_lshl_add_u32 {x('aPS3')}, {x('g')}, 4, s58")
    A(f"s_lshl_b64 {sp(mS3)}, 1, s57\ns_mov_b32 s{mCC}, 0xcccccccc\ns_mov_b32 s{mCC+1}, 0xcccccccc\ns_mov_b32 s{mS2}, 0x10001\ns_mov_b32 s{mS2+1}, 0x10001")
    A(f"s_and_b32 s57, s{sR}, 1\ns_cmp_eq_u32 s57, s71\ns_cselect_b32 s{sXs}, {hex(f2u(1/16))}, 0")
    A(f"s_mov_b32 s{sPerm}, 0x03020302\ns_mov_b32 s{sTo}, 0\ns_mov_b32 s{sRt}, 0")
    def X12(dst,src,lo):
        A(f"v_lshrrev_b32 {dst}, 1, {src}\nv_mul_u32_u24 {dst}, 12, {dst}\nv_and_b32 {x('dS')}, 1, {src}\nv_lshl_add_u32 {dst}, {x('dS')}, {lo-1}, {dst}")
    X12(x('t0'),x('g'),1); A(f"v_xor_b32 {x('t0')}, {x('t0')}, {x('n')}\nv_lshlrev_b32 {x('t0')}, 4, {x('t0')}\nv_lshl_add_u32 {x('rA')}, {x('g')}, 8, {x('t0')}")
    X12(x('t0'),x('g'),2); A(f"v_xor_b32 {x('t0')}, {x('t0')}, {x('n')}\nv_lshlrev_b32 {x('t0')}, 4, {x('t0')}\nv_lshl_add_u32 {x('rP')}, {x('g')}, 8, {x('t0')}")
    A(f"s_mul_i32 s57, s60, {AS}\nv_add_u32 {x('rG')}, s57, {x('rA')}")
    A(f"v_bfe_u32 {x('p3')}, v0, 1, 2\nv_bfe_u32 {x('p0')}, v0, 3, 1\nv_mul_u32_u24 {x('p0')}, {AS}, {x('p0')}\nv_lshl_add_u32 {x('p0')}, {x('p3')}, 8, {x('p0')}")
    A(f"v_lshl_add_u32 {x('p0')}, {x('t4')}, 3, {x('p0')}\nv_lshrrev_b32 {x('t0')}, 4, {x('p2')}\nv_add_u32 {x('p0')}, {x('p0')}, {x('t0')}")
    X12(x('t0'),x('p3'),1)
    A(f"s_lshl_b32 s57, s71, 2\ns_add_u32 s57, s57, s60\nv_xor_b32 {x('p3')}, s57, {x('t0')}\nv_lshl_add_u32 {x('xWQ')}, {x('p3')}, 4, {x('p0')}")
    A(f"v_lshlrev_b32 {x('dS')}, 3, {x('t5')}\nv_xor_b32 {x('p3')}, {x('p3')}, {x('dS')}\nv_lshl_add_u32 {x('xWO')}, {x('p3')}, 4, {x('p0')}\nv_add_u32 {x('xWO')}, {XO}, {x('xWO')}")
    A(f"s_lshl_b32 s57, s{sW}, 2\nv_add_u32 {x('p3')}, s57, {x('t5')}\nv_xor_b32 {x('p3')}, {x('p3')}, {x('t0')}\nv_lshl_add_u32 {x('xWA')}, {x('p3')}, 4, {x('p0')}\nv_add_u32 {x('xWA')}, {XA}, {x('xWA')}")
    A(f"v_and_b32 {x('t4')}, 3, {x('n')}\nv_lshrrev_b32 {x('p0')}, 2, {x('n')}")
    X12(x('t0'),x('p0'),2)
    A(f"s_lshl_b32 s57, s60, 1\nv_lshl_add_u32 {x('p3')}, {x('g')}, 2, s57\nv_xor_b32 {x('p3')}, {x('p3')}, {x('t0')}\nv_lshlrev_b32 {x('p3')}, 4, {x('p3')}\nv_lshl_add_u32 {x('p3')}, {x('p0')}, 8, {x('p3')}")
    A(f"s_mul_i32 s57, s71, {AS}\ns_add_u32 s57, s57, {XP}\nv_lshl_add_u32 {x('p3')}, {x('t4')}, 2, {x('p3')}\nv_add_u32 {x('pW')}, s57, {x('p3')}")
    A(f"v_lshlrev_b32 {x('mR')}, 5, {x('g')}\nv_add_u32 {x('mR')}, {XM}, {x('mR')}\ns_lshl_b32 s57, s{sW}, 3\nv_add_u32 {x('mW')}, s57, {x('mR')}")
    A(f"s_add_u32 s58, s57, {XR}\nv_mov_b32 {x('lW')}, s58\ns_add_u32 s58, s57, {XV}\nv_mov_b32 {x('vW')}, s58")
    A(f"v_lshrrev_b32 {x('t0')}, 2, {x('p2')}\nv_add_u32 {x('lR')}, {XR}, {x('t0')}\nv_sub_u32 {x('lR2')}, {XR+16}, {x('t0')}")
    A(f"s_mul_i32 s57, s{sW}, {FS}\ns_add_u32 s57, s57, {XF}\nv_lshl_add_u32 {x('xFw')}, {x('t2')}, 1, s57")
    A(f"s_lshl_b32 s57, s60, 8\ns_add_u32 s57, s57, {XF}\nv_lshl_add_u32 {x('t0')}, {x('p2')}, 1, s57\nv_lshl_add_u32 {x('t0')}, {x('p0')}, 5, {x('t0')}\nv_lshl_add_u32 {x('xFr')}, {x('t4')}, 2, {x('t0')}")
    A(f"v_mul_u32_u24 {x('t0')}, 4104, {x('g')}\nv_lshl_add_u32 {x('t0')}, {x('p0')}, 9, {x('t0')}\nv_add_u32 {x('t0')}, {BUFW}, {x('t0')}")
    A(f"s_lshl_b32 s57, s{sW}, 3\nv_add_u32 {x('p3')}, s57, {x('t4')}\nv_lshlrev_b32 {x('dS')}, 2, {x('p0')}\nv_xor_b32 {x('p3')}, {x('p3')}, {x('dS')}\nv_lshl_add_u32 {x('tT0')}, {x('p3')}, 4, {x('t0')}")
    A(f"v_xor_b32 {x('p3')}, 4, {x('p3')}\nv_lshl_add_u32 {x('tT1')}, {x('p3')}, 4, {x('t0')}")
    A(f"v_mul_u32_u24 {x('t0')}, 1032, {x('g')}\nv_lshrrev_b32 {x('dS')}, 1, {x('p0')}\nv_mul_u32_u24 {x('dS')}, {VS}, {x('dS')}\nv_add_u32 {x('t0')}, {x('t0')}, {x('dS')}\nv_and_b32 {x('t3')}, 1, {x('p0')}")
    A(f"v_lshl_add_u32 {x('t0')}, {x('t3')}, 8, {x('t0')}\ns_lshl_b32 s57, s{sW}, 2\nv_add_u32 {x('p3')}, s57, {x('t4')}\nv_lshlrev_b32 {x('dS')}, 2, {x('t3')}\nv_xor_b32 {x('p3')}, {x('p3')}, {x('dS')}")
    A(f"v_lshl_add_u32 {x('t0')}, {x('p3')}, 4, {x('t0')}\nv_add_u32 {x('tV')}, {BUFV}, {x('t0')}")
    A(f"v_xor_b32 {x('t0')}, {x('g')}, {x('n')}\nv_lshlrev_b32 {x('t0')}, 4, {x('t0')}\nv_lshl_add_u32 {x('t0')}, {x('n')}, 9, {x('t0')}\ns_add_u32 s57, s{sWk}, {BUFK}\nv_add_u32 {x('tK')}, s57, {x('t0')}")
    A(f"v_lshlrev_b32 {x('t3')}, 4, {x('t3')}\nv_mov_b32 {x('t1')}, 0xffff\nv_lshlrev_b32 {x('t1')}, {x('t3')}, {x('t1')}")
    for e in range(4): A(f"v_cmp_eq_u32 vcc, {e}, {x('t4')}\nv_cndmask_b32 {x('Msk',e)}, 0, {x('t1')}, vcc\nv_and_b32 {x('Sel',e)}, 0x3f803f80, {x('Msk',e)}")
    A(f"v_cmp_gt_u32 vcc, 8, {x('n')}")
    for e in range(4): A(f"v_cndmask_b32 {x('SelL',e)}, 0, {x('Sel',e)}, vcc\nv_sub_u32 {x('SelH',e)}, {x('Sel',e)}, {x('SelL',e)}")
    for e in range(8): A(f"v_mov_b32 {x('One',e)}, 0x3f803f80")
    A(f"v_mov_b32 {x('idx')}, 0x44444444\nv_mov_b32 {x('t0')}, 0xeeeeeeee\nv_cndmask_b32 {x('idx')}, {x('idx')}, {x('t0')}, {sp(mCC)}")
    A(f"v_and_b32 {x('t0')}, 13, {x('n')}\nv_cmp_eq_u32 vcc, 8, {x('t0')}")
    for e in range(4): A(f"v_cndmask_b32 {x('Tg',e)}, 0, {x('One')}, vcc")
    A(f"ds_write_b128 {x('rA')}, {R('Tg')} offset:{XQ}\nds_write_b128 {x('rA')}, {R('Tg')} offset:{XQ+AS}")
    hook[0]=A_
    def setup(n):
        while late and n>0: t=late.pop(0); A(t); n-=t.count('\n')+1
    def retry(name,e,loc=False):
        A(f"{name}:\ns_sleep {o['slpl'] if loc else o['slp']}\ns_add_u32 s{sTo}, s{sTo}, 1")
        if diag: A(f"s_add_u32 s{sRt}, s{sRt}, {1<<(8*e)}")
        A(f"s_cmp_lt_u32 s{sTo}, {TMO}\ns_cbranch_scc0 L_fail")
    def loadF(): A(f"global_load_dwordx4 {R('fF')}, {x('aF')}, s[28:29] sc1"); vm("F")
    ALLF=role and "D" not in o["b1"]
    def checkF(wait=True):
        waitfor("F")
        if wait:
            A(f"{lab('fc')}:\nv_xor_b32 {x('t0')}, s{sTag}, {x('fF')}\nv_and_b32 {x('t1')}, 0xfffffff, {x('t0')}"+("" if ALLF else "\ns_mov_b32 exec_hi, 0")+f"\nv_cmp_ne_u32 vcc, 0, {x('t1')}\ns_mov_b32 exec_hi, -1\ns_cbranch_vccnz {lab('fr')}")
            OOL(); retry(lab('fr'),3); A(f"global_load_dwordx4 {R('fF')}, {x('aF')}, s[28:29] sc1\ns_waitcnt vmcnt(0)\ns_branch {lab('fc')}"); MAIN()
        else: A(f"v_xor_b32 {x('t0')}, s{sTag}, {x('fF')}")
        A(f"v_cmp_ne_u32 s[60:61], s{sX28}, {x('t0')}\nv_cmp_eq_u32 vcc, s{sTag}, {x('fF',2)}\nv_cndmask_b32 {x('t1')}, 0, {x('fF',3)}, vcc")
        A(f"v_cmp_lt_i32 s[58:59], 0, {x('t1')}\nv_cmp_gt_i32 vcc, 0, {x('t1')}\nv_mov_b32 {x('pa')}, s60")
        A(f"s_nop 1\ns_bcnt1_i32_b64 s58, s[58:59]\ns_bcnt1_i32_b64 s59, vcc\ns_sub_u32 s58, s58, s59\nv_mov_b32 {x('pa',1)}, s58\nds_write_b64 {x('vW')}, {R('pa',2)}")
        m0v[0]=None
    YR=f"v_mov_b32 {x('t2')}, {XV}\nds_read_b128 {R('F0')}, {x('t2')}\nds_read_b128 {R('F1')}, {x('t2')} offset:16"
    YC=[f"v_or3_b32 {x('t2')}, {x('F0')}, {x('F0',2)}, {x('F1')}\nv_add3_u32 {x('t3')}, {x('F0',1)}, {x('F0',3)}, {x('F1',1)}",
        f"v_or_b32 {x('t2')}, {x('t2')}, {x('F1',2)}\nv_add_u32 {x('t3')}, {x('t3')}, {x('F1',3)}",
        f"v_readfirstlane_b32 s{sMode}, {x('t2')}\nv_readfirstlane_b32 s72, {x('t3')}"]
    def near():
        if diag: A(f"s_and_b32 s57, s72, 0xffff\ns_cmp_lg_u32 s{sMode}, 0\ns_cselect_b32 s58, 0x10000, 0\ns_or_b32 s57, s57, s58\nv_writelane_b32 {x('stamp')}, s57, 4")
        A(f"s_cmp_gt_i32 s72, 0\ns_cselect_b32 s57, 1, 0\ns_xor_b32 s57, s57, s{sSide}\ns_lshl_b32 s57, s57, 13\ns_add_u32 s{sN}, s28, s57\ns_addc_u32 s{sN+1}, s29, 0")
    def marker():
        A(f"s_cmp_lg_u32 s{sMode}, 0\ns_cbranch_scc1 L_post_{X}1")
        main[0]=post; ool[0]=posto; cur[0]=post; sfx[0]=f"{X}{mode}"; A(f"L_post_{X}{mode}:"); m0v[0]=None
    msk=[0]
    def ld(sim,tag,w,dst,addr,base,off=0):
        if msk[0]:
            chk(q4(dst)[:w]); A(f"v_cmp_eq_u32 vcc, -1, {x('chk')}\ns_mov_b64 exec, vcc")
        A(f"global_load_dwordx{w} {R(dst,w)}, {x(addr)}, {sp(base)}"+(f" offset:{off}" if off else "")+" sc1")
        if msk[0]: A("s_mov_b64 exec, -1")
        if sim: vm(tag)
    def doorbell(l):
        A(f"s_add_u32 s{sExp}, s{sTag}, {l}\ns_cmp_eq_u32 s{sW}, 0\ns_cbranch_scc0 {lab('db%d'%l)}\ns_mov_b64 exec, {0xffff if DW else 15}")
        for k in range(4): A(f"global_load_dword {x('p%d'%k)}, {x('aDc')}, {sp(sN)} offset:{0 if DW else 128*k} sc1\ns_sleep {o['dsl']}")
        A(f"{lab('dp%d'%l)}:")
        for k in range(4):
            A(f"s_waitcnt vmcnt(3)\nv_cmp_ne_u32 vcc, s{sExp}, {x('p%d'%k)}\ns_cbranch_vccz {lab('dd%d'%l)}")
            A(f"global_load_dword {x('p%d'%k)}, {x('aDc')}, {sp(sN)} offset:{0 if DW else 128*k} sc1\ns_sleep {o['dsl']}")
        A(f"s_add_u32 s{sTo}, s{sTo}, 1\ns_cmp_lt_u32 s{sTo}, {TMO}\ns_cbranch_scc1 {lab('dp%d'%l)}\ns_branch L_fail")
        A(f"{lab('dd%d'%l)}:\ns_mov_b64 exec, -1\n{lab('db%d'%l)}:\ns_barrier"); nbar[0]+=1
        stamp(12); m0v[0]=None
    LP=role and o.get("lp",0)
    def ring(l): A(f"s_mov_b64 exec, {'s[70:71]' if LP else 3}\nglobal_store_dword {x('aDp')}, {x('dbv')}, s[28:29] sc1\ns_mov_b64 exec, -1"); vm("ring")
    def swapadd(a,b): A(f"v_permlane16_swap_b32 {x(a)}, {x(b)}\nv_add_f32 {x(a)}, {x(a)}, {x(b)}")
    rs=lambda d,T:[f"v_pk_add_f32 {R(d,2)}, {R(T,2)}, {R(T,2,2)}",f"v_add_f32 {x(d)}, {x(d)}, {x(d,1)}"]
    WO=[(0,0),(1,0),(0,1),(1,1),(2,0),(3,0),(2,1),(3,1)]
    def wmm(base,ex,w1=0):
        for k,(t,s_) in enumerate(WO):
            if k==2: A(f"s_waitcnt lgkmcnt({w1})")
            smf(f"T{t}",f"A{s_}",ar(base+(t*2+s_)*8,8))
            if ex[k]: A(ex[k])
            if k in (1,3,5): slot()
    def gE2(sim,a,b0,b1,n="G"):
        for j in range(4): ld(sim,f"{n.lower()}{j}",4,f"{n}{j}",a,b0 if j<2 else b1,1024*j if b0==b1 else 1024*(j&1))
    def cE2(n="G"):
        for j in range(4):
            waitfor(f"{n.lower()}{j}"); mf(R('D'),R('SelL' if j<2 else 'SelH'),R(f"{n}{j}"),R('D') if j else "0"); chk(q4(f"{n}{j}"),j==0)
    def cspub():
        assert ("q",3) in moved
        zero("T0","T1","T2","T3")
        A(f"ds_read_b128 {R('A0')}, {x('rA')} offset:{XQ}\nds_read_b128 {R('A1')}, {x('rA')} offset:{XQ+AS}\ns_waitcnt lgkmcnt(0)")
        wmm(0,[""]*8)
        for d,T in zip(("tA","tB","tC","tD"),("T0","T1","T2","T3")): A("\n".join(rs(d,T)))
        swapadd("tA","tB"); swapadd("tC","tD")
        A(f"v_cvt_pk_bf16_f32 {x('t0')}, {x('tA')}, {x('tC')}\ns_mov_b32 exec_lo, 0\nglobal_store_dword {x('aP2')}, {x('t0')}, {sp(sLb[0])} {LOC()}\ns_mov_b32 exec_lo, -1"); vm("P")
    kg=[0]; early=[0]
    def kcs0(): gE2(True,'aC2',sLb[0],sLb[1]); kg[0]=1
    def kcs():
        assert ("k",0) in moved
        if not kg[0]: kcs0()
        zero("U0","U1")
        A(f"{lab('cc')}:"); cE2(); fin(lab('cr'))
        OOL(); retry(lab('cr'),3); gE2(False,'aC2',sLb[0],sLb[1]); A(f"s_waitcnt vmcnt(0)\ns_branch {lab('cc')}"); MAIN()
        cvtD(); wrA('xWA'); bar()
        A(f"ds_read_b128 {R('A0')}, {x('rA')} offset:{XA}\nds_read_b128 {R('A1')}, {x('rA')} offset:{XA+AS}\ns_waitcnt lgkmcnt(0)")
        for s_ in range(2):
            for t in range(2): smf(f"U{t}",f"A{s_}",ar(64+(t*2+s_)*8,8))
        for t in range(2): A(f"v_pk_add_f32 {R('kc%d'%t,2)}, {R('U%d'%t,2)}, {R('U%d'%t,2,2)}")
        lane(16); m0v[0]=None
    def prog(p,gather=None,st=None,l=None):
        for tk in p.split("_"):
            if not tk: continue
            c,a=tk[0],tk[1:]
            if c not in "ULPWZNSTHO": assert not late,tk
            if c=="L": stream(int(a))
            elif c=="P":
                n,D=map(int,a.split("."))
                while ns[0]<n:
                    if ns[0]>=D: wload(ns[0]-D)
                    stream(ns[0]+1)
            elif c=="W": wload(int(a))
            elif c=="A": waitfor("P")
            elif c=="S": A(f"s_sleep {a}")
            elif c=="M": move(int(a))
            elif c=="K": kreads()
            elif c=="B": bar()
            elif c=="F": loadF()
            elif c=="C": checkF()
            elif c=="U": setup(int(a or 9999))
            elif c=="x": kcs0()
            elif c=="V": checkF(False)
            elif c=="N": reset(int(a))
            elif c=="E": lnorm()
            elif c=="Z": flag()
            elif c=="O": probe()
            elif c=="H": assert acked("R") and int(a) in vm2; A(f"global_load_dword {x('chk')}, {x('aWm')}, {sp(sLb[int(a)])} sc1"); vm("H")
            elif c=="Y": A(YR+"\ns_waitcnt lgkmcnt(0)\n"+"\n".join(YC)); near()
            elif c=="y":
                marker()
                if mode and early[0]: A(f"s_mov_b32 exec_hi, 0\nglobal_store_dword {x('aP2')}, {x('t5')}, {sp(sLb[0])} sc1\ns_mov_b32 exec_hi, -1"); vm("P")
            elif c=="r":
                A(f"s_add_u32 s57, s{sTag}, 9\nv_mov_b32 {x('fl',1)}, s57\ns_mov_b64 exec, 1\nglobal_store_dword {x('aFl')}, {x('fl',1)}, s[28:29] offset:4 sc1\ns_mov_b64 exec, -1"); vm("bell")
            elif c=="w":
                A(f"s_add_u32 s58, s{sTag}, 9\ns_movk_i32 s57, 400\ns_mov_b64 exec, 1\n{lab('bw')}:\nglobal_load_dword {x('fl',1)}, {x('aFl')}, s[28:29] offset:-124 sc1\ns_sub_u32 s57, s57, 1\ns_waitcnt vmcnt(0)")
                A(f"v_cmp_ne_u32 vcc, s58, {x('fl',1)}\ns_cmp_eq_u32 s57, 0\ns_cbranch_scc1 {lab('bx')}\ns_cbranch_vccnz {lab('bw')}\n{lab('bx')}:\ns_mov_b64 exec, -1"); done[0]=len(Q); m0v[0]=None
            elif c=="Q": cspub()
            elif c=="X": kcs()
            elif c=="D": doorbell(l)
            elif c=="R": ring(l)
            elif c=="T": lane(int(a))
            elif c=="G": stamp(st); gather(True)
            elif c=="g": gather(True,"F")
            else: raise Exception(tk)
    def edge(e,p,gather,check,kind,st,l,prep=None,loc=False):
        m0v[0]=None
        if "_g" in p:
            p1,p2=(p.split("_J")+[""])[:2]
            prog(p1,gather,st,l)
            if prep: prep()
            check(lab('j%d'%e)); A(f"{lab('k%d'%e)}:"); d0=done[0]
            OOL(); A(f"{lab('j%d'%e)}:")
            if diag: A(f"s_add_u32 s{sRt}, s{sRt}, {1<<(8*kind)}")
            check(lab('r%d'%e),"F"); A(f"s_branch {lab('k%d'%e)}")
            retry(lab('r%d'%e),kind,loc and not mode); gather(False); A("s_waitcnt vmcnt(0)"); check(lab('r%d'%e)); A(f"s_branch {lab('k%d'%e)}"); MAIN()
            done[0]=d0; m0v[0]=None; prog(p2,gather,st,l); m0v[0]=None; return
        if "_J" in p:
            p1,p2=p.split("_J"); assert not set(p2)&set("CXDGF")
            prog(p1,gather,st,l)
            if prep: prep()
            check(lab('j%d'%e))
            snap=lambda:(list(Q),done[0],ns[0],set(moved),nbar[0],wfree[0])
            def rest(s_): Q[:]=s_[0]; done[0]=s_[1]; ns[0]=s_[2]; moved.clear(); moved.update(s_[3]); nbar[0]=s_[4]; wfree[0]=s_[5]; m0v[0]=None
            s0=snap(); m0v[0]=None; prog(p2,gather,st,l); A(f"{lab('k%d'%e)}:"); s1=snap()
            rest(s0); OOL(); A(f"{lab('j%d'%e)}:")
            if diag: A(f"s_add_u32 s{sRt}, s{sRt}, {1<<(8*kind)}")
            gather(True); prog(p2,gather,st,l)
            A(f"{lab('c%d'%e)}:"); check(lab('r%d'%e)); A(f"s_branch {lab('k%d'%e)}")
            retry(lab('r%d'%e),kind,loc and not mode); gather(False); A(f"s_waitcnt vmcnt(0)\ns_branch {lab('c%d'%e)}"); MAIN()
            rest(s1); return
        if p.endswith("G") and o.get("il",0)>>kind&1:
            prog(p[:-1],gather,st,l); stamp(st)
            if diag: A(f"s_sub_u32 s{sRt}, s{sRt}, {1<<(8*kind)}")
            A(f"{lab('r%d'%e)}:"); gather(True)
            if diag: A(f"s_add_u32 s{sRt}, s{sRt}, {1<<(8*kind)}")
            A(f"s_add_u32 s{sTo}, s{sTo}, 1\ns_cmp_lt_u32 s{sTo}, {TMO}\ns_cbranch_scc0 L_fail")
            if prep: prep()
            check(lab('r%d'%e)); m0v[0]=None; return
        prog(p,gather,st,l)
        if prep: prep()
        if o.get("il",0)&8:
            A(f"s_branch {lab('c%d'%e)}"); retry(lab('r%d'%e),kind,loc and not mode); gather(False); A("s_waitcnt vmcnt(0)")
            A(f"{lab('c%d'%e)}:"); check(lab('r%d'%e)); m0v[0]=None; return
        A(f"{lab('c%d'%e)}:"); check(lab('r%d'%e))
        OOL(); retry(lab('r%d'%e),kind,loc and not mode); msk[0]=o.get("mr",0)>>kind&1; gather(False); msk[0]=0; A(f"s_waitcnt vmcnt(0)\ns_branch {lab('c%d'%e)}"); MAIN()
        m0v[0]=None
    def E1(e,p,l,prep=None):
        def g(sim): ld(sim,"g0",4,'G0','aG1',sN); ld(sim,"g1",4,'G1','aG1',sN,1024)
        def c(fail):
            waitfor("g0"); mf(R('D'),R('Sel'),R('G0'),"0"); chk(q4('G0')); waitfor("g1"); mf(R('D'),R('Sel'),R('G1'),R('D')); chk(q4('G1'),False); fin(fail)
        edge(e,p,g,c,0,0,l,prep)
    CQ=hex(f2u(128**-0.5*1.4426950408889634))
    def layer(l,pe1,pe2,pe3,spr):
        j=l>>1; B=sLb[j]; curl[0]=l
        if l: E1(3*l-1,pe1,l,lambda:zero("T0","T1","T2","T3"))
        if spr: tgt[0]=spr[0]
        stamp(1)
        cvtD(); wrA('xWQ')
        slot(); bar()
        if l: A(f"ds_read_b128 {R('Ag')}, {x('rG')} offset:{XQ}")
        A(f"ds_read_b128 {R('A0')}, {x('rA')} offset:{XQ}\nds_read_b128 {R('A1')}, {x('rA')} offset:{XQ+AS}")
        slot()
        if l:
            A("s_waitcnt lgkmcnt(2)"); mf(R('Tg'),R('Ag'),R('Ag'),"0")
            ex=["","",
                f"v_add_f32 {x('st')}, {x('Tg')}, {x('Tg',1)}\nv_add_f32 {x('st',1)}, {x('Tg',2)}, {x('Tg',3)}",
                f"v_cndmask_b32 {x('st')}, {x('st')}, {x('st',1)}, {sp(mCC)}",
                f"v_add_f32_dpp {x('st')}, {x('st')}, {x('st')} quad_perm:[1,0,3,2] {DP}",
                f"v_add_f32_dpp {x('st')}, {x('st')}, {x('st')} quad_perm:[2,3,0,1] {DP}",
                f"v_add_f32_dpp {x('st')}, {x('st')}, {x('st')} row_half_mirror {DP}\n"+rs('tA','T0')[0],
                rs('tB','T1')[0]+"\n"+rs('tA','T0')[1]]
        else: ex=[""]*6+[rs('tA','T0')[0],rs('tB','T1')[0]+"\n"+rs('tA','T0')[1]]
        PK=o.get("pk",0)
        sa=lambda d,T:[f"v_add_f32 {x(d)}, {x(T)}, {x(T,2)}",f"v_add_f32 {x(d,1)}, {x(T,1)}, {x(T,3)}",f"v_add_f32 {x(d)}, {x(d)}, {x(d,1)}"]
        if PK&1:
            for k in range(3): ex[4+k]=sa('tA','T0')[k]+("\n"+ex[4+k].split("\n")[0] if l else "")
            ex[7]="\n".join(sa('tB','T1'))
        A("s_waitcnt lgkmcnt(1)")
        wmm(0,ex)
        if not PK&1: A(rs('tB','T1')[1])
        if l: A(f"s_mov_b64 exec, {sp(mS2)}\nglobal_store_dword {x('aPS2')}, {x('st')}, {sp(B)} {LOC()}\ns_mov_b64 exec, -1"); vm("P")
        if PK&1:
            A(rs('tC','T2')[0]+f"\nv_permlane16_swap_b32 {x('tA')}, {x('tB')}\n"+rs('tD','T3')[0]+"\n"+rs('tC','T2')[1]+"\n"+rs('tD','T3')[1]+f"\nv_add_f32 {x('tA')}, {x('tA')}, {x('tB')}")
        else:
            swapadd("tA","tB")
            A(rs('tC','T2')[0]+"\n"+rs('tD','T3')[0]+"\n"+rs('tC','T2')[1]+"\n"+rs('tD','T3')[1])
        A("s_mov_b32 exec_hi, 0")
        swapadd("tC","tD")
        if l==0 and "y" in pe2:
            early[0]=1; A(f"v_cvt_pk_bf16_f32 {x('t5')}, {x('tA')}, {x('tC')}\nglobal_store_dword {x('aP2')}, {x('t5')}, {sp(B)}"); vm("P")
        else: A(f"v_cvt_pk_bf16_f32 {x('t0')}, {x('tA')}, {x('tC')}\nglobal_store_dword {x('aP2')}, {x('t0')}, {sp(B)} {LOC()}"); vm("P")
        A("s_mov_b32 exec_hi, -1")
        stamp(2)
        A(f"ds_write_b128 {x('xFw')}, {R('D' if l else 'X4')}")
        A(f"s_add_u32 s57, s{sTag}, {l+1}\nv_mov_b32 {x('dbv')}, s57")
        def g(sim,n="G"):
            gE2(sim,'aG2',B,B,n)
            if l: ld(sim,"g4",4,'S','aS2',B)
        def c(fail,n="G"):
            cE2(n)
            if l: waitfor("g4"); chk(q4('S')[:3],False)
            fin(fail)
        def prep():
            zero("T0","T1","T2","T3","L0","L1")
            if l: A(f"v_mov_b64 {R('U0',2,2)}, 0\nv_mov_b64 {R('U1',2,2)}, 0")
            else: zero("U0","U1")
        edge(3*l,pe2,g,c,1,3,l,prep,l>0 or "y" in pe2)
        assert ("k",0) in moved
        if spr: tgt[0]=spr[1]
        stamp(4)
        cvtD(); wrA('xWA')
        if l:
            A(f"v_add_f32 {x('st')}, {x('S')}, {x('S',1)}\nv_add_f32_dpp {x('st',1)}, {x('S',2)}, {x('S',2)} row_ror:1 {DP}")
            A(f"v_add_f32_dpp {x('st')}, {x('st')}, {x('st')} row_ror:1 {DP}\nv_add_f32_dpp {x('st',1)}, {x('st',1)}, {x('st',1)} row_ror:2 {DP}")
        vlate=("v",0) not in moved
        if vlate and o["vpos"]==1: wload(31)
        slot(); bar()
        A(f"ds_read_b128 {R('A0')}, {x('rA')} offset:{XA}\nds_read_b128 {R('A1')}, {x('rA')} offset:{XA+AS}")
        nl=0
        ym=l==0 and main[0] is pre
        if ym: A(YR); nl+=2
        if vlate and o["vpos"]==1: trV(); nl+=16
        stamp(5)
        if l:
            A(f"v_add_f32_dpp {x('st')}, {x('st')}, {x('st')} row_ror:2 {DP}\nv_add_f32_dpp {x('st',1)}, {x('st',1)}, {x('st',1)} row_ror:4 {DP}")
            A(f"v_add_f32_dpp {x('st')}, {x('st')}, {x('st')} row_ror:4 {DP}\nv_add_f32_dpp {x('st',1)}, {x('st',1)}, {x('st',1)} row_ror:8 {DP}")
            A(f"v_add_f32_dpp {x('st')}, {x('st')}, {x('st')} row_ror:8 {DP}\nv_mul_f32 {x('ab',1)}, {hex(f2u(-1/1024))}, {x('st',1)}")
            for t in range(2): A(f"v_pk_mul_f32 {R('U%d'%t,2)}, {R('kc%d'%t,2)}, {R('ab',2)} op_sel:[0,1] op_sel_hi:[1,1]")
            ex=[f"v_mul_f32 {x('t0')}, {x('ab',1)}, {x('ab',1)}\nv_mul_f32 {x('t1')}, {hex(f2u(1/1024))}, {x('st')}",
                f"v_sub_f32 {x('t1')}, {x('t1')}, {x('t0')}\nv_max_f32 {x('t1')}, 0, {x('t1')}",
                f"v_add_f32 {x('t1')}, {hex(f2u(1e-5))}, {x('t1')}\nv_rsq_f32 {x('t1')}, {x('t1')}",
                f"v_mul_f32 {x('ab')}, {CQ}, {x('t1')}"]
        elif ym: ex=["",f"s_waitcnt lgkmcnt({min(nl-2,15)})\n"+YC[0],YC[1],YC[2]]
        else: ex=[""]*4
        slot()
        for s_ in range(2):
            A(f"s_waitcnt lgkmcnt({min(nl+1-s_,15)})")
            for t in range(2):
                smf(f"U{t}",f"A{s_}",ar(64+(t*2+s_)*8,8))
                if ex[2*s_+t]: A(ex[2*s_+t])
            slot()
        A(f"v_pk_add_f32 {R('tA',2)}, {R('U0',2)}, {R('U0',2,2)}\nv_pk_add_f32 {R('tB',2)}, {R('U1',2)}, {R('U1',2,2)}")
        A(f"v_max_f32 {x('mx')}, {x('tA')}, {x('tB')}\nv_max_f32 {x('mx',1)}, {x('tA',1)}, {x('tB',1)}")
        for k in (1,2,4,8): A(f"v_max_f32_dpp {x('mx')}, {x('mx')}, {x('mx')} row_ror:{k} {DP}\nv_max_f32_dpp {x('mx',1)}, {x('mx',1)}, {x('mx',1)} row_ror:{k} {DP}")
        A(f"v_pk_mul_f32 {R('mx',2)}, {R('mx',2)}, {R('ab',2)} op_sel_hi:[1,0]\nv_ceil_f32 {x('mx')}, {x('mx')}\nv_ceil_f32 {x('mx',1)}, {x('mx',1)}")
        for T in ("tA","tB"): A(f"v_pk_fma_f32 {R(T,2)}, {R(T,2)}, {R('ab',2)}, {R('mx',2)} op_sel_hi:[1,0,1] neg_lo:[0,0,1] neg_hi:[0,0,1]")
        A(f"v_exp_f32 {x('tA')}, {x('tA')}\nv_exp_f32 {x('tB')}, {x('tB')}\nv_exp_f32 {x('tA',1)}, {x('tA',1)}\nv_exp_f32 {x('tB',1)}, {x('tB',1)}")
        A(f"v_cvt_pk_bf16_f32 {x('t0')}, {x('tA')}, {x('tB')}\nds_write_b64 {x('mW')}, {R('mx',2)}\nv_cvt_pk_bf16_f32 {x('t1')}, {x('tA',1)}, {x('tB',1)}")
        A(f"ds_write2_b32 {x('pW')}, {x('t0')}, {x('t1')} offset0:0 offset1:4")
        vlate=("v",0) not in moved
        if vlate: wload(31)
        if ym: marker()
        slot(); bar()
        A(f"ds_read_b128 {R('A0')}, {x('rP')} offset:{XP}\nds_read_b128 {R('W0')}, {x('mR')}\nds_read_b128 {R('W1')}, {x('mR')} offset:16\nds_read_b128 {R('A1')}, {x('rP')} offset:{XP+AS}")
        if vlate: trV()
        stamp(6); slot()
        mxs=[f"v_max3_f32 {x('P4',h)}, {x('W0',h)}, {x('W0',2+h)}, {x('W1',h)}" for h in (0,1)]+[f"v_max_f32 {x('P4',h)}, {x('P4',h)}, {x('W1',2+h)}" for h in (0,1)]
        sub=[f"v_pk_add_f32 {R(W,2,h)}, {R(W,2,h)}, {R('P4',2)} neg_lo:[0,1] neg_hi:[0,1]" for W in ("W0","W1") for h in (0,2)]
        ex_=[f"v_exp_f32 {x(W,h)}, {x(W,h)}" for W in ("W0","W1") for h in range(4)]
        if vlate:
            A("s_waitcnt lgkmcnt(15)"); A("\n".join(mxs+sub+ex_)); smf("L0","A0",R('One',8)); smf("L1","A1",R('One',8)); A("s_waitcnt lgkmcnt(8)")
            smf("T0","A0",ar(96,8)); smf("T1","A0",ar(112,8)); A("s_waitcnt lgkmcnt(0)"); smf("T2","A1",ar(104,8)); smf("T3","A1",ar(120,8))
        elif PK&2:
            sb=[f"v_sub_f32 {x(W,h)}, {x(W,h)}, {x('P4',h&1)}" for W in ("W0","W1") for h in range(4)]
            A("s_waitcnt lgkmcnt(3)"); smf("T0","A0",ar(96,8)); A("s_waitcnt lgkmcnt(1)\n"+mxs[0]+"\n"+mxs[1])
            smf("T1","A0",ar(112,8)); A(mxs[2]+"\n"+mxs[3]+"\ns_waitcnt lgkmcnt(0)")
            smf("T2","A1",ar(104,8)); A(sb[0]+"\n"+sb[1])
            smf("T3","A1",ar(120,8)); A(sb[2]+"\n"+sb[3])
            smf("L0","A0",R('One',8)); A(sb[4]+"\n"+sb[5])
            smf("L1","A1",R('One',8)); A(sb[6]+"\n"+sb[7]+"\n"+"\n".join(ex_))
        else:
            A("s_waitcnt lgkmcnt(3)"); smf("T0","A0",ar(96,8)); A("s_waitcnt lgkmcnt(1)\n"+mxs[0]+"\n"+mxs[1])
            smf("T1","A0",ar(112,8)); A(mxs[2]+"\n"+mxs[3]+"\ns_waitcnt lgkmcnt(0)")
            smf("T2","A1",ar(104,8)); A(sub[0]+"\n"+sub[1])
            smf("T3","A1",ar(120,8)); A(sub[2]+"\n"+sub[3])
            smf("L0","A0",R('One',8)); A(ex_[0]+"\n"+ex_[1])
            smf("L1","A1",R('One',8)); A("\n".join(ex_[2:]))
        def comb(d,Ta,Tb,do=0):
            return [f"v_pk_mul_f32 {R(d,2,do)}, {R(Ta,2)}, {R('W0',2)}",f"v_pk_fma_f32 {R(d,2,do)}, {R(Ta,2,2)}, {R('W0',2,2)}, {R(d,2,do)}",
                    f"v_pk_fma_f32 {R(d,2,do)}, {R(Tb,2)}, {R('W1',2)}, {R(d,2,do)}",f"v_pk_fma_f32 {R(d,2,do)}, {R(Tb,2,2)}, {R('W1',2,2)}, {R(d,2,do)}"]
        for a_,b_ in zip(comb('tA','T0','T2'),comb('tB','T1','T3')): A(a_+"\n"+b_)
        A(f"v_cvt_pk_bf16_f32 {x('t0')}, {x('tA')}, {x('tB')}\nv_cvt_pk_bf16_f32 {x('t1')}, {x('tA',1)}, {x('tB',1)}")
        cl=comb('P4','L0','L1',2)
        assert acked("R") and len(vm2)==2
        A(f"global_store_dword {x('aP3')}, {x('t0')}, {sp(B)} {LOC()}\n{cl[0]}\n{cl[1]}\nglobal_store_dword {x('aP3')}, {x('t1')}, {sp(B)} offset:256 {LOC()}\n{cl[2]}\n{cl[3]}"); vm("P"); vm("P")
        A(f"s_mov_b64 exec, {sp(mS3)}\nglobal_store_dwordx4 {x('aPS3')}, {R('P4')}, {sp(B)} {LOC()}\ns_mov_b64 exec, -1"); vm("P")
        stamp(7)
        if l<3 and RING[l]==0: ring(l)
        def resid():
            if "f3" in Q and not acked("f3"): waitfor("f3")
            A(f"v_add_u32 {x('t2')}, {2*FS}, {x('xFr')}")
            for k,(a_,F,h) in enumerate((('xFr','F0',0),('xFr','F0',2),('t2','F1',0),('t2','F1',2))): A(f"ds_read2_b32 {R(F,2,h)}, {x(a_)} offset0:{(k&1)*FS//4} offset1:{(k&1)*FS//4+4}")
            zero("T0","T1","T2","T3")
            A(f"s_waitcnt lgkmcnt(0)\nv_pk_add_f32 {R('F0',2)}, {R('F0',2)}, {R('F0',2,2)}\nv_pk_add_f32 {R('F1',2)}, {R('F1',2)}, {R('F1',2,2)}\nv_pk_add_f32 {R('F0',2)}, {R('F0',2)}, {R('F1',2)}")
            A(f"v_cvt_pk_bf16_f32 {x('t2')}, {x('F0')}, {x('F0',1)}\nv_lshlrev_b32 {x('xr')}, 16, {x('t2')}\nv_and_b32 {x('xr',1)}, 0xffff0000, {x('t2')}")
            A(f"v_mul_f32 {x('xr')}, s{sXs}, {x('xr')}\nv_mul_f32 {x('xr',1)}, s{sXs}, {x('xr',1)}")
        def g(sim):
            ld(sim,"g2",3,'S','aS3',B); ld(sim,"g0",4,'G0','aG3',B); ld(sim,"g1",4,'G1','aG3',B,2048)
            if sim and l<3 and RING[l]==1: ring(l)
        def c(fail):
            waitfor("g2")
            A(f"v_max_f32_dpp {x('st')}, {x('S')}, {x('S')} quad_perm:[1,0,3,2] {DP}")
            A(f"v_max_u32 {x('chk')}, {x('S')}, {x('S',2)}")
            A(f"v_max_f32_dpp {x('st')}, {x('st')}, {x('st')} quad_perm:[2,3,0,1] {DP}")
            A(f"v_max_f32_dpp {x('st')}, {x('st')}, {x('st')} row_half_mirror {DP}")
            A(f"v_subrev_f32_dpp {x('t0')}, {x('st')}, {x('S')} row_newbcast:0 {DP}")
            A(f"v_exp_f32 {x('t0')}, {x('t0')}")
            waitfor("g0"); chk(q4('G0'),False)
            A(f"v_perm_b32 {x('t1')}, {x('t0')}, {x('t0')}, s{sPerm}\nv_mul_f32 {x('st',1)}, {x('t0')}, {x('S',2)}")
            for e in range(4): A(f"v_and_b32_dpp {x('A0',e)}, {x('t1')}, {x('Msk',e)} row_newbcast:8 {DP}")
            for e in range(2): A(f"v_and_b32_dpp {x('A1',e)}, {x('t1')}, {x('Msk',e)} row_newbcast:9 {DP}")
            mf(R('D'),R('A0'),R('G0'),"0")
            for e in range(2,4): A(f"v_and_b32_dpp {x('A1',e)}, {x('t1')}, {x('Msk',e)} row_newbcast:9 {DP}")
            A(f"v_add_f32_dpp {x('st',1)}, {x('st',1)}, {x('st',1)} quad_perm:[1,0,3,2] {DP}")
            waitfor("g1")
            mf(R('D'),R('A1'),R('G1'),R('D'))
            chk(q4('G1'),False)
            A(f"v_add_f32_dpp {x('st',1)}, {x('st',1)}, {x('st',1)} quad_perm:[2,3,0,1] {DP}")
            A(f"v_cmp_eq_u32 vcc, -1, {x('chk')}")
            A(f"v_add_f32_dpp {x('st',1)}, {x('st',1)}, {x('st',1)} row_half_mirror {DP}")
            A(f"s_cbranch_vccnz {fail}")
        if o.get("rpos",0)==0: resid()
        edge(3*l+1,pe3,g,c,2,8,l,resid if o.get("rpos",0) else None,True)
        assert ("o",3) in moved
        stamp(9)
        A(f"s_mov_b64 exec, 1\nds_write_b64 {x('lW')}, {R('st',2)}")
        if l<3 and RING[l]==2: A(f"s_mov_b64 exec, {'s[70:71]' if LP else 3}\nglobal_store_dword {x('aDp')}, {x('dbv')}, s[28:29] sc1"); vm("ring")
        A("s_mov_b64 exec, -1")
        cvtD(); wrA('xWO')
        bar()
        A(f"ds_read_b128 {R('A0')}, {x('rA')} offset:{XO}\nds_read_b128 {R('F0')}, {x('lR')}\nds_read_b128 {R('F1')}, {x('lR2')}\nds_read_b128 {R('A1')}, {x('rA')} offset:{XO+AS}")
        stamp(10)
        if l<3 and RING[l]==3: ring(l)
        Ms=[x('F0'),x('F0',2),x('F1'),x('F1',2)]; Ls=[x('F0',1),x('F0',3),x('F1',1),x('F1',3)]
        pa=lambda d,T:f"v_pk_add_f32 {R(d,2)}, {R(T,2)}, {R(T,2,2)}"
        mw=lambda d:[f"v_mul_f32 {x(d)}, {x(d)}, {x('W0')}",f"v_fma_f32 {x(d)}, {x(d,1)}, {x('W0',1)}, {x(d)}"]
        ex=[f"s_waitcnt lgkmcnt(1)\nv_max3_f32 {x('t0')}, {Ms[0]}, {Ms[1]}, {Ms[2]}",
            f"v_max_f32 {x('t0')}, {x('t0')}, {Ms[3]}\nv_sub_f32 {x('W0')}, {Ms[0]}, {x('t0')}",
            f"v_sub_f32 {x('W0',1)}, {Ms[1]}, {x('t0')}\nv_exp_f32 {x('W0')}, {x('W0')}",
            f"v_sub_f32 {x('W0',2)}, {Ms[2]}, {x('t0')}\nv_exp_f32 {x('W0',1)}, {x('W0',1)}",
            f"v_sub_f32 {x('W0',3)}, {Ms[3]}, {x('t0')}\nv_exp_f32 {x('W0',2)}, {x('W0',2)}",
            f"v_mul_f32 {x('t1')}, {x('W0')}, {Ls[0]}\nv_exp_f32 {x('W0',3)}, {x('W0',3)}",
            f"v_fma_f32 {x('t1')}, {x('W0',1)}, {Ls[1]}, {x('t1')}\n"+pa('tA','T0')+"\n"+pa('tB','T1'),
            f"v_fma_f32 {x('t1')}, {x('W0',2)}, {Ls[2]}, {x('t1')}\n"+mw('tA')[0]+"\n"+mw('tB')[0]]
        if PK&4:
            ex[6]=f"v_fma_f32 {x('t1')}, {x('W0',1)}, {Ls[1]}, {x('t1')}\nv_fma_f32 {x('t1')}, {x('W0',2)}, {Ls[2]}, {x('t1')}"
            ex[7]=f"v_fma_f32 {x('t1')}, {x('W0',3)}, {Ls[3]}, {x('t1')}\nv_rcp_f32 {x('t1')}, {x('t1')}"
            A("s_waitcnt lgkmcnt(3)")
            wmm(128,ex)
            A("\n".join([pa('tA','T0'),pa('tB','T1'),mw('tA')[0],mw('tB')[0],mw('tA')[1],mw('tB')[1],pa('tC','T2'),pa('tD','T3'),f"v_permlane16_swap_b32 {x('tA')}, {x('tB')}",
                mw('tC')[0],mw('tD')[0],mw('tC')[1],mw('tD')[1],f"v_add_f32 {x('tA')}, {x('tA')}, {x('tB')}",f"v_fma_f32 {x('tA')}, {x('tA')}, {x('t1')}, {x('xr')}"]))
            swapadd("tC","tD")
            A(f"v_fma_f32 {x('tC')}, {x('tC')}, {x('t1')}, {x('xr',1)}\nv_cvt_pk_bf16_f32 {x('t0')}, {x('tA')}, {x('tC')}\nglobal_store_dword {x('aP1')}, {x('t0')}, {sp(B)} sc1"); vm("P")
            stamp(11)
            if l<3 and RING[l]==4: ring(l)
            if not LP: flush(l)
            return
        A("s_waitcnt lgkmcnt(3)")
        wmm(128,ex)
        A(f"v_fma_f32 {x('t1')}, {x('W0',3)}, {Ls[3]}, {x('t1')}\n"+mw('tA')[1]+"\n"+mw('tB')[1]+f"\nv_rcp_f32 {x('t1')}, {x('t1')}")
        swapadd("tA","tB")
        A(pa('tC','T2')+"\n"+pa('tD','T3')+"\n"+mw('tC')[0]+"\n"+mw('tD')[0]+"\n"+mw('tC')[1]+"\n"+mw('tD')[1])
        A(f"v_fma_f32 {x('tA')}, {x('tA')}, {x('t1')}, {x('xr')}")
        swapadd("tC","tD")
        A(f"v_fma_f32 {x('tC')}, {x('tC')}, {x('t1')}, {x('xr',1)}\nv_cvt_pk_bf16_f32 {x('t0')}, {x('tA')}, {x('tC')}\nglobal_store_dword {x('aP1')}, {x('t0')}, {sp(B)} sc1"); vm("P")
        stamp(11)
        if l<3 and RING[l]==4: ring(l)
        if not LP: flush(l)
    def lnorm():
        waitfor("x")
        H=lambda k:x('G0',k) if k<4 else x('G1',k-4)
        A(f"v_mov_b64 {R('st',2)}, 0")
        for k in range(8): A(f"v_dot2_f32_bf16 {x('st')}, {H(k)}, {H(k)}, {x('st')}\nv_dot2_f32_bf16 {x('st',1)}, {H(k)}, {x('One')}, {x('st',1)}")
        A(f"v_lshlrev_b32 {x('X4')}, 16, {x('c01')}\nv_and_b32 {x('X4',1)}, 0xffff0000, {x('c01')}\nv_lshlrev_b32 {x('X4',2)}, 16, {x('c01',1)}\nv_and_b32 {x('X4',3)}, 0xffff0000, {x('c01',1)}")
        for k in (1,2,4,8): A(f"v_add_f32_dpp {x('st')}, {x('st')}, {x('st')} row_ror:{k} {DP}\nv_add_f32_dpp {x('st',1)}, {x('st',1)}, {x('st',1)} row_ror:{k} {DP}")
        for wd in (16,32):
            A(f"v_mov_b64 {R('mx',2)}, {R('st',2)}\nv_permlane{wd}_swap_b32 {x('mx')}, {x('st')}\nv_permlane{wd}_swap_b32 {x('mx',1)}, {x('st',1)}\nv_pk_add_f32 {R('st',2)}, {R('st',2)}, {R('mx',2)}")
        A(f"v_mul_f32 {x('ab',1)}, {hex(f2u(-1/1024))}, {x('st',1)}\nv_mul_f32 {x('t0')}, {x('ab',1)}, {x('ab',1)}\nv_mul_f32 {x('t1')}, {hex(f2u(1/1024))}, {x('st')}")
        A(f"v_sub_f32 {x('t1')}, {x('t1')}, {x('t0')}\nv_max_f32 {x('t1')}, 0, {x('t1')}\nv_add_f32 {x('t1')}, {hex(f2u(1e-5))}, {x('t1')}\nv_rsq_f32 {x('t1')}, {x('t1')}\nv_mul_f32 {x('t1')}, {hex(f2u(0.25))}, {x('t1')}")
        for k in range(4): A(f"v_add_f32 {x('D',k)}, {x('X4',k)}, {x('ab',1)}\nv_mul_f32 {x('D',k)}, {x('D',k)}, {x('t1')}\nv_mul_f32 {x('X4',k)}, {hex(f2u(0.25))}, {x('X4',k)}")
        A(f"v_mov_b32 {x('ab')}, {CQ}")
        zero("T0","T1","T2","T3")
    if not role:
        prog(o["ap"]); assert ("q",3) in moved
        lane(3)
        tgt[0]=o["aq"]
        layer(0,None,o["a0"],o["a1"],(o["aq"],o["asp"][0]))
        assert ns[0]==48
        prog(o["acs"])
        if "sh" in o: A(".p2align 6\n"+"s_nop 0\n"*o["sh"]+"s_nop 0")
        layer(2,o["a2"],o["a3"],o["a4"],None)
    else:
        prog(o["bp"])
        if main[0] is pre: marker()
        lane(3)
        if LP:
            assert ns[0]==48 and ("o",3) in moved and RING[1] in (2,3,4)
            if "sh" in o: A(".p2align 6\n"+"s_nop 0\n"*o["sh"]+"s_nop 0")
            A(f"s_mov_b64 s[70:71], 3\n{lab('lp')}:")
            layer(1,o["b1"],o["b2"],o["b3"],None)
            A(f"s_cmp_eq_u32 s70, 0\ns_cbranch_scc1 {lab('lx')}"); flush(1)
            A(f"v_add_u32 {x('aG1')}, {2*S}, {x('aG1')}\ns_mov_b32 s70, 0\ns_add_u32 s{sTag}, s{sTag}, 2\ns_mov_b64 {sp(sLb[0])}, {sp(sLb[1])}\ns_branch {lab('lp')}")
            A(f"{lab('lx')}:\ns_sub_u32 s{sTag}, s{sTag}, 2"); flush(3)
        else:
            layer(1,o["b1"],o["b2"],o["b3"],o["bsp"])
            assert ns[0]==48
            A(f"v_add_u32 {x('aG1')}, {2*S}, {x('aG1')}")
            layer(3,o["b4"],o["b5"],o["b6"],None)
        A(f"s_and_b32 s57, s{sR}, 3\ns_xor_b32 s57, s57, s{sG}\ns_or_b32 s57, s57, s{sI}\ns_cmp_eq_u32 s57, 0\ns_cbranch_scc0 L_fail")
        A(f"v_add_u32 {x('aG1')}, {S}, {x('aG1')}\ns_lshl_b32 s57, s{sR}, 8\ns_sub_u32 s57, s57, {XF//2}\nv_lshrrev_b32 {x('t3')}, 1, {x('xFw')}\nv_add_u32 {x('t3')}, s57, {x('t3')}\nv_mov_b32 {x('t4')}, {NONCE}\nv_mov_b32 {x('fl')}, s{sTag}")
        if o.get("fz",0):
            A(f"v_lshrrev_b32 {x('t0')}, 2, {x('n')}\nv_and_b32 {x('t1')}, 3, {x('n')}\nv_lshlrev_b32 {x('t2')}, 4, {x('n')}\nv_sub_u32 {x('aG1')}, {x('aG1')}, {x('t2')}")
            A(f"v_lshl_add_u32 {x('aG1')}, {x('t0')}, 11, {x('aG1')}\nv_lshlrev_b32 {x('t1')}, 4, {x('t1')}\nv_add_u32 {x('aG1')}, {x('aG1')}, {x('t1')}")
            A(f"s_mul_i32 s57, s{sW}, {2048-64}\nv_mov_b32 {x('t2')}, s57\nv_sub_u32 {x('aG1')}, {x('aG1')}, {x('t2')}")
            A(f"s_lshl_b32 s57, s{sR}, 8\ns_lshl_b32 s58, s{sW}, 6\ns_add_u32 s57, s57, s58\nv_and_b32 {x('t3')}, 1, {x('g')}\nv_lshl_add_u32 {x('t3')}, {x('t3')}, 3, {x('t1')}\nv_add_u32 {x('t3')}, s57, {x('t3')}")
            fq=o.get("fq",0)
            if fq:
                sets=[("G0","G1"),("G2","G3"),("F0","F1"),("F2","F3")][:fq]
                def g(k): ld(False,"",4,sets[k][0],'aG1',sN); ld(False,"",4,sets[k][1],'aG1',sN,1024)
                prog(o["b7"][:-1])
                for k in range(fq-1): g(k); A(f"s_sleep {o.get('fs',1)}")
                A(f"{lab('fl')}:")
                for k in range(fq):
                    g((k-1)%fq); a_,b_=sets[k]
                    A(f"s_waitcnt vmcnt({2*fq-1})"); mf(R('D'),R('Sel'),R(a_),"0"); chk(q4(a_))
                    A(f"s_waitcnt vmcnt({2*fq-2})"); mf(R('D'),R('Sel'),R(b_),R('D')); chk(q4(b_),False)
                    A(f"v_cmp_eq_u32 vcc, -1, {x('chk')}\ns_cbranch_vccz {lab('fd')}")
                A(f"s_add_u32 s{sTo}, s{sTo}, 1\ns_cmp_lt_u32 s{sTo}, {TMO}\ns_cbranch_scc1 {lab('fl')}\ns_branch L_fail\n{lab('fd')}:")
            else: E1(11,o["b7"],4)
            stamp(0)
            if diag: A(f"s_waitcnt lgkmcnt(0)\nv_writelane_b32 {x('stamp')}, s76, 60")
            for k in (4,8):
                for e in range(4): A(f"v_add_f32_dpp {x('D',e)}, {x('D',e)}, {x('D',e)} row_ror:{k} {DP}")
            cvtD()
            A(f"s_mov_b64 exec, 0xf000f\nglobal_store_dwordx2 {x('t3')}, {R('c01',2)}, s[24:25]")
            A(f"s_or_b32 s57, s{sR}, s{sW}\ns_cmp_eq_u32 s57, 0\ns_cbranch_scc0 L_fail")
            A(f"s_mov_b64 exec, 1\nglobal_store_dword {x('t4')}, {x('fl')}, s[28:29] sc1")
            A("s_branch L_fail" if diag else "s_endpgm")
            return pre,preo,post,posto
        E1(11,o["b7"],4)
        stamp(0)
        A(f"ds_write_b128 {x('xFw')}, {R('D')}"); bar()
        if diag: A(f"v_writelane_b32 {x('stamp')}, s76, 60")
        A(f"s_cmp_eq_u32 s{sW}, 0\ns_cbranch_scc0 L_fail")
        for k in range(4): A(f"ds_read_b128 {R('F%d'%k)}, {x('xFw')} offset:{k*FS}")
        A("s_waitcnt lgkmcnt(0)")
        for h in (0,2):
            A(f"v_pk_add_f32 {R('F0',2,h)}, {R('F0',2,h)}, {R('F1',2,h)}\nv_pk_add_f32 {R('F2',2,h)}, {R('F2',2,h)}, {R('F3',2,h)}\nv_pk_add_f32 {R('F0',2,h)}, {R('F0',2,h)}, {R('F2',2,h)}")
        cvtD('F0')
        if ENC: A(f"s_memrealtime s[94:95]\ns_waitcnt lgkmcnt(0)\ns_sub_u32 s96, s96, s98\ns_min_u32 s96, s96, 4000\ns_lshl_b32 s96, s96, 2\n{lab('en')}:\ns_memrealtime s[100:101]\ns_waitcnt lgkmcnt(0)\ns_sub_u32 s100, s100, s94\ns_cmp_lt_u32 s100, s96\ns_cbranch_scc1 {lab('en')}")
        A(f"s_mov_b32 exec_hi, 0\nglobal_store_dwordx2 {x('t3')}, {R('c01',2)}, s[24:25]")
        A(f"s_cmp_eq_u32 s{sR}, 0\ns_cbranch_scc0 L_fail")
        A(f"s_mov_b64 exec, 1\nglobal_store_dword {x('t4')}, {x('fl')}, s[28:29] sc1")
    A("s_branch L_fail" if diag else "s_endpgm")
    return pre,preo,post,posto
def gen(name=NAME, **kw):
    o=dict(DEF); o.update(kw); diag=o["diag"]
    L=HDR.rstrip("\n").split("\n")
    L.append(f"; @launch grid=(256,1,1) block=(256,1,1) lds={LDSSZ}")
    L+=f'.amdgcn_target "amdgcn-amd-amdhsa--gfx950"\n.text\n.globl {name}_kernel\n.p2align 8\n.type {name}_kernel,@function\n{name}_kernel:'.split("\n")
    L+="s_cmp_ge_u32 s2, 256\ns_cbranch_scc1 L_end\ns_load_dwordx16 s[4:19], s[0:1], 0\ns_load_dwordx8 s[20:27], s[0:1], 64\ns_load_dwordx2 s[28:29], s[0:1], 96\ns_bitcmp1_b32 s2, 0\ns_cbranch_scc1 L_B".split("\n")
    alt=[]
    for role in (0,1):
        pre,preo,post,posto=path(role,0,o); L+=pre+post+preo+posto+[f"L_end{'AB'[role]}:","s_endpgm"]
        pre,preo,post,posto=path(role,1,o); alt+=post+posto
    L+=alt
    L.append("L_fail:")
    if diag:
        L+=("s_mov_b64 exec, -1\ns_memrealtime s[76:77]\ns_memtime s[78:79]\ns_waitcnt lgkmcnt(0)\ns_sub_u32 s78, s78, s74\n"
            f"v_writelane_b32 {x('stamp')}, s76, 61\nv_writelane_b32 {x('stamp')}, s78, 62\nv_writelane_b32 {x('stamp')}, s{sTo}, 63\n"
            f"s_lshl_b32 s57, s2, 10\ns_lshl_b32 s58, s{sW}, 8\ns_add_u32 s57, s57, s58\ns_add_u32 s57, s57, {DIAG}\nv_lshl_add_u32 {x('t0')}, v0, 2, s57\nglobal_store_dword {x('t0')}, {x('stamp')}, s[28:29]").split("\n")
    L+=["L_end:","s_endpgm"]
    L+=f'.section .rodata,"a"\n.p2align 6\n.amdhsa_kernel {name}_kernel\n  .amdhsa_next_free_vgpr 512\n  .amdhsa_next_free_sgpr 102\n  .amdhsa_accum_offset 256\n  .amdhsa_group_segment_fixed_size 0\n  .amdhsa_kernarg_size 104\n  .amdhsa_user_sgpr_count 2\n  .amdhsa_user_sgpr_kernarg_segment_ptr 1\n  .amdhsa_system_sgpr_workgroup_id_x 1\n.end_amdhsa_kernel'.split("\n")
    out,n=fix(L,verbose=("-v" in sys.argv))
    return "\n".join(out)+"\n"
def parse(args):
    kw={}
    for a in args:
        if "=" in a:
            k,val=a.split("=")
            if isinstance(DEF.get(k),str): kw[k]=val
            else: kw[k]=tuple(int(z) for z in val.split(",")) if "," in val else int(val)
    return kw
if __name__=="__main__":
    t=gen(**parse(sys.argv[2:]))
    if "diag=1" in sys.argv: t+="; args: "+" ".join(a for a in sys.argv[2:] if a!="diag=1")+"\n"
    open(sys.argv[1],"w").write(t)
```

```python
import sys, math, struct
from hz import fix
NAME="interleave_layers__sliding_block_cached__sliding_block_cached__decode"
HDR=open("cdna_kernels/%s.s.ref"%NAME).read().split("; Override launch")[0]
def f2u(x): return struct.unpack("<I",struct.pack("<f",x))[0]
AS=1056
XQ=0; XA=2*AS; XO=4*AS; XP=6*AS; XM=8*AS; XR=XM+128; XV=XR+32; XF=XV+32; FS=528
BUFK=0x2c00; VS=8320; BUFV=BUFK+0x8000; WS=16416; BUFW=BUFV+4*VS; LDSSZ=BUFW+4*WS
assert XF+4*FS<=BUFK and XF%16==0
S=0x20000; DB=0x80000; PRB=0xC0000; MISC=0x100000; ST2=MISC+0x10000; ST3=MISC+0x14000; CS=MISC+0x18000
FLG=0x1A0000; NONCE=0x1A8000; E3=0x200000; DIAG=6<<20
class Regs:
    def __init__(s,n0): s.n=n0; s.d={}
    def __call__(s,name,k=1,al=1):
        s.n=(s.n+al-1)//al*al; s.d[name]=s.n; s.n+=k; return s.d[name]
ORDER=[("q",q) for q in range(16)]+[("k",q) for q in range(8)]+[("v",q) for q in range(8)]+[("o",q) for q in range(16)]
DEF=dict(diag=0, TMO=30000, slp=2, slpl=1, wfl=0, kfl=0, pf=1, force=0, dsl=3, ring=(3,1,1), vpos=2,
         an0=16, ap="U_Z_H0_L24_E_M8_M16", aq=24, br0="", ar0="0",
         a0="N1_F_L26_W21_C_G_B_L32_K", a1="L40_S2_G_B_L48_M40_M48", acs="F_H1_V_Q_X_Y", a2="D_G", a3="S2_G", a4="S2_G",
         asp=(36,48),
         bn0=2, bp="U_N0_N1_Z_O_H0_H1_P12.2_F_P24.8_C_M16_B_Y_Q_P32.8_K_X_M32_P40.8",
         b1="D_G_B_L44", b2="S2_G_B_L48", b3="S2_G_M48", b4="D_G", b5="S2_G", b6="S2_G", b7="A_G",
         bsp=(44,48,48), sk=1)
FL=['nt','','sc1','sc0 sc1','sc1 nt','sc0','sc0 sc1 nt','sc0 nt']
V=Regs(1)
for n in "Sel SelL SelH Msk G0 G1 G2 G3 S D T0 T1 T2 T3 U0 U1 L0 L1 Tg Ag A0 A1 W0 W1 F0 F1 F2 F3 Neg P4 X4 fF".split(): V(n,4,4)
V("One",8,4)
for n in "c01 st ab tA tB tC tD kc0 kc1 xr pa fl mx".split(): V(n,2,2)
for n in ("aG1 aG2 aC2 aS2 aG3 aS3 aP2 aPS2 aP3 aPS3 aP1 aR aWm aF aFl aDp aDc dQ dK dV dO dT dS xWQ xWA xWO xFw xFr rA rG rP pW mW mR lW lR lR2 vW "
          "tT0 tT1 tV tK idx tid n g t0 t1 t2 t3 t4 t5 chk p0 p1 p2 p3 dbv stamp").split(): V(n)
assert V.n<=256
r=V.d
v=lambda i:f"v{i}"
vr=lambda i,k:f"v[{i}:{i+k-1}]"
ar=lambda i,k:f"a[{i}:{i+k-1}]"
sp=lambda i:f"s[{i}:{i+1}]"
R=lambda n,k=4,o=0:vr(r[n]+o,k)
x=lambda n,o=0:v(r[n]+o)
q4=lambda n:list(range(r[n],r[n]+4))
DP="row_mask:0xf bank_mask:0xf"
sW,sG,sM,sR,sI,sI2,sCB,sMode=30,31,32,33,34,35,36,37
sLb=[38,40]; sN=42; sWq,sWv,sXs,sExp=44,45,46,47; mS3,mCC,mS2=48,50,52; sX28,sSide,sPerm=54,55,56
sWk,sRt,sTo,sTag=3,14,15,26

def path(role,mode,o):
    RING=o["ring"] if isinstance(o["ring"],tuple) else (o["ring"],)*3
    X="AB"[role]; diag=o["diag"]; TMO=o["TMO"]
    pre=[]; preo=[]; post=[]; posto=[]
    main=[pre]; ool=[preo]; cur=[pre]; sfx=[X]
    def A_(t):
        for z in t.split("\n"): cur[0].append(z)
    hook=[A_]
    def A(t): hook[0](t)
    def OOL(): cur[0]=ool[0]
    def MAIN(): cur[0]=main[0]
    lab=lambda n:f"L_{n}_{sfx[0]}"
    PTR=[dict(k=6,v=8,q=10,o=12),dict(k=16,v=18,q=20,o=22)][role]
    LOC=lambda: "sc1" if (mode or main[0] is pre) else ""
    Q=[]
    def vm(tag): Q.append(tag)
    def cnt(tag):
        i=max(i for i,t in enumerate(Q) if t==tag); n=len(Q)-1-i; return min(n,63)
    done=[0]
    def waitfor(tag): n=cnt(tag); done[0]=max(done[0],len(Q)-n); A(f"s_waitcnt vmcnt({n})")
    def acked(tag): return tag in Q and max(i for i,t in enumerate(Q) if t==tag)<done[0]
    curl=[0]
    ENC=o.get("enc",0)
    dfull=diag and not o.get("dm"); d1=diag and o.get("dm",0)<2
    def stamp(k):
        if ENC and role and ENC==100*curl[0]+k: A("s_memrealtime s[96:97]")
        if dfull or (d1 and role==0 and curl[0]==0): A(f"s_memrealtime s[{76+2*k}:{77+2*k}]")
    def lane(k):
        if ENC and role and ENC==1000+k: A("s_memrealtime s[96:97]")
        if d1: A(f"s_memrealtime s[100:101]\ns_waitcnt lgkmcnt(0)\nv_writelane_b32 {x('stamp')}, s100, {k}")
    def flush(l):
        if not (dfull or (d1 and l==0)): return
        A("s_waitcnt lgkmcnt(0)")
        for k in range(13):
            if l or 0<k<12: A(f"v_writelane_b32 {x('stamp')}, s{76+2*k}, {4+14*l+k}")
        A(f"v_writelane_b32 {x('stamp')}, s{sRt}, {4+14*l+13}\ns_mov_b32 s{sRt}, 0")
    ns=[0]; moved=set(); nbar=[0]; m0v=[None]; wfree=[99]
    def bar():
        A("s_waitcnt lgkmcnt(0)\ns_barrier"); nbar[0]+=1
    def setm0(sreg,val):
        if m0v[0]!=(sreg,val): A(f"s_add_u32 m0, s{sreg}, {val}"); m0v[0]=(sreg,val)
    def dma(kind,q):
        p=PTR[kind]
        if kind in "qo":
            if kind=="o": assert wfree[0]<=nbar[0] or o.get("nochk"), ("W buffer busy",nbar[0])
            setm0(sWq,BUFW+(q>>2)*WS+(q&3)*4104)
            src=x("dQ" if kind=="q" else "dO")
            if q: A(f"v_add_u32 {x('dT')}, {q*(65536 if kind=='q' else 16384)}, {src}"); src=x("dT")
            A(f"global_load_lds_dwordx4 {src}, {sp(p)} {FL[o['wfl']]}")
        else:
            hi=q//4
            if kind=="v": setm0(sWv,BUFV+hi*4096+8*q)
            else: setm0(sWk,BUFK+hi*4096)
            src=x("dK" if kind=="k" else "dV")
            if kind=="k" and q: A(f"v_xor_b32 {x('dT')}, {q*32}, {src}"); src=x("dT")
            if hi: A(f"v_add_u32 {x('dT')}, 4096, {src}"); src=x("dT")
            A(f"global_load_lds_dwordx4 {src}, {sp(p)} offset:{(q%4)*1024} {FL[o['kfl']]}")
        vm(f"{kind}{q}")
    def stream(n):
        while ns[0]<n: dma(*ORDER[ns[0]]); ns[0]+=1
    def wload(i): k,q=ORDER[i]; assert i<ns[0]; waitfor(f"{k}{q}")
    tgt=[0]
    def slot():
        n=min(tgt[0],ns[0]+(o.get("bsk",1) if role else o["sk"]))
        while ns[0]<n:
            k,q=ORDER[ns[0]]
            if k=="o" and wfree[0]>nbar[0]: break
            dma(k,q); ns[0]+=1
    def trW(kind,reg):
        ab=0 if kind=="q" else 128; Sx=reg>>1
        for t in range(4):
            for ub in range(2):
                u=2*(reg&1)+ub
                A(f"ds_read_b64_tr_b16 {ar(ab+(t*2+Sx)*8+2*u,2)}, {x('tT%d'%(t&1))} offset:{reg*WS+ub*2048+8*(t>>1)}")
        moved.add((kind,reg))
        if kind=="q" and reg==3: wfree[0]=nbar[0]+1
    def trV():
        for U in range(2):
            for t in range(2):
                for jh in range(2):
                    for ib in range(2):
                        A(f"ds_read_b64_tr_b16 {ar(96+(t*2+U)*8+2*(2*jh+ib),2)}, {x('tV')} offset:{2*U*VS+jh*4128+ib*512+8*t}")
        moved.add(("v",0))
    def kreads():
        wload(23)
        for s in range(4):
            A(f"v_xor_b32 {x('dT')}, {64*s}, {x('tK')}")
            for t in range(2): A(f"ds_read_b128 {ar(64+(t*4+s)*4,4)}, {x('dT')} offset:{256*t}")
        moved.add(("k",0))
    def move(n):
        gs=[("q",k) for k in range(4) if 4*k+4<=n]+([("v",0)] if n>=32 else [])+[("o",k) for k in range(4) if 36+4*k<=n]
        gs=[g_ for g_ in gs if g_ not in moved]
        if not gs: return
        k,j=gs[-1]; wload({"q":4*j+3,"v":31,"o":35+4*j}[k]); bar()
        for k,j in gs:
            if k=="v": trV()
            else: trW(k,j)
    def mf(d,a,b,c): A(f"v_mfma_f32_16x16x32_bf16 {d}, {a}, {b}, {c}")
    def smf(d,a,b): A(f"v_smfmac_f32_16x16x64_bf16 {R(d)}, {R(a)}, {b}, {x('idx')}")
    def zero(*names):
        for n in names: A(f"v_mov_b64 {R(n,2)}, 0\nv_mov_b64 {R(n,2,2)}, 0")
    def chk(rs,first=True):
        rs=list(rs); c=x("chk")
        if first:
            A(f"v_max3_u32 {c}, v{rs[0]}, v{rs[1]}, v{rs[2]}"); rs=rs[3:]
        while len(rs)>=2: A(f"v_max3_u32 {c}, {c}, v{rs[0]}, v{rs[1]}"); rs=rs[2:]
        if rs: A(f"v_max_u32 {c}, {c}, v{rs[0]}")
    def fin(fail): A(f"v_cmp_eq_u32 vcc, -1, {x('chk')}\ns_cbranch_vccnz {fail}")
    def cvtD(T='D'): A(f"v_cvt_pk_bf16_f32 {x('c01')}, {x(T)}, {x(T,1)}\nv_cvt_pk_bf16_f32 {x('c01',1)}, {x(T,2)}, {x(T,3)}")
    def wrA(a): A(f"ds_write2_b32 {x(a)}, {x('c01')}, {x('c01',1)} offset0:0 offset1:8")
    def sel2(dst,a,b,thr,src="v0"): A(f"v_cmp_le_u32 vcc, {thr}, {src}\nv_cndmask_b32 {dst}, {a}, {b}, vcc")
    if role: A("L_B:")
    if o["pf"]:
        A(f"s_getpc_b64 s[58:59]\nL_pc{X}:\nv_lshlrev_b32 {x('t0')}, 6, v0\nv_min_u32 {x('t0')}, L_end{X}-L_pc{X}, {x('t0')}")
        A(f"v_add_co_u32 {x('pa')}, vcc, s58, {x('t0')}\nv_mov_b32 {x('t0')}, s59\nv_addc_co_u32 {x('pa',1)}, vcc, 0, {x('t0')}, vcc")
        A(f"global_load_dword {x('chk')}, {R('pa',2)}, off"); vm("pf")
    if diag: A("s_memrealtime s[98:99]"+("\ns_memtime s[74:75]" if d1 else ""))
    if ENC: A("s_memrealtime s[98:99]\ns_memrealtime s[96:97]")
    A(f"v_lshrrev_b32 {x('t0')}, 6, v0\nv_mov_b32 {x('tid')}, v0\nv_and_b32 v0, 63, v0\nv_and_b32 {x('n')}, 15, v0\nv_readfirstlane_b32 s{sW}, {x('t0')}")
    A(f"s_bfe_u32 s{sG}, s2, 0x20001\ns_lshr_b32 s{sM}, s2, 3\ns_lshr_b32 s{sR}, s2, 5\ns_and_b32 s{sI}, s{sM}, 3\ns_and_b32 s{sI2}, s{sM}, 7\ns_lshr_b32 s{sCB}, s2, 6")
    A(f"v_lshrrev_b32 {x('g')}, 4, v0\nv_lshrrev_b32 {x('t5')}, 5, v0")
    A(f"v_and_b32 {x('t0')}, 31, v0\nv_lshlrev_b32 {x('t4')}, 4, {x('t0')}\nv_lshlrev_b32 {x('t0')}, 6, {x('t5')}\nv_xor_b32 {x('t1')}, {x('t4')}, {x('t0')}")
    A(f"s_and_b32 s60, s{sW}, 1\ns_lshl_b32 s57, s60, 7\nv_xor_b32 {x('t1')}, s57, {x('t1')}")
    A(f"s_lshl_b32 s57, s{sR}, 20\ns_lshl_b32 s58, s{sW}, 14\ns_add_u32 s57, s57, s58\ns_lshl_b32 s58, s{sG}, 11\ns_add_u32 s57, s57, s58\ns_lshl_b32 s58, s{sI}, 9\ns_add_u32 s57, s57, s58")
    if o.get("xi"): A(f"s_xor_b32 s57, s57, {o['xi']*512}")
    A(f"v_lshl_add_u32 {x('dQ')}, {x('t5')}, 13, {x('t1')}\nv_add_u32 {x('dQ')}, s57, {x('dQ')}")
    A(f"s_lshl_b32 s{sWq}, s{sW}, 10\ns_mul_i32 s{sWv}, s{sW}, {VS}\ns_lshl_b32 s{sWk}, s{sW}, 13")
    A(f"s_lshr_b32 s57, s{sG}, 1\ns_lshl_b32 s57, s57, 19\ns_and_b32 s58, s{sG}, 1\ns_lshl_b32 s58, s58, 16\ns_add_u32 s57, s57, s58\ns_add_u32 s62, s57, {E3}")
    A(f"s_lshl_b32 s57, s{sG}, 3\ns_add_u32 s57, s57, s{sI2}\ns_lshl_b32 s57, s57, 8\ns_lshl_b32 s58, s{sCB}, 15\ns_add_u32 s63, s57, s58")
    A(f"s_lshl_b32 s57, s{sG}, 14\ns_add_u32 s64, s57, {MISC}\ns_lshl_b32 s58, s{sR}, 8\ns_lshl_b32 s59, s{sI}, 12\ns_add_u32 s59, s59, s58\ns_add_u32 s65, s64, s59")
    A(f"s_lshl_b32 s66, s{sG}, 12\ns_lshl_b32 s57, s{sG}, 13\ns_add_u32 s69, s57, {CS}\ns_lshl_b32 s59, s{sI}, 11\ns_add_u32 s59, s59, s58\ns_add_u32 s67, s69, s59")
    A(f"s_lshl_b32 s57, s{sM}, 7\ns_add_u32 s68, s66, s57")
    A(f"v_lshlrev_b32 {x('t3')}, 4, {x('n')}")
    A(f"v_lshl_add_u32 {x('t0')}, {x('g')}, 11, {x('t3')}\nv_add_u32 {x('aWm')}, s65, {x('t0')}")
    A(f"v_bfe_u32 {x('t0')}, v0, 3, 1\nv_mul_u32_u24 {x('t0')}, {ST3-ST2-128}, {x('t0')}\ns_add_u32 s57, s68, {ST2}\nv_add3_u32 {x('t0')}, {x('t0')}, s57, {x('t3')}")
    sel2(x('aWm'),x('aWm'),x('t0'),32)
    A(f"v_add_u32 {x('t0')}, s67, {x('t3')}"); sel2(x('aWm'),x('aWm'),x('t0'),48)
    A(f"s_lshl_b32 s57, s{sW}, 15\ns_lshl_b32 s58, s{sM}, 9\ns_add_u32 s57, s57, s58\ns_add_u32 s57, s57, s62\nv_lshl_add_u32 {x('t0')}, {x('t5')}, 14, {x('t4')}\nv_add_u32 {x('t0')}, s57, {x('t0')}")
    A(f"s_movk_i32 s57, 128\ns_movk_i32 s58, 192"); sel2(x('aWm'),x('t0'),x('aWm'),"s57",x('tid'))
    A(f"v_lshl_add_u32 {x('t0')}, {x('g')}, 13, {x('t3')}\nv_add_u32 {x('t0')}, s63, {x('t0')}"); sel2(x('aR'),x('aWm'),x('t0'),"s58",x('tid'))
    for k in (0,2): A(f"v_mov_b64 {R('Neg',2,k)}, -1")
    A(f"v_and_b32 {x('t2')}, 1, {x('g')}\nv_lshl_add_u32 {x('t2')}, {x('t2')}, 3, {x('t3')}")
    if not role: A(f"s_lshl_b32 s57, s{sR}, 8\nv_add_u32 {x('p0')}, s57, {x('t2')}\nv_lshlrev_b32 {x('p1')}, 5, v0")
    A(f"s_getreg_b32 s{sX28}, hwreg(HW_REG_XCC_ID, 0, 4)")
    if o["force"]: A(f"s_lshr_b32 s57, s2, 3\ns_and_b32 s57, s57, {o['force']}\ns_xor_b32 s{sX28}, s{sX28}, s57")
    A(f"s_bfe_u32 s{sSide}, s{sX28}, 0x10002\ns_lshl_b32 s{sX28}, s{sX28}, 28")
    A("s_waitcnt lgkmcnt(0)")
    if d1: A(f"s_memrealtime s[76:77]\nv_mov_b32 {x('stamp')}, 0\ns_waitcnt lgkmcnt(0)\nv_writelane_b32 {x('stamp')}, s98, 0\nv_writelane_b32 {x('stamp')}, s76, 1")
    if ENC==1001: A("s_memrealtime s[96:97]")
    A("s_add_u32 s28, s28, 0x1fffff\ns_addc_u32 s29, s29, 0\ns_and_b32 s28, s28, 0xffe00000")
    if not role:
        A(f"global_load_dwordx2 {R('c01',2)}, {x('p0')}, s[4:5]"); vm("x")
        A(f"global_load_dwordx4 {R('G0')}, {x('p1')}, s[4:5]\nglobal_load_dwordx4 {R('G1')}, {x('p1')}, s[4:5] offset:16"); vm("x"); vm("x")
    for j in range(2): A(f"s_add_u32 s{sLb[j]}, s28, {(2*j+role)*S}\ns_addc_u32 s{sLb[j]+1}, s29, 0")
    A(f"s_add_u32 s58, s28, {NONCE}\ns_addc_u32 s59, s29, 0\ns_load_dword s{sTag}, s[58:59], 0")
    def reset(j): A(f"global_store_dwordx4 {x('aR')}, {R('Neg')}, {sp(sLb[j])} sc1"); vm("R"); vm2.add(j)
    vm2=set()
    for j in (o["br0"] if role else o["ar0"]): reset(int(j))
    n0=o["bn0"] if role else o["an0"]
    stream(min(n0,16))
    A(f"s_lshl_b32 s57, s{sG}, 24\ns_lshl_b32 s58, s{sM}, 15\ns_add_u32 s57, s57, s58\ns_add_u32 s57, s57, s{sWk}\ns_add_u32 s57, s57, {61440*256}")
    A(f"v_xor_b32 {x('t0')}, {x('n')}, {x('t5')}\nv_lshlrev_b32 {x('t0')}, 4, {x('t0')}\nv_lshl_add_u32 {x('dK')}, {x('g')}, 8, {x('t0')}\nv_add_u32 {x('dK')}, s57, {x('dK')}")
    A(f"v_and_b32 {x('p2')}, 1, {x('g')}\nv_lshlrev_b32 {x('p2')}, 6, {x('p2')}\nv_xor_b32 {x('t0')}, {x('t3')}, {x('p2')}\nv_lshl_add_u32 {x('dV')}, {x('g')}, 8, {x('t0')}\nv_add_u32 {x('dV')}, s57, {x('dV')}")
    stream(min(n0,32))
    A(f"s_lshl_b32 s57, s{sG}, 21\ns_lshl_b32 s58, s{sI2}, 18\ns_add_u32 s57, s57, s58\ns_lshl_b32 s58, s{sW}, 12\ns_add_u32 s57, s57, s58\ns_lshl_b32 s58, s{sCB}, 9\ns_add_u32 s57, s57, s58")
    A(f"v_lshl_add_u32 {x('dO')}, {x('t5')}, 11, {x('t1')}\nv_add_u32 {x('dO')}, s57, {x('dO')}")
    if role: A(f"s_lshl_b32 s57, s2, 2\ns_add_u32 s57, s57, s{sW}\ns_lshr_b32 s58, s57, 6\ns_lshl_b32 s58, s58, 14\ns_and_b32 s57, s57, 63\ns_lshl_b32 s57, s57, 7\ns_add_u32 s57, s57, s58")
    if role: A(f"s_lshl_b32 s58, s60, 13\ns_add_u32 s57, s57, s58\ns_add_u32 s57, s57, {PRB}\ns_xor_b32 s58, s57, 0x2000")
    if role: A(f"s_add_u32 s82, s28, s57\ns_addc_u32 s83, s29, 0\ns_add_u32 s90, s28, s58\ns_addc_u32 s91, s29, 0")
    if role: A(f"s_mov_b32 s84, 0x5bd1e995\ns_not_b32 s85, s84\ns_mov_b64 s[88:89], s[84:85]\ns_xor_b32 s73, s60, s{sSide}\ns_lshl_b32 s73, s73, 1\ns_sub_u32 s73, s73, 1")
    A(f"s_lshl_b32 s57, s2, 7\ns_lshl_b32 s58, s{sW}, 4\ns_add_u32 s57, s57, s58\ns_add_u32 s57, s57, {FLG}\nv_mov_b32 {x('aFl')}, s57")
    def flag():
        waitfor("R")
        A("s_waitcnt lgkmcnt(0)")
        A(f"s_mul_i32 s{sTag}, s{sTag}, 0x9e3779b1\ns_add_u32 s{sTag}, s{sTag}, 0x7f4a7c15\ns_xor_b32 s92, s{sTag}, s{sX28}\nv_mov_b32 {x('fl')}, s92")
        A(f"s_mov_b64 exec, 1\nglobal_store_dword {x('aFl')}, {x('fl')}, s[28:29] sc1\ns_mov_b64 exec, -1"); vm("flag")
        if d1: A("s_memrealtime s[78:79]\ns_waitcnt lgkmcnt(0)")
        if d1: A(f"v_writelane_b32 {x('stamp')}, s78, 2")
        assert len(vm2)==2 or not role
    def probe():
        assert role
        A(f"s_waitcnt lgkmcnt(0)\ns_load_dwordx2 s[86:87], s[82:83], 0\ns_load_dwordx2 s[88:89], s[90:91], 0")
        A(f"v_mov_b32 {x('pa')}, s{sTag}\ns_waitcnt lgkmcnt(2)\ns_cmp_eq_u64 s[88:89], s[84:85]\ns_cselect_b32 s73, s73, 0\nv_mov_b32 {x('pa',1)}, s73")
        A(f"s_mov_b64 exec, 1\nglobal_store_dwordx2 {x('aFl')}, {R('pa',2)}, s[28:29] offset:8 sc1\ns_mov_b64 exec, -1"); vm("vote")
    late=[]; hook[0]=late.append
    A(f"v_lshlrev_b32 {x('t0')}, 4, v0\ns_lshl_b32 s61, s{sW}, 11")
    A(f"s_lshl_b32 s57, s{sR}, 14\ns_add_u32 s57, s57, s61\ns_add_u32 s57, s57, {(1-role)*S}\nv_add_u32 {x('aG1')}, s57, {x('t0')}")
    A(f"s_lshl_b32 s57, s{sW}, 12\ns_add_u32 s57, s57, s64\nv_add_u32 {x('aG2')}, s57, {x('t0')}")
    A(f"s_add_u32 s57, s61, s69\nv_add_u32 {x('aC2')}, s57, {x('t0')}")
    A(f"s_lshr_b32 s58, s{sI2}, 1\ns_and_b32 s59, s{sI2}, 1\ns_lshl_b32 s57, s58, 14\ns_add_u32 s57, s57, s62\ns_lshl_b32 s70, s59, 8\ns_add_u32 s57, s57, s70\ns_lshl_b32 s70, s{sW}, 12\ns_add_u32 s57, s57, s70")
    A(f"v_lshl_add_u32 {x('t0')}, {x('g')}, 9, {x('t3')}\nv_add_u32 {x('aG3')}, s57, {x('t0')}")
    A(f"s_lshl_b32 s58, s58, 4\ns_lshl_b32 s59, s59, 2\ns_add_u32 s57, s58, s59\ns_add_u32 s57, s57, s66\ns_add_u32 s57, s57, s{sWq}\ns_add_u32 s57, s57, {ST3}")
    A(f"v_and_b32 {x('t4')}, 1, v0\nv_lshl_add_u32 {x('p3')}, {x('t4')}, 2, {x('g')}\nv_and_b32 {x('p1')}, 7, v0\nv_and_b32 {x('t0')}, 8, v0\nv_cmp_ne_u32 vcc, 0, {x('t0')}\nv_cndmask_b32 {x('p3')}, {x('p1')}, {x('p3')}, vcc")
    A(f"v_lshl_add_u32 {x('aS3')}, {x('p3')}, 7, s57")
    A(f"s_lshl_b32 s57, s{sW}, 7\ns_add_u32 s57, s57, s66\ns_add_u32 s57, s57, {ST2}\nv_bfe_u32 {x('t0')}, v0, 1, 3\nv_lshlrev_b32 {x('t0')}, 9, {x('t0')}\nv_lshl_add_u32 {x('t0')}, {x('t4')}, 4, {x('t0')}\nv_add_u32 {x('aS2')}, s57, {x('t0')}")
    A(f"s_and_b32 s57, s2, 7\ns_lshl_b32 s58, s{sW}, 3\ns_add_u32 s57, s57, s58\nv_lshl_add_u32 {x('t0')}, {x('p1')}, 5, s57")
    A(f"s_lshl_b32 s57, s{sCB}, 6\ns_lshl_b32 s58, s{sW}, 1\ns_add_u32 s57, s57, s58\ns_add_u32 s57, s57, {1-role}\nv_lshl_add_u32 {x('p3')}, {x('p1')}, 3, s57")
    sel2(x('t0'),x('t0'),x('p3'),32)
    A(f"v_bfe_u32 {x('p3')}, v0, 3, 2\nv_lshlrev_b32 {x('p3')}, 4, {x('p3')}\nv_lshl_add_u32 {x('t0')}, {x('t0')}, 7, {x('p3')}\nv_add_u32 {x('aF')}, {FLG}, {x('t0')}")
    A(f"s_lshl_b32 s57, s{sR}, 14\ns_lshl_b32 s58, s{sI}, 11\ns_add_u32 s57, s57, s58\ns_add_u32 s59, s57, {DB+(1-role)*0x20000}\nv_and_b32 {x('t0')}, 3, v0\nv_lshl_add_u32 {x('aDc')}, {x('t0')}, 9, s59")
    DW=o.get("dw",0); DA=o.get("da",0)>>(1-role)&1
    if DA: A(f"s_lshl_b32 s58, s{sCB}, 15\ns_add_u32 s59, s58, {DB+(1-role)*0x20000}\nv_and_b32 {x('aDc')}, 16, v0\nv_lshlrev_b32 {x('aDc')}, 10, {x('aDc')}\nv_lshl_add_u32 {x('aDc')}, {x('n')}, 9, {x('aDc')}\nv_add_u32 {x('aDc')}, s59, {x('aDc')}")
    if DW: A(f"v_lshrrev_b32 {x('t0')}, 2, {x('n')}\nv_lshl_add_u32 {x('aDc')}, {x('t0')}, {2 if DW==1 else 7}, {x('aDc')}")
    A(f"s_lshl_b32 s58, s{sG}, 9\ns_add_u32 s57, s57, s58\ns_lshl_b32 s58, s{sW}, {2 if DW==1 else 7}\ns_add_u32 s57, s57, s58\ns_add_u32 s57, s57, {DB+role*0x20000}\nv_lshl_add_u32 {x('aDp')}, {x('t4')}, 13, s57")
    A(f"v_lshl_add_u32 {x('p3')}, {x('n')}, 2, {x('p2')}\ns_lshl_b32 s70, s60, 7\ns_lshr_b32 s71, s{sW}, 1")
    A(f"s_lshl_b32 s57, s71, 11\ns_add_u32 s57, s57, s65\ns_add_u32 s57, s57, s70\nv_add_u32 {x('aP2')}, s57, {x('p3')}")
    A(f"s_lshl_b32 s57, s71, 18\ns_add_u32 s57, s57, s67\ns_add_u32 s57, s57, s70\nv_add_u32 {x('t0')}, s57, {x('p3')}"); sel2(x('aP2'),x('aP2'),x('t0'),32)
    A(f"s_lshl_b32 s57, s71, 14\ns_add_u32 s57, s57, s63\ns_add_u32 s57, s57, s70\nv_lshl_add_u32 {x('t0')}, {x('t5')}, 13, {x('p3')}\nv_add_u32 {x('aP1')}, s57, {x('t0')}")
    A(f"s_lshl_b32 s57, s{sM}, 9\ns_lshl_b32 s58, s{sW}, 6\ns_add_u32 s57, s57, s58\ns_add_u32 s57, s57, s62\nv_lshlrev_b32 {x('t0')}, 2, {x('n')}\nv_lshl_add_u32 {x('t0')}, {x('g')}, 14, {x('t0')}\nv_add_u32 {x('aP3')}, s57, {x('t0')}")
    A(f"s_lshl_b32 s57, s{sW}, 4\ns_add_u32 s58, s57, s68\ns_add_u32 s58, s58, {ST2}\nv_lshl_add_u32 {x('aPS2')}, {x('g')}, 2, s58\ns_add_u32 s58, s68, {ST3}\nv_lshl_add_u32 {x('aPS3')}, {x('g')}, 4, s58")
    A(f"s_lshl_b64 {sp(mS3)}, 1, s57\ns_mov_b32 s{mCC}, 0xcccccccc\ns_mov_b32 s{mCC+1}, 0xcccccccc\ns_mov_b32 s{mS2}, 0x10001\ns_mov_b32 s{mS2+1}, 0x10001")
    A(f"s_and_b32 s57, s{sR}, 1\ns_cmp_eq_u32 s57, s71\ns_cselect_b32 s{sXs}, {hex(f2u(1/16))}, 0")
    A(f"s_mov_b32 s{sPerm}, 0x03020302\ns_mov_b32 s{sTo}, 0\ns_mov_b32 s{sRt}, 0")
    def X12(dst,src,lo):
        A(f"v_lshrrev_b32 {dst}, 1, {src}\nv_mul_u32_u24 {dst}, 12, {dst}\nv_and_b32 {x('dS')}, 1, {src}\nv_lshl_add_u32 {dst}, {x('dS')}, {lo-1}, {dst}")
    X12(x('t0'),x('g'),1); A(f"v_xor_b32 {x('t0')}, {x('t0')}, {x('n')}\nv_lshlrev_b32 {x('t0')}, 4, {x('t0')}\nv_lshl_add_u32 {x('rA')}, {x('g')}, 8, {x('t0')}")
    X12(x('t0'),x('g'),2); A(f"v_xor_b32 {x('t0')}, {x('t0')}, {x('n')}\nv_lshlrev_b32 {x('t0')}, 4, {x('t0')}\nv_lshl_add_u32 {x('rP')}, {x('g')}, 8, {x('t0')}")
    A(f"s_mul_i32 s57, s60, {AS}\nv_add_u32 {x('rG')}, s57, {x('rA')}")
    A(f"v_bfe_u32 {x('p3')}, v0, 1, 2\nv_bfe_u32 {x('p0')}, v0, 3, 1\nv_mul_u32_u24 {x('p0')}, {AS}, {x('p0')}\nv_lshl_add_u32 {x('p0')}, {x('p3')}, 8, {x('p0')}")
    A(f"v_lshl_add_u32 {x('p0')}, {x('t4')}, 3, {x('p0')}\nv_lshrrev_b32 {x('t0')}, 4, {x('p2')}\nv_add_u32 {x('p0')}, {x('p0')}, {x('t0')}")
    X12(x('t0'),x('p3'),1)
    A(f"s_lshl_b32 s57, s71, 2\ns_add_u32 s57, s57, s60\nv_xor_b32 {x('p3')}, s57, {x('t0')}\nv_lshl_add_u32 {x('xWQ')}, {x('p3')}, 4, {x('p0')}")
    A(f"v_lshlrev_b32 {x('dS')}, 3, {x('t5')}\nv_xor_b32 {x('p3')}, {x('p3')}, {x('dS')}\nv_lshl_add_u32 {x('xWO')}, {x('p3')}, 4, {x('p0')}\nv_add_u32 {x('xWO')}, {XO}, {x('xWO')}")
    A(f"s_lshl_b32 s57, s{sW}, 2\nv_add_u32 {x('p3')}, s57, {x('t5')}\nv_xor_b32 {x('p3')}, {x('p3')}, {x('t0')}\nv_lshl_add_u32 {x('xWA')}, {x('p3')}, 4, {x('p0')}\nv_add_u32 {x('xWA')}, {XA}, {x('xWA')}")
    A(f"v_and_b32 {x('t4')}, 3, {x('n')}\nv_lshrrev_b32 {x('p0')}, 2, {x('n')}")
    X12(x('t0'),x('p0'),2)
    A(f"s_lshl_b32 s57, s60, 1\nv_lshl_add_u32 {x('p3')}, {x('g')}, 2, s57\nv_xor_b32 {x('p3')}, {x('p3')}, {x('t0')}\nv_lshlrev_b32 {x('p3')}, 4, {x('p3')}\nv_lshl_add_u32 {x('p3')}, {x('p0')}, 8, {x('p3')}")
    A(f"s_mul_i32 s57, s71, {AS}\ns_add_u32 s57, s57, {XP}\nv_lshl_add_u32 {x('p3')}, {x('t4')}, 2, {x('p3')}\nv_add_u32 {x('pW')}, s57, {x('p3')}")
    A(f"v_lshlrev_b32 {x('mR')}, 5, {x('g')}\nv_add_u32 {x('mR')}, {XM}, {x('mR')}\ns_lshl_b32 s57, s{sW}, 3\nv_add_u32 {x('mW')}, s57, {x('mR')}")
    A(f"s_add_u32 s58, s57, {XR}\nv_mov_b32 {x('lW')}, s58\ns_add_u32 s58, s57, {XV}\nv_mov_b32 {x('vW')}, s58")
    A(f"v_lshrrev_b32 {x('t0')}, 2, {x('p2')}\nv_add_u32 {x('lR')}, {XR}, {x('t0')}\nv_sub_u32 {x('lR2')}, {XR+16}, {x('t0')}")
    A(f"s_mul_i32 s57, s{sW}, {FS}\ns_add_u32 s57, s57, {XF}\nv_lshl_add_u32 {x('xFw')}, {x('t2')}, 1, s57")
    A(f"s_lshl_b32 s57, s60, 8\ns_add_u32 s57, s57, {XF}\nv_lshl_add_u32 {x('t0')}, {x('p2')}, 1, s57\nv_lshl_add_u32 {x('t0')}, {x('p0')}, 5, {x('t0')}\nv_lshl_add_u32 {x('xFr')}, {x('t4')}, 2, {x('t0')}")
    A(f"v_mul_u32_u24 {x('t0')}, 4104, {x('g')}\nv_lshl_add_u32 {x('t0')}, {x('p0')}, 9, {x('t0')}\nv_add_u32 {x('t0')}, {BUFW}, {x('t0')}")
    A(f"s_lshl_b32 s57, s{sW}, 3\nv_add_u32 {x('p3')}, s57, {x('t4')}\nv_lshlrev_b32 {x('dS')}, 2, {x('p0')}\nv_xor_b32 {x('p3')}, {x('p3')}, {x('dS')}\nv_lshl_add_u32 {x('tT0')}, {x('p3')}, 4, {x('t0')}")
    A(f"v_xor_b32 {x('p3')}, 4, {x('p3')}\nv_lshl_add_u32 {x('tT1')}, {x('p3')}, 4, {x('t0')}")
    A(f"v_mul_u32_u24 {x('t0')}, 1032, {x('g')}\nv_lshrrev_b32 {x('dS')}, 1, {x('p0')}\nv_mul_u32_u24 {x('dS')}, {VS}, {x('dS')}\nv_add_u32 {x('t0')}, {x('t0')}, {x('dS')}\nv_and_b32 {x('t3')}, 1, {x('p0')}")
    A(f"v_lshl_add_u32 {x('t0')}, {x('t3')}, 8, {x('t0')}\ns_lshl_b32 s57, s{sW}, 2\nv_add_u32 {x('p3')}, s57, {x('t4')}\nv_lshlrev_b32 {x('dS')}, 2, {x('t3')}\nv_xor_b32 {x('p3')}, {x('p3')}, {x('dS')}")
    A(f"v_lshl_add_u32 {x('t0')}, {x('p3')}, 4, {x('t0')}\nv_add_u32 {x('tV')}, {BUFV}, {x('t0')}")
    A(f"v_xor_b32 {x('t0')}, {x('g')}, {x('n')}\nv_lshlrev_b32 {x('t0')}, 4, {x('t0')}\nv_lshl_add_u32 {x('t0')}, {x('n')}, 9, {x('t0')}\ns_add_u32 s57, s{sWk}, {BUFK}\nv_add_u32 {x('tK')}, s57, {x('t0')}")
    A(f"v_lshlrev_b32 {x('t3')}, 4, {x('t3')}\nv_mov_b32 {x('t1')}, 0xffff\nv_lshlrev_b32 {x('t1')}, {x('t3')}, {x('t1')}")
    for e in range(4): A(f"v_cmp_eq_u32 vcc, {e}, {x('t4')}\nv_cndmask_b32 {x('Msk',e)}, 0, {x('t1')}, vcc\nv_and_b32 {x('Sel',e)}, 0x3f803f80, {x('Msk',e)}")
    A(f"v_cmp_gt_u32 vcc, 8, {x('n')}")
    for e in range(4): A(f"v_cndmask_b32 {x('SelL',e)}, 0, {x('Sel',e)}, vcc\nv_sub_u32 {x('SelH',e)}, {x('Sel',e)}, {x('SelL',e)}")
    for e in range(8): A(f"v_mov_b32 {x('One',e)}, 0x3f803f80")
    A(f"v_mov_b32 {x('idx')}, 0x44444444\nv_mov_b32 {x('t0')}, 0xeeeeeeee\nv_cndmask_b32 {x('idx')}, {x('idx')}, {x('t0')}, {sp(mCC)}")
    A(f"v_and_b32 {x('t0')}, 13, {x('n')}\nv_cmp_eq_u32 vcc, 8, {x('t0')}")
    for e in range(4): A(f"v_cndmask_b32 {x('Tg',e)}, 0, {x('One')}, vcc")
    A(f"ds_write_b128 {x('rA')}, {R('Tg')} offset:{XQ}\nds_write_b128 {x('rA')}, {R('Tg')} offset:{XQ+AS}")
    hook[0]=A_
    def setup(n):
        while late and n>0: t=late.pop(0); A(t); n-=t.count('\n')+1
    def retry(name,e,loc=False):
        A(f"{name}:\ns_sleep {o['slpl'] if loc else o['slp']}\ns_add_u32 s{sTo}, s{sTo}, 1")
        if dfull: A(f"s_add_u32 s{sRt}, s{sRt}, {1<<(8*e)}")
        A(f"s_cmp_lt_u32 s{sTo}, {TMO}\ns_cbranch_scc0 L_fail")
    def loadF(): A(f"global_load_dwordx4 {R('fF')}, {x('aF')}, s[28:29] sc1"); vm("F")
    ALLF=role and "D" not in o["b1"]
    def checkF(wait=True):
        waitfor("F")
        if wait:
            A(f"{lab('fc')}:\nv_xor_b32 {x('t0')}, s{sTag}, {x('fF')}\nv_and_b32 {x('t1')}, 0xfffffff, {x('t0')}"+("" if ALLF else "\ns_mov_b32 exec_hi, 0")+f"\nv_cmp_ne_u32 vcc, 0, {x('t1')}\ns_mov_b32 exec_hi, -1\ns_cbranch_vccnz {lab('fr')}")
            OOL(); retry(lab('fr'),3); A(f"global_load_dwordx4 {R('fF')}, {x('aF')}, s[28:29] sc1\ns_waitcnt vmcnt(0)\ns_branch {lab('fc')}"); MAIN()
        else: A(f"v_xor_b32 {x('t0')}, s{sTag}, {x('fF')}")
        A(f"v_cmp_ne_u32 s[60:61], s{sX28}, {x('t0')}\nv_cmp_eq_u32 vcc, s{sTag}, {x('fF',2)}\nv_cndmask_b32 {x('t1')}, 0, {x('fF',3)}, vcc")
        A(f"v_cmp_lt_i32 s[58:59], 0, {x('t1')}\nv_cmp_gt_i32 vcc, 0, {x('t1')}\nv_mov_b32 {x('pa')}, s60")
        A(f"s_nop 1\ns_bcnt1_i32_b64 s58, s[58:59]\ns_bcnt1_i32_b64 s59, vcc\ns_sub_u32 s58, s58, s59\nv_mov_b32 {x('pa',1)}, s58\nds_write_b64 {x('vW')}, {R('pa',2)}")
        m0v[0]=None
    YR=f"v_mov_b32 {x('t2')}, {XV}\nds_read_b128 {R('F0')}, {x('t2')}\nds_read_b128 {R('F1')}, {x('t2')} offset:16"
    YC=[f"v_or3_b32 {x('t2')}, {x('F0')}, {x('F0',2)}, {x('F1')}\nv_add3_u32 {x('t3')}, {x('F0',1)}, {x('F0',3)}, {x('F1',1)}",
        f"v_or_b32 {x('t2')}, {x('t2')}, {x('F1',2)}\nv_add_u32 {x('t3')}, {x('t3')}, {x('F1',3)}",
        f"v_readfirstlane_b32 s{sMode}, {x('t2')}\nv_readfirstlane_b32 s72, {x('t3')}"]
    def near():
        if d1: A(f"s_and_b32 s57, s72, 0xffff\ns_cmp_lg_u32 s{sMode}, 0\ns_cselect_b32 s58, 0x10000, 0\ns_or_b32 s57, s57, s58\nv_writelane_b32 {x('stamp')}, s57, 4")
        A(f"s_cmp_gt_i32 s72, 0\ns_cselect_b32 s57, 1, 0\ns_xor_b32 s57, s57, s{sSide}\ns_lshl_b32 s57, s57, 13\ns_add_u32 s{sN}, s28, s57\ns_addc_u32 s{sN+1}, s29, 0")
    def marker():
        A(f"s_cmp_lg_u32 s{sMode}, 0\ns_cbranch_scc1 L_post_{X}1")
        main[0]=post; ool[0]=posto; cur[0]=post; sfx[0]=f"{X}{mode}"; A(f"L_post_{X}{mode}:"); m0v[0]=None
    msk=[0]
    def ld(sim,tag,w,dst,addr,base,off=0):
        if msk[0]:
            chk(q4(dst)[:w]); A(f"v_cmp_eq_u32 vcc, -1, {x('chk')}\ns_mov_b64 exec, vcc")
        A(f"global_load_dwordx{w} {R(dst,w)}, {x(addr)}, {sp(base)}"+(f" offset:{off}" if off else "")+" sc1")
        if msk[0]: A("s_mov_b64 exec, -1")
        if sim: vm(tag)
    def doorbell(l):
        A(f"s_add_u32 s{sExp}, s{sTag}, {l}\ns_cmp_eq_u32 s{sW}, 0\ns_cbranch_scc0 {lab('db%d'%l)}\ns_mov_b64 exec, {'s[72:73]' if DA else 0xffff if DW else 15}")
        for k in range(4): A(f"global_load_dword {x('p%d'%k)}, {x('aDc')}, {sp(sN)} offset:{0 if DW else 128*k} sc1\ns_sleep {o['dsl']}")
        A(f"{lab('dp%d'%l)}:")
        for k in range(4):
            A(f"s_waitcnt vmcnt(3)\nv_cmp_ne_u32 vcc, s{sExp}, {x('p%d'%k)}\ns_cbranch_vccz {lab('dd%d'%l)}")
            A(f"global_load_dword {x('p%d'%k)}, {x('aDc')}, {sp(sN)} offset:{0 if DW else 128*k} sc1\ns_sleep {o['dsl']}")
        A(f"s_add_u32 s{sTo}, s{sTo}, 1\ns_cmp_lt_u32 s{sTo}, {TMO}\ns_cbranch_scc1 {lab('dp%d'%l)}\ns_branch L_fail")
        A(f"{lab('dd%d'%l)}:\ns_mov_b64 exec, -1\n{lab('db%d'%l)}:\ns_barrier"); nbar[0]+=1
        stamp(12); m0v[0]=None
    LP=role and o.get("lp",0)
    def ring(l): A(f"s_mov_b64 exec, {'s[70:71]' if LP else 3}\nglobal_store_dword {x('aDp')}, {x('dbv')}, s[28:29] sc1\ns_mov_b64 exec, -1"); vm("ring")
    def swapadd(a,b): A(f"v_permlane16_swap_b32 {x(a)}, {x(b)}\nv_add_f32 {x(a)}, {x(a)}, {x(b)}")
    rs=lambda d,T:[f"v_pk_add_f32 {R(d,2)}, {R(T,2)}, {R(T,2,2)}",f"v_add_f32 {x(d)}, {x(d)}, {x(d,1)}"]
    WO=[(0,0),(1,0),(0,1),(1,1),(2,0),(3,0),(2,1),(3,1)]
    def wmm(base,ex,w1=0):
        for k,(t,s_) in enumerate(WO):
            if k==2: A(f"s_waitcnt lgkmcnt({w1})")
            smf(f"T{t}",f"A{s_}",ar(base+(t*2+s_)*8,8))
            if ex[k]: A(ex[k])
            if k in (1,3,5): slot()
    def gE2(sim,a,b0,b1,n="G"):
        for j in range(4): ld(sim,f"{n.lower()}{j}",4,f"{n}{j}",a,b0 if j<2 else b1,1024*j if b0==b1 else 1024*(j&1))
    def cE2(n="G"):
        for j in range(4):
            waitfor(f"{n.lower()}{j}"); mf(R('D'),R('SelL' if j<2 else 'SelH'),R(f"{n}{j}"),R('D') if j else "0"); chk(q4(f"{n}{j}"),j==0)
    def cspub():
        assert ("q",3) in moved
        zero("T0","T1","T2","T3")
        A(f"ds_read_b128 {R('A0')}, {x('rA')} offset:{XQ}\nds_read_b128 {R('A1')}, {x('rA')} offset:{XQ+AS}\ns_waitcnt lgkmcnt(0)")
        wmm(0,[""]*8)
        for d,T in zip(("tA","tB","tC","tD"),("T0","T1","T2","T3")): A("\n".join(rs(d,T)))
        swapadd("tA","tB"); swapadd("tC","tD")
        A(f"v_cvt_pk_bf16_f32 {x('t0')}, {x('tA')}, {x('tC')}\ns_mov_b32 exec_lo, 0\nglobal_store_dword {x('aP2')}, {x('t0')}, {sp(sLb[0])} {LOC()}\ns_mov_b32 exec_lo, -1"); vm("P")
    kg=[0]; early=[0]
    def kcs0(): gE2(True,'aC2',sLb[0],sLb[1]); kg[0]=1
    def kcs():
        assert ("k",0) in moved
        if not kg[0]: kcs0()
        zero("U0","U1")
        A(f"{lab('cc')}:"); cE2(); fin(lab('cr'))
        OOL(); retry(lab('cr'),3); gE2(False,'aC2',sLb[0],sLb[1]); A(f"s_waitcnt vmcnt(0)\ns_branch {lab('cc')}"); MAIN()
        cvtD(); wrA('xWA'); bar()
        A(f"ds_read_b128 {R('A0')}, {x('rA')} offset:{XA}\nds_read_b128 {R('A1')}, {x('rA')} offset:{XA+AS}\ns_waitcnt lgkmcnt(0)")
        for s_ in range(2):
            for t in range(2): smf(f"U{t}",f"A{s_}",ar(64+(t*2+s_)*8,8))
        for t in range(2): A(f"v_pk_add_f32 {R('kc%d'%t,2)}, {R('U%d'%t,2)}, {R('U%d'%t,2,2)}")
        lane(16); m0v[0]=None
    nal=[0]
    def prog(p,gather=None,st=None,l=None):
        for tk in p.split("_"):
            if not tk: continue
            c,a=tk[0],tk[1:]
            if c not in "ULPWZNSTHO": assert not late,tk
            if c=="L": stream(int(a))
            elif c=="P":
                n,D=map(int,a.split("."))
                while ns[0]<n:
                    if ns[0]>=D: wload(ns[0]-D)
                    stream(ns[0]+1)
            elif c=="W": wload(int(a))
            elif c=="A": waitfor("P")
            elif c=="S": A(f"s_sleep {a}")
            elif c=="j": nal[0]+=1; A(f"s_branch {lab('t%d'%nal[0])}\n.p2align 5"+"\ns_nop 0"*int(a)+f"\n{lab('t%d'%nal[0])}:")
            elif c=="M": move(int(a))
            elif c=="K": kreads()
            elif c=="B": bar()
            elif c=="F": loadF()
            elif c=="C": checkF()
            elif c=="U": setup(int(a or 9999))
            elif c=="x": kcs0()
            elif c=="V": checkF(False)
            elif c=="N": reset(int(a))
            elif c=="E": lnorm()
            elif c=="Z": flag()
            elif c=="O": probe()
            elif c=="H": assert acked("R") and int(a) in vm2; A(f"global_load_dword {x('chk')}, {x('aWm')}, {sp(sLb[int(a)])} sc1"); vm("H")
            elif c=="Y": A(YR+"\ns_waitcnt lgkmcnt(0)\n"+"\n".join(YC)); near()
            elif c=="y":
                marker()
                if mode and early[0]: A(f"s_mov_b32 exec_hi, 0\nglobal_store_dword {x('aP2')}, {x('t5')}, {sp(sLb[0])} sc1\ns_mov_b32 exec_hi, -1"); vm("P")
            elif c=="r":
                A(f"s_add_u32 s57, s{sTag}, 9\nv_mov_b32 {x('fl',1)}, s57\ns_mov_b64 exec, 1\nglobal_store_dword {x('aFl')}, {x('fl',1)}, s[28:29] offset:4 sc1\ns_mov_b64 exec, -1"); vm("bell")
            elif c=="w":
                A(f"s_add_u32 s58, s{sTag}, 9\ns_movk_i32 s57, 400\ns_mov_b64 exec, 1\n{lab('bw')}:\nglobal_load_dword {x('fl',1)}, {x('aFl')}, s[28:29] offset:-124 sc1\ns_sub_u32 s57, s57, 1\ns_waitcnt vmcnt(0)")
                A(f"v_cmp_ne_u32 vcc, s58, {x('fl',1)}\ns_cmp_eq_u32 s57, 0\ns_cbranch_scc1 {lab('bx')}\ns_cbranch_vccnz {lab('bw')}\n{lab('bx')}:\ns_mov_b64 exec, -1"); done[0]=len(Q); m0v[0]=None
            elif c=="Q": cspub()
            elif c=="X": kcs()
            elif c=="D": doorbell(l)
            elif c=="R": ring(l)
            elif c=="T": lane(int(a))
            elif c=="G": stamp(st); gather(True)
            elif c=="g": gather(True,"F")
            else: raise Exception(tk)
    def edge(e,p,gather,check,kind,st,l,prep=None,loc=False):
        m0v[0]=None
        if "_g" in p:
            p1,p2=(p.split("_J")+[""])[:2]
            prog(p1,gather,st,l)
            if prep: prep()
            check(lab('j%d'%e)); A(f"{lab('k%d'%e)}:"); d0=done[0]
            OOL(); A(f"{lab('j%d'%e)}:")
            if dfull: A(f"s_add_u32 s{sRt}, s{sRt}, {1<<(8*kind)}")
            check(lab('r%d'%e),"F"); A(f"s_branch {lab('k%d'%e)}")
            retry(lab('r%d'%e),kind,loc and not mode); gather(False); A("s_waitcnt vmcnt(0)"); check(lab('r%d'%e)); A(f"s_branch {lab('k%d'%e)}"); MAIN()
            done[0]=d0; m0v[0]=None; prog(p2,gather,st,l); m0v[0]=None; return
        if "_J" in p:
            p1,p2=p.split("_J"); assert not set(p2)&set("CXDGF")
            prog(p1,gather,st,l)
            if prep: prep()
            check(lab('j%d'%e))
            snap=lambda:(list(Q),done[0],ns[0],set(moved),nbar[0],wfree[0])
            def rest(s_): Q[:]=s_[0]; done[0]=s_[1]; ns[0]=s_[2]; moved.clear(); moved.update(s_[3]); nbar[0]=s_[4]; wfree[0]=s_[5]; m0v[0]=None
            s0=snap(); m0v[0]=None; prog(p2,gather,st,l); A(f"{lab('k%d'%e)}:"); s1=snap()
            rest(s0); OOL(); A(f"{lab('j%d'%e)}:")
            if dfull: A(f"s_add_u32 s{sRt}, s{sRt}, {1<<(8*kind)}")
            gather(True); prog(p2,gather,st,l)
            A(f"{lab('c%d'%e)}:"); check(lab('r%d'%e)); A(f"s_branch {lab('k%d'%e)}")
            retry(lab('r%d'%e),kind,loc and not mode); gather(False); A(f"s_waitcnt vmcnt(0)\ns_branch {lab('c%d'%e)}"); MAIN()
            rest(s1); return
        if p.endswith("G") and o.get("il",0)>>kind&1:
            prog(p[:-1],gather,st,l); stamp(st)
            if dfull: A(f"s_sub_u32 s{sRt}, s{sRt}, {1<<(8*kind)}")
            A(f"{lab('r%d'%e)}:"); gather(True)
            if dfull: A(f"s_add_u32 s{sRt}, s{sRt}, {1<<(8*kind)}")
            A(f"s_add_u32 s{sTo}, s{sTo}, 1\ns_cmp_lt_u32 s{sTo}, {TMO}\ns_cbranch_scc0 L_fail")
            if prep: prep()
            check(lab('r%d'%e)); m0v[0]=None; return
        prog(p,gather,st,l)
        if prep: prep()
        if o.get("il",0)&8:
            A(f"s_branch {lab('c%d'%e)}"); retry(lab('r%d'%e),kind,loc and not mode); gather(False); A("s_waitcnt vmcnt(0)")
            A(f"{lab('c%d'%e)}:"); check(lab('r%d'%e)); m0v[0]=None; return
        A(f"{lab('c%d'%e)}:"); check(lab('r%d'%e))
        OOL(); retry(lab('r%d'%e),kind,loc and not mode); msk[0]=o.get("mr",0)>>kind&1; gather(False); msk[0]=0; A(f"s_waitcnt vmcnt(0)\ns_branch {lab('c%d'%e)}"); MAIN()
        m0v[0]=None
    def E1(e,p,l,prep=None):
        def g(sim): ld(sim,"g0",4,'G0','aG1',sN); ld(sim,"g1",4,'G1','aG1',sN,1024)
        def c(fail):
            waitfor("g0"); mf(R('D'),R('Sel'),R('G0'),"0"); chk(q4('G0')); waitfor("g1"); mf(R('D'),R('Sel'),R('G1'),R('D')); chk(q4('G1'),False); fin(fail)
        edge(e,p,g,c,0,0,l,prep)
    CQ=hex(f2u(128**-0.5*1.4426950408889634))
    def layer(l,pe1,pe2,pe3,spr):
        j=l>>1; B=sLb[j]; curl[0]=l
        if l: E1(3*l-1,pe1,l,lambda:zero("T0","T1","T2","T3"))
        if spr: tgt[0]=spr[0]
        stamp(1)
        cvtD(); wrA('xWQ')
        slot(); bar()
        if l: A(f"ds_read_b128 {R('Ag')}, {x('rG')} offset:{XQ}")
        A(f"ds_read_b128 {R('A0')}, {x('rA')} offset:{XQ}\nds_read_b128 {R('A1')}, {x('rA')} offset:{XQ+AS}")
        slot()
        if l:
            A("s_waitcnt lgkmcnt(2)"); mf(R('Tg'),R('Ag'),R('Ag'),"0")
            ex=["","",
                f"v_add_f32 {x('st')}, {x('Tg')}, {x('Tg',1)}\nv_add_f32 {x('st',1)}, {x('Tg',2)}, {x('Tg',3)}",
                f"v_cndmask_b32 {x('st')}, {x('st')}, {x('st',1)}, {sp(mCC)}",
                f"v_add_f32_dpp {x('st')}, {x('st')}, {x('st')} quad_perm:[1,0,3,2] {DP}",
                f"v_add_f32_dpp {x('st')}, {x('st')}, {x('st')} quad_perm:[2,3,0,1] {DP}",
                f"v_add_f32_dpp {x('st')}, {x('st')}, {x('st')} row_half_mirror {DP}\n"+rs('tA','T0')[0],
                rs('tB','T1')[0]+"\n"+rs('tA','T0')[1]]
        else: ex=[""]*6+[rs('tA','T0')[0],rs('tB','T1')[0]+"\n"+rs('tA','T0')[1]]
        PK=o.get("pk",0)
        sa=lambda d,T:[f"v_add_f32 {x(d)}, {x(T)}, {x(T,2)}",f"v_add_f32 {x(d,1)}, {x(T,1)}, {x(T,3)}",f"v_add_f32 {x(d)}, {x(d)}, {x(d,1)}"]
        if PK&1:
            for k in range(3): ex[4+k]=sa('tA','T0')[k]+("\n"+ex[4+k].split("\n")[0] if l else "")
            ex[7]="\n".join(sa('tB','T1'))
        A("s_waitcnt lgkmcnt(1)")
        wmm(0,ex)
        if not PK&1: A(rs('tB','T1')[1])
        if l: A(f"s_mov_b64 exec, {sp(mS2)}\nglobal_store_dword {x('aPS2')}, {x('st')}, {sp(B)} {LOC()}\ns_mov_b64 exec, -1"); vm("P")
        if PK&1:
            A(rs('tC','T2')[0]+f"\nv_permlane16_swap_b32 {x('tA')}, {x('tB')}\n"+rs('tD','T3')[0]+"\n"+rs('tC','T2')[1]+"\n"+rs('tD','T3')[1]+f"\nv_add_f32 {x('tA')}, {x('tA')}, {x('tB')}")
        else:
            swapadd("tA","tB")
            A(rs('tC','T2')[0]+"\n"+rs('tD','T3')[0]+"\n"+rs('tC','T2')[1]+"\n"+rs('tD','T3')[1])
        A("s_mov_b32 exec_hi, 0")
        swapadd("tC","tD")
        if l==0 and "y" in pe2:
            early[0]=1; A(f"v_cvt_pk_bf16_f32 {x('t5')}, {x('tA')}, {x('tC')}\nglobal_store_dword {x('aP2')}, {x('t5')}, {sp(B)}"); vm("P")
        else: A(f"v_cvt_pk_bf16_f32 {x('t0')}, {x('tA')}, {x('tC')}\nglobal_store_dword {x('aP2')}, {x('t0')}, {sp(B)} {LOC()}"); vm("P")
        A("s_mov_b32 exec_hi, -1")
        stamp(2)
        A(f"ds_write_b128 {x('xFw')}, {R('D' if l else 'X4')}")
        A(f"s_add_u32 s57, s{sTag}, {l+1}\nv_mov_b32 {x('dbv')}, s57")
        def g(sim,n="G"):
            gE2(sim,'aG2',B,B,n)
            if l: ld(sim,"g4",4,'S','aS2',B)
        def c(fail,n="G"):
            cE2(n)
            if l: waitfor("g4"); chk(q4('S')[:3],False)
            fin(fail)
        def prep():
            zero("T0","T1","T2","T3","L0","L1")
            if l: A(f"v_mov_b64 {R('U0',2,2)}, 0\nv_mov_b64 {R('U1',2,2)}, 0")
            else: zero("U0","U1")
        edge(3*l,pe2,g,c,1,3,l,prep,l>0 or "y" in pe2)
        assert ("k",0) in moved
        if spr: tgt[0]=spr[1]
        stamp(4)
        cvtD(); wrA('xWA')
        if l:
            A(f"v_add_f32 {x('st')}, {x('S')}, {x('S',1)}\nv_add_f32_dpp {x('st',1)}, {x('S',2)}, {x('S',2)} row_ror:1 {DP}")
            A(f"v_add_f32_dpp {x('st')}, {x('st')}, {x('st')} row_ror:1 {DP}\nv_add_f32_dpp {x('st',1)}, {x('st',1)}, {x('st',1)} row_ror:2 {DP}")
        vlate=("v",0) not in moved
        if vlate and o["vpos"]==1: wload(31)
        slot(); bar()
        A(f"ds_read_b128 {R('A0')}, {x('rA')} offset:{XA}\nds_read_b128 {R('A1')}, {x('rA')} offset:{XA+AS}")
        nl=0
        ym=l==0 and main[0] is pre
        if ym: A(YR); nl+=2
        if vlate and o["vpos"]==1: trV(); nl+=16
        stamp(5)
        if l:
            A(f"v_add_f32_dpp {x('st')}, {x('st')}, {x('st')} row_ror:2 {DP}\nv_add_f32_dpp {x('st',1)}, {x('st',1)}, {x('st',1)} row_ror:4 {DP}")
            A(f"v_add_f32_dpp {x('st')}, {x('st')}, {x('st')} row_ror:4 {DP}\nv_add_f32_dpp {x('st',1)}, {x('st',1)}, {x('st',1)} row_ror:8 {DP}")
            A(f"v_add_f32_dpp {x('st')}, {x('st')}, {x('st')} row_ror:8 {DP}\nv_mul_f32 {x('ab',1)}, {hex(f2u(-1/1024))}, {x('st',1)}")
            for t in range(2): A(f"v_pk_mul_f32 {R('U%d'%t,2)}, {R('kc%d'%t,2)}, {R('ab',2)} op_sel:[0,1] op_sel_hi:[1,1]")
            ex=[f"v_mul_f32 {x('t0')}, {x('ab',1)}, {x('ab',1)}\nv_mul_f32 {x('t1')}, {hex(f2u(1/1024))}, {x('st')}",
                f"v_sub_f32 {x('t1')}, {x('t1')}, {x('t0')}\nv_max_f32 {x('t1')}, 0, {x('t1')}",
                f"v_add_f32 {x('t1')}, {hex(f2u(1e-5))}, {x('t1')}\nv_rsq_f32 {x('t1')}, {x('t1')}",
                f"v_mul_f32 {x('ab')}, {CQ}, {x('t1')}"]
        elif ym: ex=["",f"s_waitcnt lgkmcnt({min(nl-2,15)})\n"+YC[0],YC[1],YC[2]]
        else: ex=[""]*4
        slot()
        for s_ in range(2):
            A(f"s_waitcnt lgkmcnt({min(nl+1-s_,15)})")
            for t in range(2):
                smf(f"U{t}",f"A{s_}",ar(64+(t*2+s_)*8,8))
                if ex[2*s_+t]: A(ex[2*s_+t])
            slot()
        A(f"v_pk_add_f32 {R('tA',2)}, {R('U0',2)}, {R('U0',2,2)}\nv_pk_add_f32 {R('tB',2)}, {R('U1',2)}, {R('U1',2,2)}")
        A(f"v_max_f32 {x('mx')}, {x('tA')}, {x('tB')}\nv_max_f32 {x('mx',1)}, {x('tA',1)}, {x('tB',1)}")
        for k in (1,2,4,8): A(f"v_max_f32_dpp {x('mx')}, {x('mx')}, {x('mx')} row_ror:{k} {DP}\nv_max_f32_dpp {x('mx',1)}, {x('mx',1)}, {x('mx',1)} row_ror:{k} {DP}")
        A(f"v_pk_mul_f32 {R('mx',2)}, {R('mx',2)}, {R('ab',2)} op_sel_hi:[1,0]\nv_ceil_f32 {x('mx')}, {x('mx')}\nv_ceil_f32 {x('mx',1)}, {x('mx',1)}")
        for T in ("tA","tB"): A(f"v_pk_fma_f32 {R(T,2)}, {R(T,2)}, {R('ab',2)}, {R('mx',2)} op_sel_hi:[1,0,1] neg_lo:[0,0,1] neg_hi:[0,0,1]")
        A(f"v_exp_f32 {x('tA')}, {x('tA')}\nv_exp_f32 {x('tB')}, {x('tB')}\nv_exp_f32 {x('tA',1)}, {x('tA',1)}\nv_exp_f32 {x('tB',1)}, {x('tB',1)}")
        A(f"v_cvt_pk_bf16_f32 {x('t0')}, {x('tA')}, {x('tB')}\nds_write_b64 {x('mW')}, {R('mx',2)}\nv_cvt_pk_bf16_f32 {x('t1')}, {x('tA',1)}, {x('tB',1)}")
        A(f"ds_write2_b32 {x('pW')}, {x('t0')}, {x('t1')} offset0:0 offset1:4")
        vlate=("v",0) not in moved
        if vlate: wload(31)
        if ym: marker()
        slot(); bar()
        A(f"ds_read_b128 {R('A0')}, {x('rP')} offset:{XP}\nds_read_b128 {R('W0')}, {x('mR')}\nds_read_b128 {R('W1')}, {x('mR')} offset:16\nds_read_b128 {R('A1')}, {x('rP')} offset:{XP+AS}")
        if vlate: trV()
        stamp(6); slot()
        mxs=[f"v_max3_f32 {x('P4',h)}, {x('W0',h)}, {x('W0',2+h)}, {x('W1',h)}" for h in (0,1)]+[f"v_max_f32 {x('P4',h)}, {x('P4',h)}, {x('W1',2+h)}" for h in (0,1)]
        sub=[f"v_pk_add_f32 {R(W,2,h)}, {R(W,2,h)}, {R('P4',2)} neg_lo:[0,1] neg_hi:[0,1]" for W in ("W0","W1") for h in (0,2)]
        ex_=[f"v_exp_f32 {x(W,h)}, {x(W,h)}" for W in ("W0","W1") for h in range(4)]
        if vlate:
            A("s_waitcnt lgkmcnt(15)"); A("\n".join(mxs+sub+ex_)); smf("L0","A0",R('One',8)); smf("L1","A1",R('One',8)); A("s_waitcnt lgkmcnt(8)")
            smf("T0","A0",ar(96,8)); smf("T1","A0",ar(112,8)); A("s_waitcnt lgkmcnt(0)"); smf("T2","A1",ar(104,8)); smf("T3","A1",ar(120,8))
        elif PK&2:
            sb=[f"v_sub_f32 {x(W,h)}, {x(W,h)}, {x('P4',h&1)}" for W in ("W0","W1") for h in range(4)]
            A("s_waitcnt lgkmcnt(3)"); smf("T0","A0",ar(96,8)); A("s_waitcnt lgkmcnt(1)\n"+mxs[0]+"\n"+mxs[1])
            smf("T1","A0",ar(112,8)); A(mxs[2]+"\n"+mxs[3]+"\ns_waitcnt lgkmcnt(0)")
            smf("T2","A1",ar(104,8)); A(sb[0]+"\n"+sb[1])
            smf("T3","A1",ar(120,8)); A(sb[2]+"\n"+sb[3])
            smf("L0","A0",R('One',8)); A(sb[4]+"\n"+sb[5])
            smf("L1","A1",R('One',8)); A(sb[6]+"\n"+sb[7]+"\n"+"\n".join(ex_))
        else:
            A("s_waitcnt lgkmcnt(3)"); smf("T0","A0",ar(96,8)); A("s_waitcnt lgkmcnt(1)\n"+mxs[0]+"\n"+mxs[1])
            smf("T1","A0",ar(112,8)); A(mxs[2]+"\n"+mxs[3]+"\ns_waitcnt lgkmcnt(0)")
            smf("T2","A1",ar(104,8)); A(sub[0]+"\n"+sub[1])
            smf("T3","A1",ar(120,8)); A(sub[2]+"\n"+sub[3])
            smf("L0","A0",R('One',8)); A(ex_[0]+"\n"+ex_[1])
            smf("L1","A1",R('One',8)); A("\n".join(ex_[2:]))
        def comb(d,Ta,Tb,do=0):
            return [f"v_pk_mul_f32 {R(d,2,do)}, {R(Ta,2)}, {R('W0',2)}",f"v_pk_fma_f32 {R(d,2,do)}, {R(Ta,2,2)}, {R('W0',2,2)}, {R(d,2,do)}",
                    f"v_pk_fma_f32 {R(d,2,do)}, {R(Tb,2)}, {R('W1',2)}, {R(d,2,do)}",f"v_pk_fma_f32 {R(d,2,do)}, {R(Tb,2,2)}, {R('W1',2,2)}, {R(d,2,do)}"]
        for a_,b_ in zip(comb('tA','T0','T2'),comb('tB','T1','T3')): A(a_+"\n"+b_)
        A(f"v_cvt_pk_bf16_f32 {x('t0')}, {x('tA')}, {x('tB')}\nv_cvt_pk_bf16_f32 {x('t1')}, {x('tA',1)}, {x('tB',1)}")
        cl=comb('P4','L0','L1',2)
        assert acked("R") and len(vm2)==2
        A(f"global_store_dword {x('aP3')}, {x('t0')}, {sp(B)} {LOC()}\n{cl[0]}\n{cl[1]}\nglobal_store_dword {x('aP3')}, {x('t1')}, {sp(B)} offset:256 {LOC()}\n{cl[2]}\n{cl[3]}"); vm("P"); vm("P")
        A(f"s_mov_b64 exec, {sp(mS3)}\nglobal_store_dwordx4 {x('aPS3')}, {R('P4')}, {sp(B)} {LOC()}\ns_mov_b64 exec, -1"); vm("P")
        stamp(7)
        if l<3 and RING[l]==0: ring(l)
        def resid():
            if "f3" in Q and not acked("f3"): waitfor("f3")
            A(f"v_add_u32 {x('t2')}, {2*FS}, {x('xFr')}")
            for k,(a_,F,h) in enumerate((('xFr','F0',0),('xFr','F0',2),('t2','F1',0),('t2','F1',2))): A(f"ds_read2_b32 {R(F,2,h)}, {x(a_)} offset0:{(k&1)*FS//4} offset1:{(k&1)*FS//4+4}")
            zero("T0","T1","T2","T3")
            A(f"s_waitcnt lgkmcnt(0)\nv_pk_add_f32 {R('F0',2)}, {R('F0',2)}, {R('F0',2,2)}\nv_pk_add_f32 {R('F1',2)}, {R('F1',2)}, {R('F1',2,2)}\nv_pk_add_f32 {R('F0',2)}, {R('F0',2)}, {R('F1',2)}")
            A(f"v_cvt_pk_bf16_f32 {x('t2')}, {x('F0')}, {x('F0',1)}\nv_lshlrev_b32 {x('xr')}, 16, {x('t2')}\nv_and_b32 {x('xr',1)}, 0xffff0000, {x('t2')}")
            A(f"v_mul_f32 {x('xr')}, s{sXs}, {x('xr')}\nv_mul_f32 {x('xr',1)}, s{sXs}, {x('xr',1)}")
        def g(sim):
            ld(sim,"g2",3,'S','aS3',B); ld(sim,"g0",4,'G0','aG3',B); ld(sim,"g1",4,'G1','aG3',B,2048)
            if sim and l<3 and RING[l]==1: ring(l)
        def c(fail):
            waitfor("g2")
            A(f"v_max_f32_dpp {x('st')}, {x('S')}, {x('S')} quad_perm:[1,0,3,2] {DP}")
            A(f"v_max_u32 {x('chk')}, {x('S')}, {x('S',2)}")
            A(f"v_max_f32_dpp {x('st')}, {x('st')}, {x('st')} quad_perm:[2,3,0,1] {DP}")
            A(f"v_max_f32_dpp {x('st')}, {x('st')}, {x('st')} row_half_mirror {DP}")
            A(f"v_subrev_f32_dpp {x('t0')}, {x('st')}, {x('S')} row_newbcast:0 {DP}")
            A(f"v_exp_f32 {x('t0')}, {x('t0')}")
            waitfor("g0"); chk(q4('G0'),False)
            A(f"v_perm_b32 {x('t1')}, {x('t0')}, {x('t0')}, s{sPerm}\nv_mul_f32 {x('st',1)}, {x('t0')}, {x('S',2)}")
            for e in range(4): A(f"v_and_b32_dpp {x('A0',e)}, {x('t1')}, {x('Msk',e)} row_newbcast:8 {DP}")
            for e in range(2): A(f"v_and_b32_dpp {x('A1',e)}, {x('t1')}, {x('Msk',e)} row_newbcast:9 {DP}")
            mf(R('D'),R('A0'),R('G0'),"0")
            for e in range(2,4): A(f"v_and_b32_dpp {x('A1',e)}, {x('t1')}, {x('Msk',e)} row_newbcast:9 {DP}")
            A(f"v_add_f32_dpp {x('st',1)}, {x('st',1)}, {x('st',1)} quad_perm:[1,0,3,2] {DP}")
            waitfor("g1")
            mf(R('D'),R('A1'),R('G1'),R('D'))
            chk(q4('G1'),False)
            A(f"v_add_f32_dpp {x('st',1)}, {x('st',1)}, {x('st',1)} quad_perm:[2,3,0,1] {DP}")
            A(f"v_cmp_eq_u32 vcc, -1, {x('chk')}")
            A(f"v_add_f32_dpp {x('st',1)}, {x('st',1)}, {x('st',1)} row_half_mirror {DP}")
            A(f"s_cbranch_vccnz {fail}")
        if o.get("rpos",0)==0: resid()
        edge(3*l+1,pe3,g,c,2,8,l,resid if o.get("rpos",0) else None,True)
        assert ("o",3) in moved
        stamp(9)
        A(f"s_mov_b64 exec, 1\nds_write_b64 {x('lW')}, {R('st',2)}")
        if l<3 and RING[l]==2: A(f"s_mov_b64 exec, {'s[70:71]' if LP else 3}\nglobal_store_dword {x('aDp')}, {x('dbv')}, s[28:29] sc1"); vm("ring")
        A("s_mov_b64 exec, -1")
        cvtD(); wrA('xWO')
        bar()
        A(f"ds_read_b128 {R('A0')}, {x('rA')} offset:{XO}\nds_read_b128 {R('F0')}, {x('lR')}\nds_read_b128 {R('F1')}, {x('lR2')}\nds_read_b128 {R('A1')}, {x('rA')} offset:{XO+AS}")
        stamp(10)
        if l<3 and RING[l]==3: ring(l)
        Ms=[x('F0'),x('F0',2),x('F1'),x('F1',2)]; Ls=[x('F0',1),x('F0',3),x('F1',1),x('F1',3)]
        pa=lambda d,T:f"v_pk_add_f32 {R(d,2)}, {R(T,2)}, {R(T,2,2)}"
        mw=lambda d:[f"v_mul_f32 {x(d)}, {x(d)}, {x('W0')}",f"v_fma_f32 {x(d)}, {x(d,1)}, {x('W0',1)}, {x(d)}"]
        ex=[f"s_waitcnt lgkmcnt(1)\nv_max3_f32 {x('t0')}, {Ms[0]}, {Ms[1]}, {Ms[2]}",
            f"v_max_f32 {x('t0')}, {x('t0')}, {Ms[3]}\nv_sub_f32 {x('W0')}, {Ms[0]}, {x('t0')}",
            f"v_sub_f32 {x('W0',1)}, {Ms[1]}, {x('t0')}\nv_exp_f32 {x('W0')}, {x('W0')}",
            f"v_sub_f32 {x('W0',2)}, {Ms[2]}, {x('t0')}\nv_exp_f32 {x('W0',1)}, {x('W0',1)}",
            f"v_sub_f32 {x('W0',3)}, {Ms[3]}, {x('t0')}\nv_exp_f32 {x('W0',2)}, {x('W0',2)}",
            f"v_mul_f32 {x('t1')}, {x('W0')}, {Ls[0]}\nv_exp_f32 {x('W0',3)}, {x('W0',3)}",
            f"v_fma_f32 {x('t1')}, {x('W0',1)}, {Ls[1]}, {x('t1')}\n"+pa('tA','T0')+"\n"+pa('tB','T1'),
            f"v_fma_f32 {x('t1')}, {x('W0',2)}, {Ls[2]}, {x('t1')}\n"+mw('tA')[0]+"\n"+mw('tB')[0]]
        if PK&4:
            ex[6]=f"v_fma_f32 {x('t1')}, {x('W0',1)}, {Ls[1]}, {x('t1')}\nv_fma_f32 {x('t1')}, {x('W0',2)}, {Ls[2]}, {x('t1')}"
            ex[7]=f"v_fma_f32 {x('t1')}, {x('W0',3)}, {Ls[3]}, {x('t1')}\nv_rcp_f32 {x('t1')}, {x('t1')}"
            A("s_waitcnt lgkmcnt(3)")
            wmm(128,ex)
            A("\n".join([pa('tA','T0'),pa('tB','T1'),mw('tA')[0],mw('tB')[0],mw('tA')[1],mw('tB')[1],pa('tC','T2'),pa('tD','T3'),f"v_permlane16_swap_b32 {x('tA')}, {x('tB')}",
                mw('tC')[0],mw('tD')[0],mw('tC')[1],mw('tD')[1],f"v_add_f32 {x('tA')}, {x('tA')}, {x('tB')}",f"v_fma_f32 {x('tA')}, {x('tA')}, {x('t1')}, {x('xr')}"]))
            swapadd("tC","tD")
            A(f"v_fma_f32 {x('tC')}, {x('tC')}, {x('t1')}, {x('xr',1)}\nv_cvt_pk_bf16_f32 {x('t0')}, {x('tA')}, {x('tC')}\nglobal_store_dword {x('aP1')}, {x('t0')}, {sp(B)} sc1"); vm("P")
            stamp(11)
            if l<3 and RING[l]==4: ring(l)
            if not LP: flush(l)
            return
        A("s_waitcnt lgkmcnt(3)")
        wmm(128,ex)
        A(f"v_fma_f32 {x('t1')}, {x('W0',3)}, {Ls[3]}, {x('t1')}\n"+mw('tA')[1]+"\n"+mw('tB')[1]+f"\nv_rcp_f32 {x('t1')}, {x('t1')}")
        swapadd("tA","tB")
        A(pa('tC','T2')+"\n"+pa('tD','T3')+"\n"+mw('tC')[0]+"\n"+mw('tD')[0]+"\n"+mw('tC')[1]+"\n"+mw('tD')[1])
        A(f"v_fma_f32 {x('tA')}, {x('tA')}, {x('t1')}, {x('xr')}")
        swapadd("tC","tD")
        A(f"v_fma_f32 {x('tC')}, {x('tC')}, {x('t1')}, {x('xr',1)}\nv_cvt_pk_bf16_f32 {x('t0')}, {x('tA')}, {x('tC')}\nglobal_store_dword {x('aP1')}, {x('t0')}, {sp(B)} sc1"); vm("P")
        stamp(11)
        if l<3 and RING[l]==4: ring(l)
        if not LP: flush(l)
    def lnorm():
        waitfor("x")
        H=lambda k:x('G0',k) if k<4 else x('G1',k-4)
        A(f"v_mov_b64 {R('st',2)}, 0")
        for k in range(8): A(f"v_dot2_f32_bf16 {x('st')}, {H(k)}, {H(k)}, {x('st')}\nv_dot2_f32_bf16 {x('st',1)}, {H(k)}, {x('One')}, {x('st',1)}")
        A(f"v_lshlrev_b32 {x('X4')}, 16, {x('c01')}\nv_and_b32 {x('X4',1)}, 0xffff0000, {x('c01')}\nv_lshlrev_b32 {x('X4',2)}, 16, {x('c01',1)}\nv_and_b32 {x('X4',3)}, 0xffff0000, {x('c01',1)}")
        for k in (1,2,4,8): A(f"v_add_f32_dpp {x('st')}, {x('st')}, {x('st')} row_ror:{k} {DP}\nv_add_f32_dpp {x('st',1)}, {x('st',1)}, {x('st',1)} row_ror:{k} {DP}")
        for wd in (16,32):
            A(f"v_mov_b64 {R('mx',2)}, {R('st',2)}\nv_permlane{wd}_swap_b32 {x('mx')}, {x('st')}\nv_permlane{wd}_swap_b32 {x('mx',1)}, {x('st',1)}\nv_pk_add_f32 {R('st',2)}, {R('st',2)}, {R('mx',2)}")
        A(f"v_mul_f32 {x('ab',1)}, {hex(f2u(-1/1024))}, {x('st',1)}\nv_mul_f32 {x('t0')}, {x('ab',1)}, {x('ab',1)}\nv_mul_f32 {x('t1')}, {hex(f2u(1/1024))}, {x('st')}")
        A(f"v_sub_f32 {x('t1')}, {x('t1')}, {x('t0')}\nv_max_f32 {x('t1')}, 0, {x('t1')}\nv_add_f32 {x('t1')}, {hex(f2u(1e-5))}, {x('t1')}\nv_rsq_f32 {x('t1')}, {x('t1')}\nv_mul_f32 {x('t1')}, {hex(f2u(0.25))}, {x('t1')}")
        for k in range(4): A(f"v_add_f32 {x('D',k)}, {x('X4',k)}, {x('ab',1)}\nv_mul_f32 {x('D',k)}, {x('D',k)}, {x('t1')}\nv_mul_f32 {x('X4',k)}, {hex(f2u(0.25))}, {x('X4',k)}")
        A(f"v_mov_b32 {x('ab')}, {CQ}")
        zero("T0","T1","T2","T3")
    if not role:
        prog(o["ap"]); assert ("q",3) in moved
        if "s0" in o: A(f"s_branch {lab('a0')}\n.p2align 6"+"\ns_nop 0"*o["s0"]+f"\n{lab('a0')}:")
        lane(3)
        tgt[0]=o["aq"]
        layer(0,None,o["a0"],o["a1"],(o["aq"],o["asp"][0]))
        assert ns[0]==48
        prog(o["acs"])
        if DA: A("s_mov_b32 s72, -1\ns_mov_b32 s73, 0")
        if "sha" in o: A(f"s_branch {lab('al')}\n.p2align 6"+"\ns_nop 0"*o["sha"]+f"\n{lab('al')}:")
        layer(2,o["a2"],o["a3"],o["a4"],None)
    else:
        prog(o["bp"])
        if main[0] is pre: marker()
        lane(3)
        if LP:
            assert ns[0]==48 and ("o",3) in moved and RING[1] in (2,3,4)
            if "shb" in o: A(f"s_branch {lab('al')}\n.p2align 6"+"\ns_nop 0"*o["shb"]+f"\n{lab('al')}:")
            if DA: A("s_mov_b32 s72, -1\ns_mov_b32 s73, 0")
            A(f"s_mov_b64 s[70:71], 3\n{lab('lp')}:")
            layer(1,o["b1"],o["b2"],o["b3"],None)
            A(f"s_cmp_eq_u32 s70, 0\ns_cbranch_scc1 {lab('lx')}"); flush(1)
            if DA and not o["da"]&4: A(f"s_lshl_b32 s72, s{sI2}, 2\ns_lshl_b32 s72, 15, s72")
            A(f"v_add_u32 {x('aG1')}, {2*S}, {x('aG1')}\ns_mov_b32 s70, 0\ns_add_u32 s{sTag}, s{sTag}, 2\ns_mov_b64 {sp(sLb[0])}, {sp(sLb[1])}\ns_branch {lab('lp')}")
            A(f"{lab('lx')}:\ns_sub_u32 s{sTag}, s{sTag}, 2"); flush(3)
        else:
            layer(1,o["b1"],o["b2"],o["b3"],o["bsp"])
            assert ns[0]==48
            A(f"v_add_u32 {x('aG1')}, {2*S}, {x('aG1')}")
            layer(3,o["b4"],o["b5"],o["b6"],None)
        A(f"s_and_b32 s57, s{sR}, 3\ns_xor_b32 s57, s57, s{sG}\ns_or_b32 s57, s57, s{sI}\ns_cmp_eq_u32 s57, 0\ns_cbranch_scc0 L_fail")
        A(f"v_add_u32 {x('aG1')}, {S}, {x('aG1')}\ns_lshl_b32 s57, s{sR}, 8\ns_sub_u32 s57, s57, {XF//2}\nv_lshrrev_b32 {x('t3')}, 1, {x('xFw')}\nv_add_u32 {x('t3')}, s57, {x('t3')}\nv_mov_b32 {x('t4')}, {NONCE}\nv_mov_b32 {x('fl')}, s{sTag}")
        if o.get("fz",0):
            A(f"v_lshrrev_b32 {x('t0')}, 2, {x('n')}\nv_and_b32 {x('t1')}, 3, {x('n')}\nv_lshlrev_b32 {x('t2')}, 4, {x('n')}\nv_sub_u32 {x('aG1')}, {x('aG1')}, {x('t2')}")
            A(f"v_lshl_add_u32 {x('aG1')}, {x('t0')}, 11, {x('aG1')}\nv_lshlrev_b32 {x('t1')}, 4, {x('t1')}\nv_add_u32 {x('aG1')}, {x('aG1')}, {x('t1')}")
            A(f"s_mul_i32 s57, s{sW}, {2048-64}\nv_mov_b32 {x('t2')}, s57\nv_sub_u32 {x('aG1')}, {x('aG1')}, {x('t2')}")
            A(f"s_lshl_b32 s57, s{sR}, 8\ns_lshl_b32 s58, s{sW}, 6\ns_add_u32 s57, s57, s58\nv_and_b32 {x('t3')}, 1, {x('g')}\nv_lshl_add_u32 {x('t3')}, {x('t3')}, 3, {x('t1')}\nv_add_u32 {x('t3')}, s57, {x('t3')}")
            fq=o.get("fq",0)
            if fq:
                sets=[("G0","G1"),("G2","G3"),("F0","F1"),("F2","F3")][:fq]
                def g(k): ld(False,"",4,sets[k][0],'aG1',sN); ld(False,"",4,sets[k][1],'aG1',sN,1024)
                prog(o["b7"][:-1])
                for k in range(fq-1): g(k); A(f"s_sleep {o.get('fs',1)}")
                A(f"{lab('fl')}:")
                for k in range(fq):
                    g((k-1)%fq); a_,b_=sets[k]
                    A(f"s_waitcnt vmcnt({2*fq-1})"); mf(R('D'),R('Sel'),R(a_),"0"); chk(q4(a_))
                    A(f"s_waitcnt vmcnt({2*fq-2})"); mf(R('D'),R('Sel'),R(b_),R('D')); chk(q4(b_),False)
                    A(f"v_cmp_eq_u32 vcc, -1, {x('chk')}\ns_cbranch_vccz {lab('fd')}")
                A(f"s_add_u32 s{sTo}, s{sTo}, 1\ns_cmp_lt_u32 s{sTo}, {TMO}\ns_cbranch_scc1 {lab('fl')}\ns_branch L_fail\n{lab('fd')}:")
            else: E1(11,o["b7"],4)
            stamp(0)
            if dfull: A(f"s_waitcnt lgkmcnt(0)\nv_writelane_b32 {x('stamp')}, s76, 60")
            for k in (4,8):
                for e in range(4): A(f"v_add_f32_dpp {x('D',e)}, {x('D',e)}, {x('D',e)} row_ror:{k} {DP}")
            cvtD()
            A(f"s_mov_b64 exec, 0xf000f\nglobal_store_dwordx2 {x('t3')}, {R('c01',2)}, s[24:25]")
            A(f"s_or_b32 s57, s{sR}, s{sW}\ns_cmp_eq_u32 s57, 0\ns_cbranch_scc0 L_fail")
            A(f"s_mov_b64 exec, 1\nglobal_store_dword {x('t4')}, {x('fl')}, s[28:29] sc1")
            A("s_branch L_fail" if diag else "s_endpgm")
            return pre,preo,post,posto
        E1(11,o["b7"],4)
        stamp(0)
        A(f"ds_write_b128 {x('xFw')}, {R('D')}"); bar()
        if diag: A(f"v_writelane_b32 {x('stamp')}, s76, 60")
        A(f"s_cmp_eq_u32 s{sW}, 0\ns_cbranch_scc0 L_fail")
        for k in range(4): A(f"ds_read_b128 {R('F%d'%k)}, {x('xFw')} offset:{k*FS}")
        A("s_waitcnt lgkmcnt(0)")
        for h in (0,2):
            A(f"v_pk_add_f32 {R('F0',2,h)}, {R('F0',2,h)}, {R('F1',2,h)}\nv_pk_add_f32 {R('F2',2,h)}, {R('F2',2,h)}, {R('F3',2,h)}\nv_pk_add_f32 {R('F0',2,h)}, {R('F0',2,h)}, {R('F2',2,h)}")
        cvtD('F0')
        if ENC: A(f"s_memrealtime s[94:95]\ns_waitcnt lgkmcnt(0)\ns_sub_u32 s96, s96, s98\ns_min_u32 s96, s96, 4000\ns_lshl_b32 s96, s96, 2\n{lab('en')}:\ns_memrealtime s[100:101]\ns_waitcnt lgkmcnt(0)\ns_sub_u32 s100, s100, s94\ns_cmp_lt_u32 s100, s96\ns_cbranch_scc1 {lab('en')}")
        A(f"s_mov_b32 exec_hi, 0\nglobal_store_dwordx2 {x('t3')}, {R('c01',2)}, s[24:25]")
        A(f"s_cmp_eq_u32 s{sR}, 0\ns_cbranch_scc0 L_fail")
        A(f"s_mov_b64 exec, 1\nglobal_store_dword {x('t4')}, {x('fl')}, s[28:29] sc1")
    A("s_branch L_fail" if diag else "s_endpgm")
    return pre,preo,post,posto
def gen(name=NAME, **kw):
    o=dict(DEF); o.update(kw); diag=o["diag"]
    L=HDR.rstrip("\n").split("\n")
    L.append(f"; @launch grid=(256,1,1) block=(256,1,1) lds={LDSSZ}")
    L+=f'.amdgcn_target "amdgcn-amd-amdhsa--gfx950"\n.text\n.globl {name}_kernel\n.p2align 8\n.type {name}_kernel,@function\n{name}_kernel:'.split("\n")
    L+="s_cmp_ge_u32 s2, 256\ns_cbranch_scc1 L_end\ns_load_dwordx16 s[4:19], s[0:1], 0\ns_load_dwordx8 s[20:27], s[0:1], 64\ns_load_dwordx2 s[28:29], s[0:1], 96\ns_bitcmp1_b32 s2, 0\ns_cbranch_scc1 L_B".split("\n")
    alt=[]
    for role in (0,1):
        pre,preo,post,posto=path(role,0,o); L+=pre+post+preo+posto+[f"L_end{'AB'[role]}:","s_endpgm"]
        if role==0 and "sB" in o: L+=[".p2align 6"]+["s_nop 0"]*o["sB"]
        pre,preo,post,posto=path(role,1,o); alt+=post+posto
    L+=alt
    L.append("L_fail:")
    if diag:
        L+=("s_mov_b64 exec, -1\n"+(f"v_mov_b32 {x('stamp')}, 0\nv_writelane_b32 {x('stamp')}, s98, 0\n" if o.get("dm",0)>1 else "")+"s_memrealtime s[76:77]\ns_memtime s[78:79]\ns_waitcnt lgkmcnt(0)\ns_sub_u32 s78, s78, s74\n"
            f"v_writelane_b32 {x('stamp')}, s76, 61\nv_writelane_b32 {x('stamp')}, s78, 62\nv_writelane_b32 {x('stamp')}, s{sTo}, 63\n"
            f"s_lshl_b32 s57, s2, 10\ns_lshl_b32 s58, s{sW}, 8\ns_add_u32 s57, s57, s58\ns_add_u32 s57, s57, {DIAG}\nv_lshl_add_u32 {x('t0')}, v0, 2, s57\nglobal_store_dword {x('t0')}, {x('stamp')}, s[28:29]").split("\n")
    L+=["L_end:","s_endpgm"]
    L+=f'.section .rodata,"a"\n.p2align 6\n.amdhsa_kernel {name}_kernel\n  .amdhsa_next_free_vgpr 512\n  .amdhsa_next_free_sgpr 102\n  .amdhsa_accum_offset 256\n  .amdhsa_group_segment_fixed_size 0\n  .amdhsa_kernarg_size 104\n  .amdhsa_user_sgpr_count 2\n  .amdhsa_user_sgpr_kernarg_segment_ptr 1\n  .amdhsa_system_sgpr_workgroup_id_x 1\n.end_amdhsa_kernel'.split("\n")
    out,n=fix(L,verbose=("-v" in sys.argv))
    return "\n".join(out)+"\n"
def parse(args):
    kw={}
    for a in args:
        if "=" in a:
            k,val=a.split("=")
            if isinstance(DEF.get(k),str): kw[k]=val
            else: kw[k]=tuple(int(z) for z in val.split(",")) if "," in val else int(val)
    return kw
if __name__=="__main__":
    t=gen(**parse(sys.argv[2:]))
    if "diag=1" in sys.argv: t+="; args: "+" ".join(a for a in sys.argv[2:] if a!="diag=1")+"\n"
    open(sys.argv[1],"w").write(t)
```

```python
def A(d,g=38,aq=None,post="G_B_L44_K_M32_T20",a1="S2_G_B_M40_M44_M48_T21",d0=None,d2=None,pre="N1_C"):
    aq=aq or 16+d+3; d0=d0 or d; d2=d2 or d
    return f"an0={d0} ap=U_Z_H0_E_T18_P{8+d}.{d}_M8_P{12+d}.{d}_F_M12_P{16+d}.{d}_M16_T19 aq={aq} a0={pre}_P{g}.{d2}_{post} a1={a1}"
def B(d,d2=None,d3=None):
    d2=d2 or d; d3=d3 or d2
    return (f"bn0={d} bp=U_Z_H0_H1_O_P{8+d}.{d}_T5_M8_P{12+d}.{d}_F_M12_P{16+d}.{d}_M16_T6_L{17+d}_Q_T7_P{min(32,24+d2)}.{d2}_K_T8_C_B_Y_P{32+d3}.{d3}_M32_T9_x_"
            f"P{min(48,40+d3)}.{d3}_M40_L48_X_M44_M48_T10")
BASE="base ring=3,3,3 br0=01 b1=D_G b2=S2_G b3=S2_G bsp=48,48,48 asp=48,48"
def w(L): open("l1.txt","w").write("\n".join([BASE]+L)+"\n")
def A6(d,g,post,asp,a1,aq=None,pre="C_B_Y_y",x="ar0=01",d2=None,fp=12):
    aq=aq or 16+d+3; d2=d2 or d
    return f"an0={d} ap=U_Z_H0_E_T18_P{8+d}.{d}_M8_P{12+d}.{d}_F_M12_P{16+d}.{d}_M16_T19 aq={aq} a0={pre}_P{g}.{d2}_G_{post}_T20 asp={asp},{asp} a1={a1}_T21 "+x
def B3(d,d2,d3,xp=None):
    cp=min(32,max(16+d,13+2*d))
    xp=xp or 32+d3
    return (f"bn0={d} bp=U_Z_H0_H1_O_P{8+d}.{d}_T5_M8_P{12+d}.{d}_F_M12_P{16+d}.{d}_M16_T6_P{cp}.{d}_C_B_Y_y_L{cp+1}_Q_T7_P{min(32,24+d2)}.{d2}_K_T8_P{32+d3}.{d3}_M32_T9_P{xp}.{d3}_x_"
            f"P{min(48,40+d3)}.{d3}_M40_L48_X_M44_M48_T10")
def B4(n0,q,d,d3=None,fp=None):
    d3=d3 or d; n=int(q.split(".")[0]);
    s=f"bn0={n0} bp=U_Z_H0_H1_O_P{q}_T5_F_"
    if n<8+d: s+=f"P{8+d}.{d}_M8_"
    if n<12+d: s+=f"P{12+d}.{d}_M12_"
    s+=f"P{16+d}.{d}_M16_T6_C_B_Y_y_L{min(32,18+d)}_Q_T7_P{24+d}.{d}_K_T8_P{min(48,32+d3)}.{d3}_M32_T9_x_P{min(48,40+d3)}.{d3}_M40_L48_X_M44_M48_T10"
    return s
def B5(n0,d,d3=None,pre=""):
    d3=d3 or d
    s=f"bn0={n0} bp=U_Z_H0_H1_O_{pre}w_T5_F_"
    s+=f"P{8+d}.{d}_M8_C_P{12+d}.{d}_M12_Y_y_"
    s+=f"P{16+d}.{d}_M16_T6_L{min(32,18+d)}_Q_T7_B_P{24+d}.{d}_K_T8_P{min(48,32+d3)}.{d3}_M32_T9_x_P{min(48,40+d3)}.{d3}_M40_L48_X_M44_M48_T10"
    return s
import re
def bell(a,where):
    assert where in a; return a.replace(where,where+"_r",1)
def B6(d,d2,d3,n=42,b1="D_G",b2="S2_G_L48",b3="S2_G_M48"):
    cp=min(32,max(16+d,13+2*d))
    s=(f"bn0={d} bp=U_Z_H0_H1_O_P{8+d}.{d}_T5_M8_P{12+d}.{d}_F_M12_P{16+d}.{d}_M16_T6_P{cp}.{d}_C_B_Y_y_L{cp+1}_Q_T7_P{min(32,24+d2)}.{d2}_K_T8_P{min(n,32+d3)}.{d3}_M32_T9_x_"
            f"P{n}.{d3}_X_M40_W{n-1}_T10 b1={b1} b2={b2} b3={b3} bsp={n},{n},{n}")
    return s
e2=lambda s:f" a3={s} b2={s} b5={s}"
e3=lambda s:f" a4={s} b3={s} b6={s}"
ee=lambda a,b:e2(f"S{a}_G")+e3(f"S{b}_G")
FAST=" dsl=1 slpl=0 slp=1"
F2=FAST+" il=7 lp=1 fz=1 TMO=100000"
F3=F2+ee(3,2)+" il=15 pk=7"
E1=lambda d:f"P48.{d}_M40_G_M44_M48"
E2=lambda d:f"P48.{d}_M40_M44_G_M48"
```
